```python
import torch

def _softmax(x, axis=-1):
    return torch.softmax(x, dim=axis)
def _gelu(x):
    return torch.nn.functional.gelu(x, approximate="tanh")
def _silu(x):
    return torch.nn.functional.silu(x)
def _sigmoid(x):
    return torch.sigmoid(x)
def _layernorm(x, axis=-1, eps=1e-5):
    m = x.mean(dim=axis, keepdim=True)
    v = x.var(dim=axis, keepdim=True, unbiased=False)
    return (x - m) / torch.sqrt(v + eps)
def _scatter_add(tgt, idx, src, axis=0):
    return tgt.clone().index_add_(axis, idx, src)
def _segment_sum(src, seg, n):
    out = torch.zeros((n,) + src.shape[1:], dtype=src.dtype)
    return out.index_add_(0, seg, src)
def _pad(x, pw):
    flat = tuple(v for pair in reversed(pw) for v in pair)
    return torch.nn.functional.pad(x, flat)

kernel_name = 'concat_heads__mha_block_cached__gqa_block_cached__near_ridge'

def setup_inputs():

    _w = (lambda a: (lambda t: t.to(torch.bfloat16) if t.is_floating_point() else t)(torch.as_tensor(a)))
    def _A_setup():
        B, Sq, D = 8, 224, 448
        H, Sk, Dh = 16, 512, 256
        return {
            "x": _w((lambda *s: torch.randn(*s, dtype=torch.bfloat16) * 0.8)(B, Sq, D)),
            "k_cache": _w((lambda *s: torch.randn(*s, dtype=torch.bfloat16) * 0.8)(B, H, Sk, Dh)),
            "v_cache": _w((lambda *s: torch.randn(*s, dtype=torch.bfloat16) * 0.05)(B, H, Sk, Dh)),
            "wq": _w((lambda *s: torch.randn(*s, dtype=torch.bfloat16) * 0.8)(D, H * Dh) * (D ** -0.5)),
            "wo": _w((lambda *s: torch.randn(*s, dtype=torch.bfloat16) * 0.05)(H * Dh, D) * ((H * Dh) ** -0.5)),
        }
    _A_in = _A_setup()

    def _B_setup():
        B, Sq, D = 8, 224, 448
        Hq, Hkv, Sk, Dh = 16, 16, 512, 256
        assert Hq % Hkv == 0, (Hq, Hkv)
        return {
            "x": _w((lambda *s: torch.randn(*s, dtype=torch.bfloat16) * 0.8)(B, Sq, D)),
            "k_cache": _w((lambda *s: torch.randn(*s, dtype=torch.bfloat16) * 0.8)(B, Hkv, Sk, Dh)),
            "v_cache": _w((lambda *s: torch.randn(*s, dtype=torch.bfloat16) * 0.05)(B, Hkv, Sk, Dh)),
            "wq": _w((lambda *s: torch.randn(*s, dtype=torch.bfloat16) * 0.8)(D, Hq * Dh) * (D ** -0.5)),
            "wo": _w((lambda *s: torch.randn(*s, dtype=torch.bfloat16) * 0.05)(Hq * Dh, D) * ((Hq * Dh) ** -0.5)),
        }
    _B_in = _B_setup()

    return {
        "A_x": _A_in["x"],
        "A_k_cache": _A_in["k_cache"],
        "A_v_cache": _A_in["v_cache"],
        "A_wq": _A_in["wq"],
        "A_wo": _A_in["wo"],
        "B_x": _B_in["x"],
        "B_k_cache": _B_in["k_cache"],
        "B_v_cache": _B_in["v_cache"],
        "B_wq": _B_in["wq"],
        "B_wo": _B_in["wo"],
    }

def reference(A_x, A_k_cache, A_v_cache, A_wq, A_wo, B_x, B_k_cache, B_v_cache, B_wq, B_wo):
    def _A_ref(x, k_cache, v_cache, wq, wo):
        B, Sq, D = x.shape
        H, Dh = 16, 256
        q = (lambda x, *d: x.permute(*d))((x @ wq).reshape(B, Sq, H, Dh), 0, 2, 1, 3)
        scores = torch.einsum("bhqd,bhkd->bhqk", q, k_cache) * (Dh ** -0.5)
        p = _softmax(scores, axis=-1)
        o = torch.einsum("bhqk,bhkd->bhqd", p, v_cache)
        return (lambda x, *d: x.permute(*d))(o, 0, 2, 1, 3).reshape(B, Sq, H * Dh) @ wo

    def _B_ref(x, k_cache, v_cache, wq, wo):
        B, Sq, D = x.shape
        Hq, Dh = 16, 256
        Hkv = k_cache.shape[1]
        rep = Hq // Hkv
        q = (lambda x, *d: x.permute(*d))((x @ wq).reshape(B, Sq, Hq, Dh), 0, 2, 1, 3)
        k = (lambda x, n, axis: torch.repeat_interleave(x, n, dim=axis))(k_cache, rep, axis=1)
        v = (lambda x, n, axis: torch.repeat_interleave(x, n, dim=axis))(v_cache, rep, axis=1)
        scores = torch.einsum("bhqd,bhkd->bhqk", q, k) * (Dh ** -0.5)
        p = _softmax(scores, axis=-1)
        o = torch.einsum("bhqk,bhkd->bhqd", p, v)
        return (lambda x, *d: x.permute(*d))(o, 0, 2, 1, 3).reshape(B, Sq, Hq * Dh) @ wo

    a = _A_ref(A_x, A_k_cache, A_v_cache, A_wq, A_wo)
    b = _B_ref(B_x, B_k_cache, B_v_cache, B_wq, B_wo)
    return torch.concatenate([a, b], axis=-1)
```

```python
import re

def R(a, n=1):
    return "v%d" % a if n == 1 else "v[%d:%d]" % (a, a + n - 1)
def S(a, n=1):
    return "s%d" % a if n == 1 else "s[%d:%d]" % (a, a + n - 1)

class I:
    __slots__ = ("text", "kind", "wr", "rd", "rdc", "passes", "swr", "srd")
    def __init__(self, text, kind, wr=(), rd=(), rdc=(), passes=0, swr=(), srd=()):
        self.text = text; self.kind = kind
        self.wr = frozenset(wr); self.rd = frozenset(rd); self.rdc = frozenset(rdc)
        self.passes = passes
        self.swr = frozenset(swr); self.srd = frozenset(srd)
    def states(self):
        if self.kind in ("label", "comment", "directive"): return 0
        if self.kind == "nop": return int(self.text.split()[1]) + 1
        return 1

def rr(a, n): return range(a, a + n)

def mfma16(d, a, b, c):
    ct = "0" if c is None else R(c, 4)
    return I("v_mfma_f32_16x16x32_bf16 %s, %s, %s, %s" % (R(d, 4), R(a, 4), R(b, 4), ct), "mfma",
             wr=rr(d, 4), rd=list(rr(a, 4)) + list(rr(b, 4)), rdc=() if c is None else rr(c, 4), passes=4)
def mfma32(d, a, b, c):
    ct = "0" if c is None else R(c, 16)
    return I("v_mfma_f32_32x32x16_bf16 %s, %s, %s, %s" % (R(d, 16), R(a, 4), R(b, 4), ct), "mfma",
             wr=rr(d, 16), rd=list(rr(a, 4)) + list(rr(b, 4)), rdc=() if c is None else rr(c, 16), passes=8)
def valu(text, wr=(), rd=(), swr=(), srd=()): return I(text, "valu", wr=wr, rd=rd, swr=swr, srd=srd)
def trans(text, wr=(), rd=()): return I(text, "trans", wr=wr, rd=rd)
def perm(text, regs): return I(text, "perm", wr=regs, rd=regs)
def salu(text): return I(text, "salu")
def label(name): return I(name + ":", "label")
def comment(t): return I("; " + t, "comment")
def directive(t): return I(t, "directive")
def nop(n): return I("s_nop %d" % n, "nop")
def dsr128(d, addr, off): return I("ds_read_b128 %s, %s offset:%d" % (R(d, 4), R(addr), off), "dsr", wr=rr(d, 4), rd=[addr])
def dsrtr(d, addr, off): return I("ds_read_b64_tr_b16 %s, %s offset:%d" % (R(d, 2), R(addr), off), "dsr", wr=rr(d, 2), rd=[addr])
def dsw128(addr, s, off): return I("ds_write_b128 %s, %s offset:%d" % (R(addr), R(s, 4), off), "dsw", rd=[addr] + list(rr(s, 4)))
def vmem(text, wr=(), rd=(), srd=(), store=False): return I(text, "vst" if store else "vld", wr=wr, rd=rd, srd=srd)
def wait(vm=None, lgkm=None):
    t = "s_waitcnt"
    if vm is not None: t += " vmcnt(%d)" % vm
    if lgkm is not None: t += " lgkmcnt(%d)" % lgkm
    return I(t, "wait")
def barrier(): return I("s_barrier", "salu")

def v_mov(d, src, rd=()): return valu("v_mov_b32 %s, %s" % (R(d), src), wr=[d], rd=rd)
def v_cvtpk(d, a, b): return valu("v_cvt_pk_bf16_f32 %s, %s, %s" % (R(d), R(a), R(b)), wr=[d], rd=[a, b])
def v_exp(d, a): return trans("v_exp_f32 %s, %s" % (R(d), R(a)), wr=[d], rd=[a])
def v_add(d, a, b): return valu("v_add_f32 %s, %s, %s" % (R(d), R(a), R(b)), wr=[d], rd=[a, b])
def v_sub(d, a, b): return valu("v_sub_f32 %s, %s, %s" % (R(d), R(a), R(b)), wr=[d], rd=[a, b])
def v_mul(d, a, b): return valu("v_mul_f32 %s, %s, %s" % (R(d), R(a), R(b)), wr=[d], rd=[a, b])
def v_max(d, a, b): return valu("v_max_f32 %s, %s, %s" % (R(d), R(a), R(b)), wr=[d], rd=[a, b])
def v_max3(d, a, b, c): return valu("v_max3_f32 %s, %s, %s, %s" % (R(d), R(a), R(b), R(c)), wr=[d], rd=[a, b, c])
def v_swap16(a, b): return perm("v_permlane16_swap_b32 %s, %s" % (R(a), R(b)), [a, b])
def v_swap32(a, b): return perm("v_permlane32_swap_b32 %s, %s" % (R(a), R(b)), [a, b])

VALUISH = ("valu", "trans", "perm")

def need(p, c):
    n = 0
    if p.kind == "mfma":
        P = p.passes
        if c.kind == "mfma":
            if p.wr & c.rd: n = max(n, {4: 8, 8: 12}[P])
            if p.wr & c.rdc and not (p.wr == c.rdc and p.passes == c.passes): n = max(n, {4: 6, 8: 10}[P])
            if (p.wr & c.wr) and not (p.wr == c.rdc): n = max(n, {4: 6, 8: 10}[P])
        elif c.kind in VALUISH:
            if p.wr & (c.rd | c.wr): n = max(n, {4: 8, 8: 12}[P])
            if p.rdc & c.wr: n = max(n, {4: 3, 8: 7}[P])
        elif c.kind in ("dsr", "dsw", "vld", "vst"):
            if p.wr & (c.rd | c.wr): n = max(n, {4: 8, 8: 12}[P])
    elif p.kind in VALUISH:
        if c.kind == "mfma" and p.wr & (c.rd | c.rdc): n = max(n, 2)
        if c.kind == "perm" and p.wr & c.rd: n = max(n, 2)
        if p.kind == "trans" and c.kind in ("valu", "perm") and p.wr & c.rd: n = max(n, 1)
        if c.kind in VALUISH and "readfirstlane" in c.text and p.wr & c.rd: n = max(n, 1)
        if c.kind in VALUISH and "readlane" in c.text and p.wr & c.rd: n = max(n, 1)
        if p.swr:
            if c.kind in VALUISH and p.swr & c.srd: n = max(n, 2)
            if c.kind in ("vld", "vst") and p.swr & c.srd: n = max(n, 5)
    elif p.kind in ("vst", "dsw"):
        if p.kind == "vst" and (p.rd & c.wr):
            n = max(n, 2 if c.kind in VALUISH else 1)
    elif p.kind == "salu":
        if "m0" in p.text.split(",")[0] and c.kind == "vld" and " lds" in c.text: n = max(n, 1)
    return n

def pad_hazards(seq, prefix=()):
    out = list(prefix); np_ = len(out)
    for c in seq:
        if c.states() > 0:
            req = 0; dist = 0
            for p in reversed(out):
                if dist >= 20: break
                nd = need(p, c)
                if nd - dist > req: req = nd - dist
                dist += p.states()
            while req > 0:
                k = min(req, 16)
                out.append(nop(k - 1)); req -= k
        out.append(c)
    return out[np_:]

def check_hazards(seq):
    bad = []
    for i, c in enumerate(seq):
        if c.states() == 0: continue
        dist = 0
        for j in range(i - 1, -1, -1):
            p = seq[j]
            if dist >= 20: break
            nd = need(p, c)
            if nd > dist: bad.append((p.text, c.text, nd, dist))
            dist += p.states()
    return bad

def text(seq):
    o = []
    for i in seq:
        o.append(i.text if i.kind in ("label", "directive") else "    " + i.text)
    return "\n".join(o)
```

```python
import sys, math
from asmlib import *

NAME = "concat_heads__mha_block_cached__gqa_block_cached__near_ridge"
PROF = "--prof" in sys.argv
OUT = [a for a in sys.argv[1:] if not a.startswith("--")]
OUT = OUT[0] if OUT else "cdna_kernels/%s.s" % NAME

SLOT = 16896; NSLOT = 9; ISTR = 1056
LDS_BYTES = 163840
PART = 200704
PROF_OFF = 64 << 20
CSCALE = math.log2(math.e) / 16.0
THR = 65536.0
import struct
def f2u(x): return struct.unpack("<I", struct.pack("<f", x))[0]

def ACC(qt, t): return 8 * t + 4 * qt
def OACC(s, qt, tau): return 32 * s + 8 * tau + 4 * qt
def QF(qt, u): return 128 + 32 * qt + 4 * u
def SR(qt, z): return 192 + 8 * qt + 4 * z
def PR(qt): return 208 + 4 * qt
def NM(qt): return 216 + 4 * qt
FB0 = 224
BUFSEQ = [0,1,2,3,4,5, 0,1,2,3,4, 0,1,2,3,4]; DEPTH = 5
vK, vT = 248, 249
def L(qt): return 250 + qt
def T(qt): return 252 + qt
TMP0, TMP1 = 254, 255
vT1, vXO = 252, 253
vST = 248
def XF(qt, s):
    if s < 8: return 128 + 8 * s + 4 * qt
    if s < 10: return 128 + 8 * (s - 8) + 4 * qt
    return 192 + 8 * (s - 10) + 4 * qt

sWID = 3
sX, sW, sKd, sVd, sO, sP = 36, 40, 44, 48, 52, 56
sC, sTHR, sKpos, sVpos, sDK, sDV, sPOS, sNEG, sCNT, sRET, sT0, sT1 = 60, 62, 63, 64, 65, 66, 67, 68, 69, 70, 71, 72
sOFF = 73

halves = [("W", i) for i in range(14)] + [("K", 0)]
for i in range(1, 16): halves += [("K", i), ("V", i - 1)]
halves += [("V", 15)] + [("O", i) for i in range(14)]
assert len(halves) == 60
intervals = [[2*i, 2*i+1] for i in range(7)] + [[14]] + [[13 + 2*i, 14 + 2*i] for i in range(1, 16)] + [[45]] + [[46 + 2*i, 47 + 2*i] for i in range(7)]
def slot_addr(n): return (n % NSLOT) * SLOT

class Half:
    def __init__(self, reads, mf, pre): self.reads = reads; self.mf = mf; self.pre = pre

def vadd_lit(reg, delta):
    return valu("v_add_u32 %s, 0x%x, %s" % (R(reg), delta & 0xffffffff, R(reg)), wr=[reg], rd=[reg])
def vadd_s(reg, s):
    return valu("v_add_u32 %s, %s, %s" % (R(reg), S(s), R(reg)), wr=[reg], rd=[reg])

def half_W(s, pre):
    def reads(f, b):
        a = vT1 if f & 1 else vT
        return [dsrtr(b, a, 32 * f), dsrtr(b + 2, a, 32 * f + 512)]
    def mf(f, b):
        return [mfma16(ACC(qt, f), b, XF(qt, s), None if s == 0 else ACC(qt, f)) for qt in range(2)]
    return Half(reads, mf, pre)
def half_K(pre, first=False):
    def reads(f, b):
        u, z = f >> 1, f & 1
        return [dsr128(b, vK, 512 * z + 64 * u)]
    def mf(f, b):
        u, z = f >> 1, f & 1
        return [mfma16(SR(qt, z), b, QF(qt, u), (None if first else NM(qt)) if u == 0 else SR(qt, z)) for qt in range(2)]
    return Half(reads, mf, pre)
def half_V(pre):
    def reads(f, b): return [dsrtr(b, vT, 32 * f), dsrtr(b + 2, vT, 32 * f + 512)]
    def mf(f, b): return [mfma16(ACC(qt, f), b, PR(qt), ACC(qt, f)) for qt in range(2)]
    return Half(reads, mf, pre)
def half_O(hh, aset, pre):
    def reads(f, b):
        ks, tau = f >> 2, f & 3
        return [dsrtr(b, vT, 256 * ks + 32 * tau), dsrtr(b + 2, vT, 256 * ks + 128 + 32 * tau)]
    def mf(f, b):
        ks, tau = f >> 2, f & 3
        u = 4 * hh + ks
        return [mfma16(OACC(aset, qt, tau), b, QF(qt, u), None if u == 0 else OACC(aset, qt, tau)) for qt in range(2)]
    return Half(reads, mf, pre)

class Stream:
    def __init__(self):
        self.o = []
        self.q = []
    def buf(self, f): return FB0 + 4 * BUFSEQ[f % 16]
    def issue(self, h, f, key):
        if f == 0: self.o += h.pre
        for r in h.reads(f, self.buf(f)):
            self.o.append(r); self.q.append(key)
    def preload(self, h):
        for f in range(DEPTH): self.issue(h, f, (id(h), f))
    def rekey(self, hold, hnew):
        self.q = [(id(hnew), k[1]) if k[0] == id(hold) else k for k in self.q]
    def waitfor(self, key):
        if key in self.q:
            last = max(i for i, k in enumerate(self.q) if k == key)
            n = len(self.q) - 1 - last
            self.o.append(wait(lgkm=n))
            self.q = self.q[last + 1:]
    def run(self, h, nxt, fill=None, head=None):
        fill = fill or {}; head = head or {}
        for f in range(16):
            ms = h.mf(f, self.buf(f))
            for k, m in enumerate(ms):
                sl = 2 * f + k
                self.o += head.get(sl, [])
                if k == 0: self.waitfor((id(h), f))
                self.o.append(m)
                if k == len(ms) - 1:
                    g = f + DEPTH
                    if g < 16: self.issue(h, g, (id(h), g))
                    elif nxt is not None: self.issue(nxt, g - 16, (id(nxt), g - 16))
                self.o += fill.get(sl, [])

def spread(ops, lo, hi, d=None):
    d = d if d is not None else {}
    n = hi - lo + 1
    for i, op in enumerate(ops):
        d.setdefault(lo + (i * n) // len(ops), []).append(op)
    return d

def sm_ops():
    ops = []
    def s(qt, j): return SR(qt, 0) + j
    for qt in range(2): ops.append(v_exp(s(qt, 0), s(qt, 0)))
    for qt in range(2): ops.append(v_exp(s(qt, 1), s(qt, 1)))
    for j in range(2, 9):
        if j < 8:
            for qt in range(2): ops.append(v_exp(s(qt, j), s(qt, j)))
        for qt in range(2):
            if j == 2: ops.append(v_add(T(qt), s(qt, 0), s(qt, 1)))
            else: ops.append(v_add(T(qt), T(qt), s(qt, j - 1)))
    return ops
def check_ops():
    return [v_max(TMP0, T(0), T(1)),
            valu("v_cmp_nge_f32 vcc, %s, %s" % (S(sTHR), R(TMP0)), rd=[TMP0], swr=["vcc"])]
def pcvt_head():
    d = {}
    for z in range(2):
        for qt in range(2):
            d[2 * z + qt] = [v_cvtpk(PR(qt) + 2 * z, SR(qt, z), SR(qt, z) + 1), v_cvtpk(PR(qt) + 2 * z + 1, SR(qt, z) + 2, SR(qt, z) + 3)]
    return d
def pcvt_all():
    o = []
    for v in pcvt_head().values(): o += v
    return o
def ladd(): return [v_add(L(qt), L(qt), T(qt)) for qt in range(2)]

def rowreduce(reg, tmp, op):
    return [v_mov(tmp, R(reg), [reg]), v_swap16(reg, tmp), op(reg, reg, tmp),
            v_mov(tmp, R(reg), [reg]), v_swap32(reg, tmp), op(reg, reg, tmp)]

def compute_wave():
    st = Stream(); o = st.o
    A = o.append
    o += [label("L_compute")]
    A(valu("v_and_b32 v1, 63, v0", wr=[1], rd=[0]))
    A(valu("v_and_b32 v2, 15, v1", wr=[2], rd=[1]))
    A(valu("v_lshrrev_b32 v3, 4, v1", wr=[3], rd=[1]))
    A(salu("s_lshl_b32 %s, %s, 5" % (S(sT0), S(sWID))))
    A(valu("v_add_u32 v4, %s, v2" % S(sT0), wr=[4], rd=[2]))
    A(valu("v_mul_u32_u24 v4, 896, v4", wr=[4], rd=[4]))
    A(valu("v_lshl_add_u32 %s, v3, 4, v4" % R(vXO), wr=[vXO], rd=[3, 4]))
    A(salu("s_movk_i32 %s, 14336" % S(sT1)))
    def xload(qt, s):
        return vmem("buffer_load_dwordx4 %s, %s, %s, %s offen offset:%d" % (R(XF(qt, s), 4), R(vXO), S(sX, 4), S(sT1) if qt else "0", 64 * s),
                    wr=rr(XF(qt, s), 4), rd=[vXO])
    xorder = [s for s in range(14) if s not in (8, 9)]
    for s in xorder:
        for qt in range(2): A(xload(qt, s))
    A(valu("v_lshrrev_b32 v5, 2, v1", wr=[5], rd=[1]))
    A(valu("v_mul_u32_u24 v5, %d, v5" % ISTR, wr=[5], rd=[5]))
    A(valu("v_and_b32 v6, 3, v1", wr=[6], rd=[1]))
    A(valu("v_lshl_add_u32 %s, v6, 3, v5" % R(vT), wr=[vT], rd=[5, 6]))
    A(valu("v_xor_b32 %s, 16, %s" % (R(vT1), R(vT)), wr=[vT1], rd=[vT]))
    A(valu("v_lshlrev_b32 v6, 1, v3", wr=[6], rd=[3]))
    A(valu("v_mov_b32 v7, 0x9c", wr=[7]))
    A(valu("v_lshrrev_b32 v6, v6, v7", wr=[6], rd=[6, 7]))
    A(valu("v_and_b32 v6, 3, v6", wr=[6], rd=[6]))
    A(valu("v_mul_u32_u24 v5, %d, v2" % ISTR, wr=[5], rd=[2]))
    A(valu("v_lshl_add_u32 %s, v6, 4, v5" % R(vK), wr=[vK], rd=[5, 6]))
    A(vadd_lit(vK, slot_addr(14)))
    A(salu("s_mov_b32 %s, 0x%x" % (S(sC), f2u(CSCALE))))
    A(salu("s_mov_b32 %s, 0x%x" % (S(sC + 1), f2u(CSCALE))))
    A(salu("s_mov_b32 %s, 0x%x" % (S(sTHR), f2u(THR))))
    A(salu("s_mov_b32 %s, %d" % (S(sPOS), 2 * SLOT)))
    A(salu("s_mov_b32 %s, %d" % (S(sNEG), -7 * SLOT)))
    def wpre(n):
        if n == 0: return []
        d = slot_addr(n) - slot_addr(n - 1)
        return [vadd_lit(vT, d), vadd_lit(vT1, d)]
    HW = [half_W(s, wpre(s)) for s in range(14)]
    HK0 = half_K([], first=True)
    A(barrier())
    st.preload(HW[0])
    xq = [(qt, s) for s in xorder for qt in range(2)]
    def xwait(s):
        nonlocal xq
        idx = [i for i, k in enumerate(xq) if k[1] == s]
        if not idx: return []
        last = max(idx); n = len(xq) - 1 - last; xq = xq[last + 1:]
        return [wait(vm=n)]
    def qconv(u):
        ops = []
        for qt in range(2):
            for e in range(2):
                a = ACC(qt, 2 * u + e)
                for h in range(2):
                    ops.append(valu("v_pk_mul_f32 %s, %s, %s" % (R(a + 2 * h, 2), R(a + 2 * h, 2), S(sC, 2)), wr=rr(a + 2 * h, 2), rd=rr(a + 2 * h, 2)))
        for qt in range(2):
            for e in range(2):
                a = ACC(qt, 2 * u + e)
                for h in range(2): ops.append(v_cvtpk(QF(qt, u) + 2 * e + h, a + 2 * h, a + 2 * h + 1))
        for qt in range(2):
            for h in range(2): ops.append(v_swap16(QF(qt, u) + h, QF(qt, u) + 2 + h))
        return ops
    for s in range(14):
        head = {0: xwait(s)}
        fill = {}
        if s == 2:
            late = [xload(qt, s2) for s2 in (8, 9) for qt in range(2)]
            fill = spread(late, 1, 8); xq += [(qt, s2) for s2 in (8, 9) for qt in range(2)]
        if s == 13:
            for u in range(6): spread(qconv(u), 4 * u + 7, 4 * u + 10, fill)
        st.run(HW[s], HW[s + 1] if s < 13 else HK0, fill, head)
        if s & 1: A(barrier())
    HKn = half_K([vadd_lit(vK, slot_addr(15) - slot_addr(14))])
    fill = {}
    spread(qconv(6), 0, 5, fill); spread(qconv(7), 6, 11, fill)
    zero = [valu("v_mov_b64 %s, 0" % R(2 * i, 2), wr=rr(2 * i, 2)) for i in range(64)]
    spread(zero, 12, 31, fill)
    st.run(HK0, HKn, fill)
    A(vadd_lit(vT, slot_addr(16) - slot_addr(13) - 2 * SLOT))
    A(salu("s_mov_b32 %s, %d" % (S(sKpos), slot_addr(15))))
    A(salu("s_mov_b32 %s, %d" % (S(sVpos), slot_addr(16))))
    A(salu("s_mov_b32 %s, %d" % (S(sDV), 2 * SLOT)))
    A(salu("s_mov_b32 %s, 14" % S(sCNT)))
    A(salu("s_mov_b32 %s, 0" % S(sRET)))
    for qt in range(2):
        s0 = SR(qt, 0); m = NM(qt)
        o += [v_max3(m, s0, s0 + 1, s0 + 2), v_max3(m, m, s0 + 3, s0 + 4), v_max3(m, m, s0 + 5, s0 + 6), v_max(m, m, s0 + 7)]
    r0 = rowreduce(NM(0), TMP0, v_max); r1 = rowreduce(NM(1), TMP1, v_max)
    for a, b in zip(r0, r1): o += [a, b]
    for qt in range(2):
        for j in range(8): A(v_sub(SR(qt, 0) + j, SR(qt, 0) + j, NM(qt)))
    for qt in range(2):
        m = NM(qt)
        A(valu("v_sub_f32 %s, 0, %s" % (R(m), R(m)), wr=[m], rd=[m]))
        for j in range(1, 4): A(v_mov(m + j, R(m), [m]))
        A(v_mov(L(qt), "0"))
    o += sm_ops()
    pre_loop = list(o)
    def body(last):
        st.o = []; b = st.o
        HK = half_K([]); st.rekey(HKn, HK)
        HV = half_V([vadd_s(vT, sDV)])
        if not last:
            nxt = half_K([vadd_s(vK, sDK)])
        else:
            nxt = half_V([vadd_lit(vT, slot_addr(45) - slot_addr(44))])
        b.append(barrier())
        fill = spread(ladd(), 4, 5)
        if not last:
            sal = [salu("s_cmp_ge_u32 %s, %d" % (S(sKpos), 7 * SLOT)), salu("s_cselect_b32 %s, %s, %s" % (S(sDK), S(sNEG), S(sPOS))),
                   salu("s_add_u32 %s, %s, %s" % (S(sKpos), S(sKpos), S(sDK)))]
        else:
            sal = [salu("s_mov_b32 %s, 0" % S(sDK)), salu("s_mov_b32 %s, 1" % S(sRET))]
        spread(sal, 6, 8, fill)
        st.run(HK, HV, fill, pcvt_head())
        fill = spread(sm_ops() + check_ops(), 3, 29)
        if not last:
            sal = [salu("s_cmp_ge_u32 %s, %d" % (S(sVpos), 7 * SLOT)), salu("s_cselect_b32 %s, %s, %s" % (S(sDV), S(sNEG), S(sPOS))),
                   salu("s_add_u32 %s, %s, %s" % (S(sVpos), S(sVpos), S(sDV)))]
            spread(sal, 0, 2, fill)
            fill.setdefault(30, []).append(salu("s_sub_u32 %s, %s, 1" % (S(sCNT), S(sCNT))))
        st.run(HV, nxt, fill)
        b.append(salu("s_cbranch_vccnz L_rare"))
        b.append(label("L_ret1" if last else "L_ret0"))
        if not last:
            b.append(salu("s_cmp_lg_u32 %s, 0" % S(sCNT)))
            b.append(salu("s_cbranch_scc1 L_loop"))
            st.rekey(nxt, HKn)
        return b, nxt
    q_entry = list(st.q)
    lb, _ = body(False)
    assert st.q == q_entry, (st.q, q_entry)
    lastb, HV15 = body(True)
    st.o = []; o2 = st.o; A = o2.append
    def opre(n): return [vadd_lit(vT, slot_addr(n) - slot_addr(n - 1))]
    HO = [half_O(i & 1, (i >> 1) % 4, opre(46 + i)) for i in range(14)]
    A(barrier())
    o2 += pcvt_all() + ladd()
    def oconv(u):
        ops = []
        for qt in range(2):
            for e in range(2):
                a = ACC(qt, 2 * u + e)
                for h in range(2): ops.append(v_cvtpk(QF(qt, u) + 2 * e + h, a + 2 * h, a + 2 * h + 1))
        return ops
    fill = {}
    r0 = rowreduce(L(0), TMP0, v_add); r1 = rowreduce(L(1), TMP1, v_add)
    lops = [x for ab in zip(r0, r1) for x in ab]
    lops += [trans("v_rcp_f32 %s, %s" % (R(L(qt)), R(L(qt))), wr=[L(qt)], rd=[L(qt)]) for qt in range(2)]
    lops += [valu("v_mbcnt_lo_u32_b32 %s, -1, 0" % R(vST), wr=[vST]), valu("v_mbcnt_hi_u32_b32 %s, -1, %s" % (R(vST), R(vST)), wr=[vST], rd=[vST]),
             salu("s_mul_i32 %s, %s, 28672" % (S(sT0), S(sWID))),
             valu("v_lshlrev_b32 %s, 4, %s" % (R(vST), R(vST)), wr=[vST], rd=[vST]), vadd_s(vST, sT0)]
    spread(lops, 0, 6, fill)
    for u in range(6): spread(oconv(u), 4 * u + 7, 4 * u + 10, fill)
    st.run(HV15, HO[0], fill)
    def epi(j):
        ops = []; aset = j % 4
        for qt in range(2):
            for hf in range(2):
                dst = SR(qt, hf)
                for e in range(2):
                    a = OACC(aset, qt, 2 * hf + e)
                    for r in range(4): ops.append(v_mul(a + r, a + r, L(qt)))
                    for h in range(2): ops.append(v_cvtpk(dst + 2 * e + h, a + 2 * h, a + 2 * h + 1))
                if hf == 0: ops.append(salu("s_mov_b32 %s, %d" % (S(sOFF), qt * 14336 + j * 2048)))
                ops.append(vmem("buffer_store_dwordx4 %s, %s, %s, %s offen offset:%d" % (R(dst, 4), R(vST), S(sP, 4), S(sOFF), 1024 * hf),
                                rd=list(rr(dst, 4)) + [vST], store=True))
        return ops
    for i in range(14):
        j = i >> 1
        if not (i & 1): A(barrier())
        fill = {}
        if i == 0:
            spread(oconv(6) + oconv(7), 2, 12, fill)
        elif j >= 1:
            e = epi(j - 1); n = len(e) // 2
            if not (i & 1): spread(e[:n], 4, 31, fill)
            else: spread(e[n:], 0, 31, fill)
        st.run(HO[i], HO[i + 1] if i < 13 else None, fill)
    o2 += epi(6)
    if PROF:
        A(wait(vm=0)); A(barrier())
    A(salu("s_endpgm"))
    rp = [label("L_rare"), wait(lgkm=0), nop(15)]
    rp.append(valu("v_subrev_u32 %s, %s, %s" % (R(TMP0), S(sDK), R(vK)), wr=[TMP0], rd=[vK]))
    for u in range(8):
        for z in range(2): rp.append(dsr128(PR(z), TMP0, 512 * z + 64 * u))
        rp.append(wait(lgkm=0))
        for z in range(2):
            for qt in range(2): rp.append(mfma16(SR(qt, z), PR(z), QF(qt, u), NM(qt) if u == 0 else SR(qt, z)))
        rp.append(nop(7))
    rp.append(nop(15))
    for qt in range(2):
        s0 = SR(qt, 0); d = T(qt)
        rp += [v_max3(d, s0, s0 + 1, s0 + 2), v_max3(d, d, s0 + 3, s0 + 4), v_max3(d, d, s0 + 5, s0 + 6), v_max(d, d, s0 + 7)]
        rp += rowreduce(d, TMP0, v_max)
        rp.append(valu("v_max_f32 %s, 0, %s" % (R(d), R(d)), wr=[d], rd=[d]))
        for j in range(8): rp.append(v_sub(s0 + j, s0 + j, d))
        for j in range(4): rp.append(v_sub(NM(qt) + j, NM(qt) + j, d))
        rp.append(trans("v_exp_f32 %s, -%s" % (R(TMP1), R(d)), wr=[TMP1], rd=[d]))
        rp.append(v_mul(L(qt), L(qt), TMP1))
        for t in range(16):
            for r in range(4): rp.append(v_mul(ACC(qt, t) + r, ACC(qt, t) + r, TMP1))
    rp += sm_ops()
    rp += [nop(7), salu("s_cmp_eq_u32 %s, 0" % S(sRET)), salu("s_cbranch_scc1 L_ret0"), salu("s_branch L_ret1")]
    pre_loop = pad_hazards(pre_loop)
    lb1 = pad_hazards(lb, prefix=pre_loop)
    lb2 = pad_hazards(lb1, prefix=lb1)
    assert len(lb2) == len(lb1) or True
    lb = lb2
    assert not check_hazards(pre_loop + lb + lb), check_hazards(pre_loop + lb + lb)
    lastb = pad_hazards(lastb, prefix=lb)
    o2 = pad_hazards(o2, prefix=lastb)
    rp = pad_hazards(rp)
    return pre_loop + [directive(".p2align 6"), label("L_loop")] + lb + lastb + o2 + rp

def loader_wave():
    o = []; A = o.append
    vKV, vW, vO, vSTAMP = 1, 2, 3, 10
    A(label("L_loader"))
    A(salu("s_setprio 3"))
    A(valu("v_and_b32 v4, 63, v0", wr=[4], rd=[0]))
    A(valu("v_and_b32 v5, 31, v4", wr=[5], rd=[4]))
    A(valu("v_lshlrev_b32 v5, 4, v5", wr=[5], rd=[5]))
    A(valu("v_lshrrev_b32 v6, 5, v4", wr=[6], rd=[4]))
    A(valu("v_lshl_add_u32 %s, v6, 15, v5" % R(vW), wr=[vW], rd=[5, 6]))
    A(valu("v_lshl_add_u32 %s, v6, 13, v5" % R(vKV), wr=[vKV], rd=[5, 6]))
    A(valu("v_and_b32 v5, 7, v4", wr=[5], rd=[4]))
    A(valu("v_lshlrev_b32 v5, 4, v5", wr=[5], rd=[5]))
    A(valu("v_lshrrev_b32 v6, 3, v4", wr=[6], rd=[4]))
    A(valu("v_mul_u32_u24 v6, 14336, v6", wr=[6], rd=[6]))
    A(valu("v_add_u32 %s, v5, v6" % R(vO), wr=[vO], rd=[5, 6]))
    issued = []
    nstamp = [0]
    def stamp():
        if not PROF: return
        A(salu("s_memtime s[80:81]")); A(wait(lgkm=0))
        A(valu("v_writelane_b32 %s, s80, %d" % (R(vSTAMP), nstamp[0]), wr=[vSTAMP])); nstamp[0] += 1
    def issue(n):
        nonlocal issued
        if len(issued) > 47:
            A(wait(vm=47)); issued = issued[-47:]
        typ, idx = halves[n]
        if typ == "W": srd, vo, base = sW, vW, idx * 32 * 8192
        elif typ == "K": srd, vo, base = sKd, vKV, idx * 16384
        elif typ == "V": srd, vo, base = sVd, vKV, idx * 16384
        else: srd, vo, base = sO, vO, (idx & 1) * 128 * 896 + (idx >> 1) * 128
        A(salu("s_mov_b32 m0, %d" % slot_addr(n)))
        A(salu("s_mov_b32 %s, %d" % (S(sOFF), base)))
        for i in range(16):
            if i:
                A(salu("s_addk_i32 m0, %d" % ISTR))
                if typ == "W": step = 8192 if i & 3 else 5 * 8192
                elif typ == "O": step = 896
                else: step = 512
                if step < 32768: A(salu("s_addk_i32 %s, %d" % (S(sOFF), step)))
                else: A(salu("s_add_u32 %s, %s, %d" % (S(sOFF), S(sOFF), step)))
            A(vmem("buffer_load_dwordx4 %s, %s, %s offen lds" % (R(vo), S(srd, 4), S(sOFF)), rd=[vo]))
            issued.append(n)
    def landed(n):
        nonlocal issued
        idx = [i for i, k in enumerate(issued) if k <= n]
        if idx:
            cnt = len(issued) - 1 - max(idx)
            A(wait(vm=cnt)); issued = issued[max(idx) + 1:]
    if PROF: A(v_mov(vSTAMP, "0"))
    stamp()
    nxt = 0
    for k, iv in enumerate(intervals):
        consumed = sum(len(x) for x in intervals[:max(k - 1, 0)])
        limit = min(60, consumed + NSLOT)
        needn = iv[-1] + 1 if k + 1 < len(intervals) else iv[-1]
        if k == 0: limit = min(limit, 4)
        while nxt < limit:
            issue(nxt); nxt += 1
        assert nxt > needn or needn >= 60
        landed(min(needn, 59))
        A(barrier())
        stamp()
    if PROF:
        A(barrier()); stamp()
        A(salu("s_memrealtime s[80:81]")); A(wait(lgkm=0))
        A(salu("s_sub_u32 s80, s80, s82"))
        A(valu("v_writelane_b32 %s, s80, 62" % R(vSTAMP), wr=[vSTAMP]))
        A(salu("s_getreg_b32 s80, hwreg(HW_REG_XCC_ID)"))
        A(valu("v_writelane_b32 %s, s80, 61" % R(vSTAMP), wr=[vSTAMP]))
        A(valu("v_writelane_b32 %s, s84, 63" % R(vSTAMP), wr=[vSTAMP]))
        A(valu("v_writelane_b32 %s, s82, 60" % R(vSTAMP), wr=[vSTAMP]))
        A(valu("v_lshlrev_b32 v4, 2, v4", wr=[4], rd=[4]))
        A(salu("s_lshl_b32 s80, s2, 8"))
        A(vmem("buffer_store_dword %s, v4, s[76:79], s80 offen" % R(vSTAMP), rd=[vSTAMP, 4], store=True))
        A(wait(vm=0))
    A(salu("s_endpgm"))
    return pad_hazards(o)

def srd(d, lo, hi, off_s, size):
    o = [salu("s_add_u32 %s, %s, %s" % (S(d), S(lo), S(off_s))), salu("s_addc_u32 %s, %s, 0" % (S(d + 1), S(hi)))]
    o.append(salu("s_mov_b32 %s, %s" % (S(d + 2), size if isinstance(size, str) else "0x%x" % size)))
    o.append(salu("s_mov_b32 %s, 0x20000" % S(d + 3)))
    return o

def k1():
    o = []; A = o.append
    A(salu("s_cmp_ge_u32 s2, 256")); A(salu("s_cbranch_scc1 L_exit1"))
    if PROF:
        A(salu("s_memrealtime s[82:83]")); A(salu("s_memtime s[84:85]"))
    A(salu("s_load_dwordx16 s[4:19], s[0:1], 0"))
    A(salu("s_load_dwordx4 s[20:23], s[0:1], 64"))
    A(salu("s_load_dwordx2 s[24:25], s[0:1], 96"))
    A(valu("v_lshrrev_b32 v1, 6, v0", wr=[1], rd=[0]))
    A(salu("s_and_b32 s26, s2, 3")); A(salu("s_lshl_b32 s26, s26, 2")); A(salu("s_lshr_b32 s27, s2, 6")); A(salu("s_add_u32 s26, s26, s27"))
    A(valu("v_readfirstlane_b32 %s, v1" % S(sWID), rd=[1], swr=[sWID]))
    A(salu("s_lshr_b32 s27, s2, 3")); A(salu("s_and_b32 s27, s27, 7"))
    A(salu("s_lshr_b32 s28, s2, 2")); A(salu("s_and_b32 s28, s28, 1"))
    A(salu("s_lshl_b32 s29, s27, 4")); A(salu("s_add_u32 s29, s29, s26"))
    A(salu("s_mul_i32 s30, s27, 200704"))
    A(salu("s_lshl_b32 s31, s29, 18"))
    A(salu("s_lshl_b32 s32, s26, 9"))
    A(salu("s_mul_i32 s33, s26, 229376"))
    A(salu("s_lshl_b32 s34, s28, 7")); A(salu("s_add_u32 s34, s34, s29")); A(salu("s_mul_i32 s34, s34, %d" % PART))
    A(salu("s_sub_u32 s35, %d, s32" % (448 * 8192)))
    A(salu("s_cmp_eq_u32 s28, 0"))
    A(wait(lgkm=0))
    for i in range(5): A(salu("s_cselect_b64 %s, %s, %s" % (S(4 + 2 * i, 2), S(4 + 2 * i, 2), S(14 + 2 * i, 2))))
    o += srd(sW, 10, 11, 32, "s35")
    o += srd(sX, 4, 5, 30, 200704)
    o += srd(sKd, 6, 7, 31, 262144)
    o += srd(sVd, 8, 9, 31, 262144)
    o += srd(sO, 12, 13, 33, 229376)
    o += srd(sP, 24, 25, 34, PART)
    if PROF:
        A(salu("s_mov_b32 s80, 0x%x" % PROF_OFF)); o += srd(76, 24, 25, 80, 65536)
    A(salu("s_cmp_eq_u32 %s, 7" % S(sWID))); A(salu("s_cbranch_scc1 L_loader"))
    o = pad_hazards(o)
    o += compute_wave() + loader_wave()
    o += [label("L_exit1"), salu("s_endpgm")]
    return o

def k2():
    o = []; A = o.append
    A(salu("s_cmp_ge_u32 s2, 784")); A(salu("s_cbranch_scc1 L_exit2"))
    A(salu("s_load_dwordx2 s[4:5], s[0:1], 80"))
    A(salu("s_load_dwordx2 s[6:7], s[0:1], 96"))
    A(valu("v_lshrrev_b32 v1, 6, v0", wr=[1], rd=[0]))
    A(valu("v_and_b32 v2, 63, v0", wr=[2], rd=[0]))
    A(valu("v_readfirstlane_b32 s3, v1", rd=[1], swr=[3]))
    A(valu("v_lshlrev_b32 v3, 4, v2", wr=[3], rd=[2]))
    A(salu("s_mul_i32 s8, s2, 1338")); A(salu("s_lshr_b32 s8, s8, 16"))
    A(salu("s_mul_i32 s9, s8, 49")); A(salu("s_sub_u32 s9, s2, s9")); A(salu("s_lshl_b32 s9, s9, 2")); A(salu("s_add_u32 s9, s9, s3"))
    A(salu("s_mul_i32 s10, s8, %d" % (16 * PART)))
    A(salu("s_lshl_b32 s11, s9, 10"))
    A(wait(lgkm=0))
    o += srd(12, 6, 7, 10, 16 * PART)
    for h in range(16):
        A(vmem("buffer_load_dwordx4 %s, v3, s[12:15], s11 offen" % R(8 + 4 * h, 4), wr=rr(8 + 4 * h, 4), rd=[3]))
        if h < 15: A(salu("s_add_u32 s11, s11, %d" % PART))
    A(salu("s_mul_i32 s16, s9, 4682")); A(salu("s_lshr_b32 s16, s16, 16"))
    A(salu("s_mul_i32 s17, s16, 14")); A(salu("s_sub_u32 s17, s9, s17"))
    A(salu("s_and_b32 s18, s8, 7")); A(salu("s_lshr_b32 s19, s8, 3"))
    A(salu("s_mul_i32 s18, s18, 224")); A(salu("s_lshl_b32 s16, s16, 4")); A(salu("s_add_u32 s18, s18, s16"))
    A(salu("s_mul_i32 s18, s18, 1792"))
    A(salu("s_mul_i32 s19, s19, 896")); A(salu("s_lshl_b32 s17, s17, 6")); A(salu("s_add_u32 s18, s18, s19")); A(salu("s_add_u32 s18, s18, s17"))
    A(salu("s_mov_b32 s20, s4")); A(salu("s_mov_b32 s21, s5")); A(salu("s_mov_b32 s22, %d" % (8 * 224 * 896 * 2))); A(salu("s_mov_b32 s23, 0x20000"))
    A(valu("v_and_b32 v4, 15, v2", wr=[4], rd=[2]))
    A(valu("v_mul_u32_u24 v4, 1792, v4", wr=[4], rd=[4]))
    A(valu("v_lshrrev_b32 v5, 4, v2", wr=[5], rd=[2]))
    A(valu("v_lshlrev_b32 v5, 1, v5", wr=[5], rd=[5]))
    A(valu("v_mov_b32 v6, 0xd8", wr=[6]))
    A(valu("v_lshrrev_b32 v5, v5, v6", wr=[5], rd=[5, 6]))
    A(valu("v_and_b32 v5, 3, v5", wr=[5], rd=[5]))
    A(valu("v_lshl_add_u32 v4, v5, 4, v4", wr=[4], rd=[4, 5]))
    acc = 72; tmp = 80
    for h in range(16):
        A(wait(vm=15 - h))
        for r in range(4):
            src = 8 + 4 * h + r
            if h == 0:
                A(valu("v_lshlrev_b32 %s, 16, %s" % (R(acc + 2 * r), R(src)), wr=[acc + 2 * r], rd=[src]))
                A(valu("v_and_b32 %s, 0xffff0000, %s" % (R(acc + 2 * r + 1), R(src)), wr=[acc + 2 * r + 1], rd=[src]))
            else:
                A(valu("v_lshlrev_b32 %s, 16, %s" % (R(tmp), R(src)), wr=[tmp], rd=[src]))
                A(valu("v_and_b32 %s, 0xffff0000, %s" % (R(src), R(src)), wr=[src], rd=[src]))
                A(v_add(acc + 2 * r, acc + 2 * r, tmp))
                A(v_add(acc + 2 * r + 1, acc + 2 * r + 1, src))
    for r in range(4): A(v_cvtpk(8 + r, acc + 2 * r, acc + 2 * r + 1))
    A(v_swap16(8, 10)); A(v_swap16(9, 11))
    A(vmem("buffer_store_dwordx4 v[8:11], v4, s[20:23], s18 offen", rd=[8, 9, 10, 11, 4], store=True))
    A(label("L_exit2")); A(salu("s_endpgm"))
    return pad_hazards(o)

def kd(name, vg, sg):
    return """.amdhsa_kernel %s
  .amdhsa_next_free_vgpr %d
  .amdhsa_next_free_sgpr %d
  .amdhsa_accum_offset %d
  .amdhsa_group_segment_fixed_size 0
  .amdhsa_kernarg_size 104
  .amdhsa_user_sgpr_count 2
  .amdhsa_user_sgpr_kernarg_segment_ptr 1
  .amdhsa_system_sgpr_workgroup_id_x 1
.end_amdhsa_kernel""" % (name, vg, sg, (vg + 3) // 4 * 4)

K1 = NAME + "_kernel"; K2 = "reduce_heads_kernel"
src = []
src.append("; @launch kernel=%s grid=(256,1,1) block=(512,1,1) lds=%d" % (K1, LDS_BYTES))
src.append("; @launch kernel=%s grid=(784,1,1) block=(256,1,1) lds=0" % K2)
src.append('.amdgcn_target "amdgcn-amd-amdhsa--gfx950"\n.text')
for nm, body in ((K1, k1()), (K2, k2())):
    src.append(".globl %s\n.p2align 8\n.type %s,@function\n%s:" % (nm, nm, nm))
    src.append(text(body))
src.append('.section .rodata,"a"\n.p2align 6')
src.append(kd(K1, 256, 96))
src.append(".p2align 6")
src.append(kd(K2, 88, 32))
open(OUT, "w").write("\n".join(src) + "\n")
print("wrote", OUT)
```

```python
import sys, math
from asmlib import *

NAME = "concat_heads__mha_block_cached__gqa_block_cached__near_ridge"
PROF = "--prof" in sys.argv
def opt(name, default):
    for a in sys.argv:
        if a.startswith("--%s=" % name): return a.split("=", 1)[1]
    return default
KVFLAG = opt("kv", "").replace("_", " ")
STFLAG = opt("st", "").replace("_", " ")
K2LD = opt("k2ld", "").replace("_", " ")
ONLY = opt("only", "")
OUT = [a for a in sys.argv[1:] if not a.startswith("--")]
OUT = OUT[0] if OUT else "cdna_kernels/%s.s" % NAME

SLOT = 16896; NSLOT = 9; ISTR = 1056
LDS_BYTES = 163840
PART = 200704
PROF_OFF = 64 << 20
CSCALE = math.log2(math.e) / 16.0
THR = 65536.0
import struct
def f2u(x): return struct.unpack("<I", struct.pack("<f", x))[0]

def ACC(qt, t): return 8 * t + 4 * qt
def OACC(s, qt, tau): return 32 * s + 8 * tau + 4 * qt
def QF(qt, u): return 128 + 32 * qt + 4 * u
def SR(qt, z): return 192 + 8 * qt + 4 * z
def PR(qt): return 208 + 4 * qt
def NM(qt): return 216 + 4 * qt
FB0 = 224
BUFSEQ = [0,1,2,3,4,5, 0,1,2,3,4, 0,1,2,3,4]; DEPTH = 5
vK, vT = 248, 249
def L(qt): return 250 + qt
def T(qt): return 252 + qt
TMP0, TMP1 = 254, 255
vT1, vXO = 252, 253
vST = 248
def XF(qt, s):
    if s < 8: return 128 + 8 * s + 4 * qt
    if s < 10: return 128 + 8 * (s - 8) + 4 * qt
    return 192 + 8 * (s - 10) + 4 * qt

sWID = 3
sX, sW, sKd, sVd, sO, sP = 36, 40, 44, 48, 52, 56
sC, sTHR, sKpos, sVpos, sDK, sDV, sPOS, sNEG, sCNT, sRET, sT0, sT1 = 60, 62, 63, 64, 65, 66, 67, 68, 69, 70, 71, 72
sOFF = 73

halves = [("W", i) for i in range(14)] + [("K", 0)]
for i in range(1, 16): halves += [("K", i), ("V", i - 1)]
halves += [("V", 15)] + [("O", i) for i in range(14)]
assert len(halves) == 60
intervals = [[2*i, 2*i+1] for i in range(7)] + [[14]] + [[13 + 2*i, 14 + 2*i] for i in range(1, 16)] + [[45]] + [[46 + 2*i, 47 + 2*i] for i in range(7)]
def slot_addr(n): return (n % NSLOT) * SLOT

class Half:
    def __init__(self, reads, mf, pre): self.reads = reads; self.mf = mf; self.pre = pre

def vadd_lit(reg, delta):
    return valu("v_add_u32 %s, 0x%x, %s" % (R(reg), delta & 0xffffffff, R(reg)), wr=[reg], rd=[reg])
def vadd_s(reg, s):
    return valu("v_add_u32 %s, %s, %s" % (R(reg), S(s), R(reg)), wr=[reg], rd=[reg])

def half_W(s, pre):
    def reads(f, b):
        a = vT1 if f & 1 else vT
        return [dsrtr(b, a, 32 * f), dsrtr(b + 2, a, 32 * f + 512)]
    def mf(f, b):
        return [mfma16(ACC(qt, f), b, XF(qt, s), None if s == 0 else ACC(qt, f)) for qt in range(2)]
    return Half(reads, mf, pre)
def half_K(pre, first=False):
    def reads(f, b):
        u, z = f >> 1, f & 1
        return [dsr128(b, vK, 512 * z + 64 * u)]
    def mf(f, b):
        u, z = f >> 1, f & 1
        return [mfma16(SR(qt, z), b, QF(qt, u), (None if first else NM(qt)) if u == 0 else SR(qt, z)) for qt in range(2)]
    return Half(reads, mf, pre)
def half_V(pre):
    def reads(f, b): return [dsrtr(b, vT, 32 * f), dsrtr(b + 2, vT, 32 * f + 512)]
    def mf(f, b): return [mfma16(ACC(qt, f), b, PR(qt), ACC(qt, f)) for qt in range(2)]
    return Half(reads, mf, pre)
def half_O(hh, aset, pre):
    def reads(f, b):
        ks, tau = f >> 2, f & 3
        return [dsrtr(b, vT, 256 * ks + 32 * tau), dsrtr(b + 2, vT, 256 * ks + 128 + 32 * tau)]
    def mf(f, b):
        ks, tau = f >> 2, f & 3
        u = 4 * hh + ks
        return [mfma16(OACC(aset, qt, tau), b, QF(qt, u), None if u == 0 else OACC(aset, qt, tau)) for qt in range(2)]
    return Half(reads, mf, pre)

class Stream:
    def __init__(self):
        self.o = []
        self.q = []
    def buf(self, f): return FB0 + 4 * BUFSEQ[f % 16]
    def issue(self, h, f, key):
        if f == 0: self.o += h.pre
        for r in h.reads(f, self.buf(f)):
            self.o.append(r); self.q.append(key)
    def preload(self, h):
        for f in range(DEPTH): self.issue(h, f, (id(h), f))
    def rekey(self, hold, hnew):
        self.q = [(id(hnew), k[1]) if k[0] == id(hold) else k for k in self.q]
    def waitfor(self, key):
        if key in self.q:
            last = max(i for i, k in enumerate(self.q) if k == key)
            n = len(self.q) - 1 - last
            self.o.append(wait(lgkm=n))
            self.q = self.q[last + 1:]
    def run(self, h, nxt, fill=None, head=None):
        fill = fill or {}; head = head or {}
        for f in range(16):
            ms = h.mf(f, self.buf(f))
            for k, m in enumerate(ms):
                sl = 2 * f + k
                self.o += head.get(sl, [])
                if k == 0: self.waitfor((id(h), f))
                self.o.append(m)
                if k == len(ms) - 1:
                    g = f + DEPTH
                    if g < 16: self.issue(h, g, (id(h), g))
                    elif nxt is not None: self.issue(nxt, g - 16, (id(nxt), g - 16))
                self.o += fill.get(sl, [])

def spread(ops, lo, hi, d=None):
    d = d if d is not None else {}
    n = hi - lo + 1
    for i, op in enumerate(ops):
        d.setdefault(lo + (i * n) // len(ops), []).append(op)
    return d

def sm_ops():
    ops = []
    def s(qt, j): return SR(qt, 0) + j
    for qt in range(2): ops.append(v_exp(s(qt, 0), s(qt, 0)))
    for qt in range(2): ops.append(v_exp(s(qt, 1), s(qt, 1)))
    for j in range(2, 9):
        if j < 8:
            for qt in range(2): ops.append(v_exp(s(qt, j), s(qt, j)))
        for qt in range(2):
            if j == 2: ops.append(v_add(T(qt), s(qt, 0), s(qt, 1)))
            else: ops.append(v_add(T(qt), T(qt), s(qt, j - 1)))
    return ops
def check_ops():
    return [v_max(TMP0, T(0), T(1)),
            valu("v_cmp_nge_f32 vcc, %s, %s" % (S(sTHR), R(TMP0)), rd=[TMP0], swr=["vcc"])]
def pcvt_head():
    d = {}
    for z in range(2):
        for qt in range(2):
            d[2 * z + qt] = [v_cvtpk(PR(qt) + 2 * z, SR(qt, z), SR(qt, z) + 1), v_cvtpk(PR(qt) + 2 * z + 1, SR(qt, z) + 2, SR(qt, z) + 3)]
    return d
def pcvt_all():
    o = []
    for v in pcvt_head().values(): o += v
    return o
def ladd(): return [v_add(L(qt), L(qt), T(qt)) for qt in range(2)]

def rowreduce(reg, tmp, op):
    return [v_mov(tmp, R(reg), [reg]), v_swap16(reg, tmp), op(reg, reg, tmp),
            v_mov(tmp, R(reg), [reg]), v_swap32(reg, tmp), op(reg, reg, tmp)]

def compute_wave():
    st = Stream(); o = st.o
    A = o.append
    o += [label("L_compute")]
    A(valu("v_and_b32 v1, 63, v0", wr=[1], rd=[0]))
    A(valu("v_and_b32 v2, 15, v1", wr=[2], rd=[1]))
    A(valu("v_lshrrev_b32 v3, 4, v1", wr=[3], rd=[1]))
    A(salu("s_lshl_b32 %s, %s, 5" % (S(sT0), S(sWID))))
    A(valu("v_add_u32 v4, %s, v2" % S(sT0), wr=[4], rd=[2]))
    A(valu("v_mul_u32_u24 v4, 896, v4", wr=[4], rd=[4]))
    A(valu("v_lshl_add_u32 %s, v3, 4, v4" % R(vXO), wr=[vXO], rd=[3, 4]))
    A(salu("s_movk_i32 %s, 14336" % S(sT1)))
    def xload(qt, s):
        return vmem("buffer_load_dwordx4 %s, %s, %s, %s offen offset:%d" % (R(XF(qt, s), 4), R(vXO), S(sX, 4), S(sT1) if qt else "0", 64 * s),
                    wr=rr(XF(qt, s), 4), rd=[vXO])
    xorder = [s for s in range(14) if s not in (8, 9)]
    for s in xorder:
        for qt in range(2): A(xload(qt, s))
    A(valu("v_lshrrev_b32 v5, 2, v1", wr=[5], rd=[1]))
    A(valu("v_mul_u32_u24 v5, %d, v5" % ISTR, wr=[5], rd=[5]))
    A(valu("v_and_b32 v6, 3, v1", wr=[6], rd=[1]))
    A(valu("v_lshl_add_u32 %s, v6, 3, v5" % R(vT), wr=[vT], rd=[5, 6]))
    A(valu("v_xor_b32 %s, 16, %s" % (R(vT1), R(vT)), wr=[vT1], rd=[vT]))
    A(valu("v_lshlrev_b32 v6, 1, v3", wr=[6], rd=[3]))
    A(valu("v_mov_b32 v7, 0x9c", wr=[7]))
    A(valu("v_lshrrev_b32 v6, v6, v7", wr=[6], rd=[6, 7]))
    A(valu("v_and_b32 v6, 3, v6", wr=[6], rd=[6]))
    A(valu("v_mul_u32_u24 v5, %d, v2" % ISTR, wr=[5], rd=[2]))
    A(valu("v_lshl_add_u32 %s, v6, 4, v5" % R(vK), wr=[vK], rd=[5, 6]))
    A(vadd_lit(vK, slot_addr(14)))
    A(salu("s_mov_b32 %s, 0x%x" % (S(sC), f2u(CSCALE))))
    A(salu("s_mov_b32 %s, 0x%x" % (S(sC + 1), f2u(CSCALE))))
    A(salu("s_mov_b32 %s, 0x%x" % (S(sTHR), f2u(THR))))
    A(salu("s_mov_b32 %s, %d" % (S(sPOS), 2 * SLOT)))
    A(salu("s_mov_b32 %s, %d" % (S(sNEG), -7 * SLOT)))
    def wpre(n):
        if n == 0: return []
        d = slot_addr(n) - slot_addr(n - 1)
        return [vadd_lit(vT, d), vadd_lit(vT1, d)]
    HW = [half_W(s, wpre(s)) for s in range(14)]
    HK0 = half_K([], first=True)
    A(barrier())
    st.preload(HW[0])
    xq = [(qt, s) for s in xorder for qt in range(2)]
    def xwait(s):
        nonlocal xq
        idx = [i for i, k in enumerate(xq) if k[1] == s]
        if not idx: return []
        last = max(idx); n = len(xq) - 1 - last; xq = xq[last + 1:]
        return [wait(vm=n)]
    def qconv(u):
        ops = []
        for qt in range(2):
            for e in range(2):
                a = ACC(qt, 2 * u + e)
                for h in range(2):
                    ops.append(valu("v_pk_mul_f32 %s, %s, %s" % (R(a + 2 * h, 2), R(a + 2 * h, 2), S(sC, 2)), wr=rr(a + 2 * h, 2), rd=rr(a + 2 * h, 2)))
        for qt in range(2):
            for e in range(2):
                a = ACC(qt, 2 * u + e)
                for h in range(2): ops.append(v_cvtpk(QF(qt, u) + 2 * e + h, a + 2 * h, a + 2 * h + 1))
        for qt in range(2):
            for h in range(2): ops.append(v_swap16(QF(qt, u) + h, QF(qt, u) + 2 + h))
        return ops
    for s in range(14):
        head = {0: xwait(s)}
        fill = {}
        if s == 2:
            late = [xload(qt, s2) for s2 in (8, 9) for qt in range(2)]
            fill = spread(late, 1, 8); xq += [(qt, s2) for s2 in (8, 9) for qt in range(2)]
        if s == 13:
            for u in range(6): spread(qconv(u), 4 * u + 7, 4 * u + 10, fill)
        st.run(HW[s], HW[s + 1] if s < 13 else HK0, fill, head)
        if s & 1: A(barrier())
    HKn = half_K([vadd_lit(vK, slot_addr(15) - slot_addr(14))])
    fill = {}
    spread(qconv(6), 0, 5, fill); spread(qconv(7), 6, 11, fill)
    zero = [valu("v_mov_b64 %s, 0" % R(2 * i, 2), wr=rr(2 * i, 2)) for i in range(64)]
    spread(zero, 12, 31, fill)
    st.run(HK0, HKn, fill)
    A(vadd_lit(vT, slot_addr(16) - slot_addr(13) - 2 * SLOT))
    A(salu("s_mov_b32 %s, %d" % (S(sKpos), slot_addr(15))))
    A(salu("s_mov_b32 %s, %d" % (S(sVpos), slot_addr(16))))
    A(salu("s_mov_b32 %s, %d" % (S(sDV), 2 * SLOT)))
    A(salu("s_mov_b32 %s, 14" % S(sCNT)))
    A(salu("s_mov_b32 %s, 0" % S(sRET)))
    for qt in range(2):
        s0 = SR(qt, 0); m = NM(qt)
        o += [v_max3(m, s0, s0 + 1, s0 + 2), v_max3(m, m, s0 + 3, s0 + 4), v_max3(m, m, s0 + 5, s0 + 6), v_max(m, m, s0 + 7)]
    r0 = rowreduce(NM(0), TMP0, v_max); r1 = rowreduce(NM(1), TMP1, v_max)
    for a, b in zip(r0, r1): o += [a, b]
    for qt in range(2):
        for j in range(8): A(v_sub(SR(qt, 0) + j, SR(qt, 0) + j, NM(qt)))
    for qt in range(2):
        m = NM(qt)
        A(valu("v_sub_f32 %s, 0, %s" % (R(m), R(m)), wr=[m], rd=[m]))
        for j in range(1, 4): A(v_mov(m + j, R(m), [m]))
        A(v_mov(L(qt), "0"))
    o += sm_ops()
    pre_loop = list(o)
    def body(last):
        st.o = []; b = st.o
        HK = half_K([]); st.rekey(HKn, HK)
        HV = half_V([vadd_s(vT, sDV)])
        if not last:
            nxt = half_K([vadd_s(vK, sDK)])
        else:
            nxt = half_V([vadd_lit(vT, slot_addr(45) - slot_addr(44))])
        b.append(barrier())
        fill = spread(ladd(), 4, 5)
        if not last:
            sal = [salu("s_cmp_ge_u32 %s, %d" % (S(sKpos), 7 * SLOT)), salu("s_cselect_b32 %s, %s, %s" % (S(sDK), S(sNEG), S(sPOS))),
                   salu("s_add_u32 %s, %s, %s" % (S(sKpos), S(sKpos), S(sDK)))]
        else:
            sal = [salu("s_mov_b32 %s, 0" % S(sDK)), salu("s_mov_b32 %s, 1" % S(sRET))]
        spread(sal, 6, 8, fill)
        st.run(HK, HV, fill, pcvt_head())
        fill = spread(sm_ops() + check_ops(), 3, 29)
        if not last:
            sal = [salu("s_cmp_ge_u32 %s, %d" % (S(sVpos), 7 * SLOT)), salu("s_cselect_b32 %s, %s, %s" % (S(sDV), S(sNEG), S(sPOS))),
                   salu("s_add_u32 %s, %s, %s" % (S(sVpos), S(sVpos), S(sDV)))]
            spread(sal, 0, 2, fill)
            fill.setdefault(30, []).append(salu("s_sub_u32 %s, %s, 1" % (S(sCNT), S(sCNT))))
        st.run(HV, nxt, fill)
        b.append(salu("s_cbranch_vccnz L_rare"))
        b.append(label("L_ret1" if last else "L_ret0"))
        if not last:
            b.append(salu("s_cmp_lg_u32 %s, 0" % S(sCNT)))
            b.append(salu("s_cbranch_scc1 L_loop"))
            st.rekey(nxt, HKn)
        return b, nxt
    q_entry = list(st.q)
    lb, _ = body(False)
    assert st.q == q_entry, (st.q, q_entry)
    lastb, HV15 = body(True)
    st.o = []; o2 = st.o; A = o2.append
    def opre(n): return [vadd_lit(vT, slot_addr(n) - slot_addr(n - 1))]
    HO = [half_O(i & 1, (i >> 1) % 4, opre(46 + i)) for i in range(14)]
    A(barrier())
    o2 += pcvt_all() + ladd()
    def oconv(u):
        ops = []
        for qt in range(2):
            for e in range(2):
                a = ACC(qt, 2 * u + e)
                for h in range(2): ops.append(v_cvtpk(QF(qt, u) + 2 * e + h, a + 2 * h, a + 2 * h + 1))
        return ops
    fill = {}
    r0 = rowreduce(L(0), TMP0, v_add); r1 = rowreduce(L(1), TMP1, v_add)
    lops = [x for ab in zip(r0, r1) for x in ab]
    lops += [trans("v_rcp_f32 %s, %s" % (R(L(qt)), R(L(qt))), wr=[L(qt)], rd=[L(qt)]) for qt in range(2)]
    lops += [valu("v_mbcnt_lo_u32_b32 %s, -1, 0" % R(vST), wr=[vST]), valu("v_mbcnt_hi_u32_b32 %s, -1, %s" % (R(vST), R(vST)), wr=[vST], rd=[vST]),
             salu("s_mul_i32 %s, %s, 28672" % (S(sT0), S(sWID))),
             valu("v_lshlrev_b32 %s, 4, %s" % (R(vST), R(vST)), wr=[vST], rd=[vST]), vadd_s(vST, sT0)]
    spread(lops, 0, 6, fill)
    for u in range(6): spread(oconv(u), 4 * u + 7, 4 * u + 10, fill)
    st.run(HV15, HO[0], fill)
    def epi(j):
        ops = []; aset = j % 4
        for qt in range(2):
            for hf in range(2):
                dst = SR(qt, hf)
                for e in range(2):
                    a = OACC(aset, qt, 2 * hf + e)
                    for r in range(4): ops.append(v_mul(a + r, a + r, L(qt)))
                    for h in range(2): ops.append(v_cvtpk(dst + 2 * e + h, a + 2 * h, a + 2 * h + 1))
                if hf == 0: ops.append(salu("s_mov_b32 %s, %d" % (S(sOFF), qt * 14336 + j * 2048)))
                ops.append(vmem("buffer_store_dwordx4 %s, %s, %s, %s offen offset:%d%s" % (R(dst, 4), R(vST), S(sP, 4), S(sOFF), 1024 * hf, STFLAG),
                                rd=list(rr(dst, 4)) + [vST], store=True))
        return ops
    for i in range(14):
        j = i >> 1
        if not (i & 1): A(barrier())
        fill = {}
        if i == 0:
            spread(oconv(6) + oconv(7), 2, 12, fill)
        elif j >= 1:
            e = epi(j - 1); n = len(e) // 2
            if not (i & 1): spread(e[:n], 4, 31, fill)
            else: spread(e[n:], 0, 31, fill)
        st.run(HO[i], HO[i + 1] if i < 13 else None, fill)
    o2 += epi(6)
    if PROF:
        A(wait(vm=0)); A(barrier())
    A(salu("s_endpgm"))
    rp = [label("L_rare"), wait(lgkm=0), nop(15)]
    rp.append(valu("v_subrev_u32 %s, %s, %s" % (R(TMP0), S(sDK), R(vK)), wr=[TMP0], rd=[vK]))
    for u in range(8):
        for z in range(2): rp.append(dsr128(PR(z), TMP0, 512 * z + 64 * u))
        rp.append(wait(lgkm=0))
        for z in range(2):
            for qt in range(2): rp.append(mfma16(SR(qt, z), PR(z), QF(qt, u), NM(qt) if u == 0 else SR(qt, z)))
        rp.append(nop(7))
    rp.append(nop(15))
    for qt in range(2):
        s0 = SR(qt, 0); d = T(qt)
        rp += [v_max3(d, s0, s0 + 1, s0 + 2), v_max3(d, d, s0 + 3, s0 + 4), v_max3(d, d, s0 + 5, s0 + 6), v_max(d, d, s0 + 7)]
        rp += rowreduce(d, TMP0, v_max)
        rp.append(valu("v_max_f32 %s, 0, %s" % (R(d), R(d)), wr=[d], rd=[d]))
        for j in range(8): rp.append(v_sub(s0 + j, s0 + j, d))
        for j in range(4): rp.append(v_sub(NM(qt) + j, NM(qt) + j, d))
        rp.append(trans("v_exp_f32 %s, -%s" % (R(TMP1), R(d)), wr=[TMP1], rd=[d]))
        rp.append(v_mul(L(qt), L(qt), TMP1))
        for t in range(16):
            for r in range(4): rp.append(v_mul(ACC(qt, t) + r, ACC(qt, t) + r, TMP1))
    rp += sm_ops()
    rp += [nop(7), salu("s_cmp_eq_u32 %s, 0" % S(sRET)), salu("s_cbranch_scc1 L_ret0"), salu("s_branch L_ret1")]
    pre_loop = pad_hazards(pre_loop)
    lb1 = pad_hazards(lb, prefix=pre_loop)
    lb2 = pad_hazards(lb1, prefix=lb1)
    assert len(lb2) == len(lb1) or True
    lb = lb2
    assert not check_hazards(pre_loop + lb + lb), check_hazards(pre_loop + lb + lb)
    lastb = pad_hazards(lastb, prefix=lb)
    o2 = pad_hazards(o2, prefix=lastb)
    rp = pad_hazards(rp)
    return pre_loop + [directive(".p2align 6"), label("L_loop")] + lb + lastb + o2 + rp

def loader_wave():
    o = []; A = o.append
    vKV, vW, vO, vSTAMP = 1, 2, 3, 10
    A(label("L_loader"))
    A(salu("s_setprio 3"))
    A(valu("v_and_b32 v4, 63, v0", wr=[4], rd=[0]))
    A(valu("v_and_b32 v5, 31, v4", wr=[5], rd=[4]))
    A(valu("v_lshlrev_b32 v5, 4, v5", wr=[5], rd=[5]))
    A(valu("v_lshrrev_b32 v6, 5, v4", wr=[6], rd=[4]))
    A(valu("v_lshl_add_u32 %s, v6, 15, v5" % R(vW), wr=[vW], rd=[5, 6]))
    A(valu("v_lshl_add_u32 %s, v6, 13, v5" % R(vKV), wr=[vKV], rd=[5, 6]))
    A(valu("v_and_b32 v5, 7, v4", wr=[5], rd=[4]))
    A(valu("v_lshlrev_b32 v5, 4, v5", wr=[5], rd=[5]))
    A(valu("v_lshrrev_b32 v6, 3, v4", wr=[6], rd=[4]))
    A(valu("v_mul_u32_u24 v6, 14336, v6", wr=[6], rd=[6]))
    A(valu("v_add_u32 %s, v5, v6" % R(vO), wr=[vO], rd=[5, 6]))
    issued = []
    nstamp = [0]
    def stamp():
        if not PROF: return
        A(salu("s_memtime s[80:81]")); A(wait(lgkm=0))
        A(valu("v_writelane_b32 %s, s80, %d" % (R(vSTAMP), nstamp[0]), wr=[vSTAMP])); nstamp[0] += 1
    def issue(n):
        nonlocal issued
        if len(issued) > 47:
            A(wait(vm=47)); issued = issued[-47:]
        typ, idx = halves[n]
        if typ == "W": srd, vo, base = sW, vW, idx * 32 * 8192
        elif typ == "K": srd, vo, base = sKd, vKV, idx * 16384
        elif typ == "V": srd, vo, base = sVd, vKV, idx * 16384
        else: srd, vo, base = sO, vO, (idx & 1) * 128 * 896 + (idx >> 1) * 128
        A(salu("s_mov_b32 m0, %d" % slot_addr(n)))
        A(salu("s_mov_b32 %s, %d" % (S(sOFF), base)))
        for i in range(16):
            if i:
                A(salu("s_addk_i32 m0, %d" % ISTR))
                if typ == "W": step = 8192 if i & 3 else 5 * 8192
                elif typ == "O": step = 896
                else: step = 512
                if step < 32768: A(salu("s_addk_i32 %s, %d" % (S(sOFF), step)))
                else: A(salu("s_add_u32 %s, %s, %d" % (S(sOFF), S(sOFF), step)))
            A(vmem("buffer_load_dwordx4 %s, %s, %s offen%s lds" % (R(vo), S(srd, 4), S(sOFF), KVFLAG if typ in "KV" else ""), rd=[vo]))
            issued.append(n)
    def landed(n):
        nonlocal issued
        idx = [i for i, k in enumerate(issued) if k <= n]
        if idx:
            cnt = len(issued) - 1 - max(idx)
            A(wait(vm=cnt)); issued = issued[max(idx) + 1:]
    if PROF: A(v_mov(vSTAMP, "0"))
    stamp()
    nxt = 0
    for k, iv in enumerate(intervals):
        consumed = sum(len(x) for x in intervals[:max(k - 1, 0)])
        limit = min(60, consumed + NSLOT)
        needn = iv[-1] + 1 if k + 1 < len(intervals) else iv[-1]
        if k == 0: limit = min(limit, 4)
        while nxt < limit:
            issue(nxt); nxt += 1
        assert nxt > needn or needn >= 60
        landed(min(needn, 59))
        A(barrier())
        stamp()
    if PROF:
        A(barrier()); stamp()
        A(salu("s_memrealtime s[80:81]")); A(wait(lgkm=0))
        A(salu("s_sub_u32 s80, s80, s82"))
        A(valu("v_writelane_b32 %s, s80, 62" % R(vSTAMP), wr=[vSTAMP]))
        A(salu("s_getreg_b32 s80, hwreg(HW_REG_XCC_ID)"))
        A(valu("v_writelane_b32 %s, s80, 61" % R(vSTAMP), wr=[vSTAMP]))
        A(valu("v_writelane_b32 %s, s84, 63" % R(vSTAMP), wr=[vSTAMP]))
        A(valu("v_writelane_b32 %s, s82, 60" % R(vSTAMP), wr=[vSTAMP]))
        A(valu("v_lshlrev_b32 v4, 2, v4", wr=[4], rd=[4]))
        A(salu("s_lshl_b32 s80, s2, 8"))
        A(vmem("buffer_store_dword %s, v4, s[76:79], s80 offen" % R(vSTAMP), rd=[vSTAMP, 4], store=True))
        A(wait(vm=0))
    A(salu("s_endpgm"))
    return pad_hazards(o)

def srd(d, lo, hi, off_s, size):
    o = [salu("s_add_u32 %s, %s, %s" % (S(d), S(lo), S(off_s))), salu("s_addc_u32 %s, %s, 0" % (S(d + 1), S(hi)))]
    o.append(salu("s_mov_b32 %s, %s" % (S(d + 2), size if isinstance(size, str) else "0x%x" % size)))
    o.append(salu("s_mov_b32 %s, 0x20000" % S(d + 3)))
    return o

def k1():
    o = []; A = o.append
    A(salu("s_cmp_ge_u32 s2, 256")); A(salu("s_cbranch_scc1 L_exit1"))
    if PROF:
        A(salu("s_memrealtime s[82:83]")); A(salu("s_memtime s[84:85]"))
    A(salu("s_load_dwordx16 s[4:19], s[0:1], 0"))
    A(salu("s_load_dwordx4 s[20:23], s[0:1], 64"))
    A(salu("s_load_dwordx2 s[24:25], s[0:1], 96"))
    A(valu("v_lshrrev_b32 v1, 6, v0", wr=[1], rd=[0]))
    A(salu("s_and_b32 s26, s2, 3")); A(salu("s_lshl_b32 s26, s26, 2")); A(salu("s_lshr_b32 s27, s2, 6")); A(salu("s_add_u32 s26, s26, s27"))
    A(valu("v_readfirstlane_b32 %s, v1" % S(sWID), rd=[1], swr=[sWID]))
    A(salu("s_lshr_b32 s27, s2, 3")); A(salu("s_and_b32 s27, s27, 7"))
    A(salu("s_lshr_b32 s28, s2, 2")); A(salu("s_and_b32 s28, s28, 1"))
    A(salu("s_lshl_b32 s29, s27, 4")); A(salu("s_add_u32 s29, s29, s26"))
    A(salu("s_mul_i32 s30, s27, 200704"))
    A(salu("s_lshl_b32 s31, s29, 18"))
    A(salu("s_lshl_b32 s32, s26, 9"))
    A(salu("s_mul_i32 s33, s26, 229376"))
    A(salu("s_lshl_b32 s34, s28, 7")); A(salu("s_add_u32 s34, s34, s29")); A(salu("s_mul_i32 s34, s34, %d" % PART))
    A(salu("s_sub_u32 s35, %d, s32" % (448 * 8192)))
    A(salu("s_cmp_eq_u32 s28, 0"))
    A(wait(lgkm=0))
    for i in range(5): A(salu("s_cselect_b64 %s, %s, %s" % (S(4 + 2 * i, 2), S(4 + 2 * i, 2), S(14 + 2 * i, 2))))
    o += srd(sW, 10, 11, 32, "s35")
    o += srd(sX, 4, 5, 30, 200704)
    o += srd(sKd, 6, 7, 31, 262144)
    o += srd(sVd, 8, 9, 31, 262144)
    o += srd(sO, 12, 13, 33, 229376)
    o += srd(sP, 24, 25, 34, PART)
    if PROF:
        A(salu("s_mov_b32 s80, 0x%x" % PROF_OFF)); o += srd(76, 24, 25, 80, 65536)
    A(salu("s_cmp_eq_u32 %s, 7" % S(sWID))); A(salu("s_cbranch_scc1 L_loader"))
    o = pad_hazards(o)
    o += compute_wave() + loader_wave()
    o += [label("L_exit1"), salu("s_endpgm")]
    return o

def k2():
    o = []; A = o.append
    A(salu("s_cmp_ge_u32 s2, 784")); A(salu("s_cbranch_scc1 L_exit2"))
    A(salu("s_load_dwordx2 s[4:5], s[0:1], 80"))
    A(salu("s_load_dwordx2 s[6:7], s[0:1], 96"))
    A(valu("v_lshrrev_b32 v1, 6, v0", wr=[1], rd=[0]))
    A(valu("v_and_b32 v2, 63, v0", wr=[2], rd=[0]))
    A(valu("v_readfirstlane_b32 s3, v1", rd=[1], swr=[3]))
    A(valu("v_lshlrev_b32 v3, 4, v2", wr=[3], rd=[2]))
    A(salu("s_mul_i32 s8, s2, 1338")); A(salu("s_lshr_b32 s8, s8, 16"))
    A(salu("s_mul_i32 s9, s8, 49")); A(salu("s_sub_u32 s9, s2, s9")); A(salu("s_lshl_b32 s9, s9, 2")); A(salu("s_add_u32 s9, s9, s3"))
    A(salu("s_mul_i32 s10, s8, %d" % (16 * PART)))
    A(salu("s_lshl_b32 s11, s9, 10"))
    A(wait(lgkm=0))
    o += srd(12, 6, 7, 10, 16 * PART)
    for h in range(16):
        A(vmem("buffer_load_dwordx4 %s, v3, s[12:15], s11 offen%s" % (R(8 + 4 * h, 4), K2LD), wr=rr(8 + 4 * h, 4), rd=[3]))
        if h < 15: A(salu("s_add_u32 s11, s11, %d" % PART))
    A(salu("s_mul_i32 s16, s9, 4682")); A(salu("s_lshr_b32 s16, s16, 16"))
    A(salu("s_mul_i32 s17, s16, 14")); A(salu("s_sub_u32 s17, s9, s17"))
    A(salu("s_and_b32 s18, s8, 7")); A(salu("s_lshr_b32 s19, s8, 3"))
    A(salu("s_mul_i32 s18, s18, 224")); A(salu("s_lshl_b32 s16, s16, 4")); A(salu("s_add_u32 s18, s18, s16"))
    A(salu("s_mul_i32 s18, s18, 1792"))
    A(salu("s_mul_i32 s19, s19, 896")); A(salu("s_lshl_b32 s17, s17, 6")); A(salu("s_add_u32 s18, s18, s19")); A(salu("s_add_u32 s18, s18, s17"))
    A(salu("s_mov_b32 s20, s4")); A(salu("s_mov_b32 s21, s5")); A(salu("s_mov_b32 s22, %d" % (8 * 224 * 896 * 2))); A(salu("s_mov_b32 s23, 0x20000"))
    A(valu("v_and_b32 v4, 15, v2", wr=[4], rd=[2]))
    A(valu("v_mul_u32_u24 v4, 1792, v4", wr=[4], rd=[4]))
    A(valu("v_lshrrev_b32 v5, 4, v2", wr=[5], rd=[2]))
    A(valu("v_lshlrev_b32 v5, 1, v5", wr=[5], rd=[5]))
    A(valu("v_mov_b32 v6, 0xd8", wr=[6]))
    A(valu("v_lshrrev_b32 v5, v5, v6", wr=[5], rd=[5, 6]))
    A(valu("v_and_b32 v5, 3, v5", wr=[5], rd=[5]))
    A(valu("v_lshl_add_u32 v4, v5, 4, v4", wr=[4], rd=[4, 5]))
    acc = 72; tmp = 80
    for h in range(16):
        A(wait(vm=15 - h))
        for r in range(4):
            src = 8 + 4 * h + r
            if h == 0:
                A(valu("v_lshlrev_b32 %s, 16, %s" % (R(acc + 2 * r), R(src)), wr=[acc + 2 * r], rd=[src]))
                A(valu("v_and_b32 %s, 0xffff0000, %s" % (R(acc + 2 * r + 1), R(src)), wr=[acc + 2 * r + 1], rd=[src]))
            else:
                A(valu("v_lshlrev_b32 %s, 16, %s" % (R(tmp), R(src)), wr=[tmp], rd=[src]))
                A(valu("v_and_b32 %s, 0xffff0000, %s" % (R(src), R(src)), wr=[src], rd=[src]))
                A(v_add(acc + 2 * r, acc + 2 * r, tmp))
                A(v_add(acc + 2 * r + 1, acc + 2 * r + 1, src))
    for r in range(4): A(v_cvtpk(8 + r, acc + 2 * r, acc + 2 * r + 1))
    A(v_swap16(8, 10)); A(v_swap16(9, 11))
    A(vmem("buffer_store_dwordx4 v[8:11], v4, s[20:23], s18 offen", rd=[8, 9, 10, 11, 4], store=True))
    A(label("L_exit2")); A(salu("s_endpgm"))
    return pad_hazards(o)

def kd(name, vg, sg):
    return """.amdhsa_kernel %s
  .amdhsa_next_free_vgpr %d
  .amdhsa_next_free_sgpr %d
  .amdhsa_accum_offset %d
  .amdhsa_group_segment_fixed_size 0
  .amdhsa_kernarg_size 104
  .amdhsa_user_sgpr_count 2
  .amdhsa_user_sgpr_kernarg_segment_ptr 1
  .amdhsa_system_sgpr_workgroup_id_x 1
.end_amdhsa_kernel""" % (name, vg, sg, (vg + 3) // 4 * 4)

K1 = NAME + "_kernel"; K2 = "reduce_heads_kernel"
src = []
if ONLY != "k2": src.append("; @launch kernel=%s grid=(256,1,1) block=(512,1,1) lds=%d" % (K1, LDS_BYTES))
if ONLY != "k1": src.append("; @launch kernel=%s grid=(784,1,1) block=(256,1,1) lds=0" % K2)
src.append('.amdgcn_target "amdgcn-amd-amdhsa--gfx950"\n.text')
for nm, body in ((K1, k1()), (K2, k2())):
    src.append(".globl %s\n.p2align 8\n.type %s,@function\n%s:" % (nm, nm, nm))
    src.append(text(body))
src.append('.section .rodata,"a"\n.p2align 6')
src.append(kd(K1, 256, 96))
src.append(".p2align 6")
src.append(kd(K2, 88, 32))
open(OUT, "w").write("\n".join(src) + "\n")
print("wrote", OUT)
```

```python
import sys, math, struct
from asmlib import *

NAME = "concat_heads__mha_block_cached__gqa_block_cached__near_ridge"
PROF = "--prof" in sys.argv
def opt(name, default):
    for a in sys.argv:
        if a.startswith("--%s=" % name): return a.split("=", 1)[1]
    return default
KVFLAG = opt("kv", "_nt").replace("_", " ")
STFLAG = opt("st", "").replace("_", " ")
K2LD = opt("k2ld", "").replace("_", " ")
ONLY = opt("only", "")
RAMP = int(opt("ramp", "3"))
NOBP = "--nobp" in sys.argv
NOX = "--nox" in sys.argv
EPI = opt("epi", "sparse")
NOSM = "--nosm" in sys.argv
NOST = "--nost" in sys.argv
NODMA = "--nodma" in sys.argv
PVSP = opt("pvsp", "pack")
XSLOT = int(opt("xslot", "2")); XSLOT0 = int(opt("xslot0", "8"))
T1MODE = opt("t1", "stag")
STGAP = int(opt("stgap", "1"))
ROT = opt("rot", "0")
PFR = int(opt("pfr", "0"))
PFT0 = int(opt("pft0", "4")); PFS = int(opt("pfs", "1")); PFSH = int(opt("pfsh", "7")); PFFLAG = opt("pfflag", "").replace("_", " ")
PFN = int(opt("pfn", "1"))
PFW = int(opt("pfw", "7"))
PFSKIP = int(opt("pfskip", "0"))
OUT = [a for a in sys.argv[1:] if not a.startswith("--")]
OUT = OUT[0] if OUT else "cdna_kernels/%s.s" % NAME

SLOT = 16896; NSLOT = 9; ISTR = 1056
LDS_BYTES = 163840
PART = 200704
PROF_OFF = 64 << 20
CSCALE = math.log2(math.e) / 16.0
THR = 65536.0
def f2u(x): return struct.unpack("<I", struct.pack("<f", x))[0]

def ACC(qt, t): return 8 * t + 4 * qt
def OACC(s, qt, tau): return 32 * s + 8 * tau + 4 * qt
def QF(qt, u): return 128 + 32 * qt + 4 * u
def SR(qt, z): return 192 + 8 * qt + 4 * z
def PR(qt): return 208 + 4 * qt
def NM(qt): return 216 + 4 * qt
FB0 = 224
BUFSEQ = [0,1,2,3,4,5, 0,1,2,3,4, 0,1,2,3,4]; DEPTH = 5
vK, vT = 248, 249
def L(qt): return 250 + qt
def T(qt): return 252 + qt
TMP0, TMP1 = 254, 255
vT1, vXO, vBP = 252, 253, 254
vST = 248
def XF(qt, s):
    if s < 10: return 128 + 8 * (s % 8) + 4 * qt
    return 192 + 8 * (s - 10) + 4 * qt

sWID = 3
sX, sW, sKd, sVd, sO, sP = 36, 40, 44, 48, 52, 56
sC, sKT, sTHR, sKpos, sVpos, sDK, sDV, sPOS, sNEG, sCNT, sRET, sT0, sT1, sOFF = 60, 61, 62, 63, 64, 65, 66, 67, 68, 69, 70, 71, 72, 73
sXB = 74
sROT = 75
sPF = 90
vPF, vPFD = 250, 251
sFL = 86
sOR = 88

halves = [("W", i) for i in range(14)] + [("K", 0), ("K", 1)]
for i in range(1, 15): halves += [("V", i - 1), ("K", i + 1)]
halves += [("V", 14), ("V", 15)] + [("O", i) for i in range(14)]
assert len(halves) == 60
intervals = [[2 * i, 2 * i + 1] for i in range(30)]
def slot_idx(n): return n % 8 if n < 16 else (n - 16) % NSLOT
def slot_addr(n): return slot_idx(n) * SLOT
XPRIV = 8 * SLOT
X0ADDR = 6 * SLOT
XFREE = 6

class Half:
    def __init__(self, n, reads, mf, pre): self.n = n; self.reads = reads; self.mf = mf; self.pre = pre

def vadd_lit(reg, delta):
    return valu("v_add_u32 %s, 0x%x, %s" % (R(reg), delta & 0xffffffff, R(reg)), wr=[reg], rd=[reg])
def vadd_s(reg, s):
    return valu("v_add_u32 %s, %s, %s" % (R(reg), S(s), R(reg)), wr=[reg], rd=[reg])

def half_W(s, pre):
    def reads(f, b):
        a = vT1 if f & 1 else vT
        return [dsrtr(b, a, 32 * f), dsrtr(b + 2, a, 32 * f + 512)]
    def mf(f, b): return [mfma16(ACC(qt, f), b, XF(qt, s), None if s == 0 else ACC(qt, f)) for qt in range(2)]
    return Half(16, reads, mf, pre)
def half_W2(s, pre):
    assert slot_addr(s + 1) == slot_addr(s) + SLOT
    def reads(f, b):
        t, e = f >> 1, f & 1
        a = vT1 if t & 1 else vT
        return [dsrtr(b, a, e * SLOT + 32 * t), dsrtr(b + 2, a, e * SLOT + 32 * t + 512)]
    def mf(f, b):
        t, e = f >> 1, f & 1
        return [mfma16(ACC(qt, t), b, XF(qt, s + e), ACC(qt, t)) for qt in range(2)]
    return Half(32, reads, mf, pre)
def half_K(pre, first=False):
    def reads(f, b): return [dsr128(b, vK, 512 * (f & 1) + 64 * (f >> 1))]
    def mf(f, b):
        u, z = f >> 1, f & 1
        return [mfma16(SR(qt, z), b, QF(qt, u), (None if first else NM(qt)) if u == 0 else SR(qt, z)) for qt in range(2)]
    return Half(16, reads, mf, pre)
def half_V(pre, first=False):
    def reads(f, b): return [dsrtr(b, vT, 32 * f), dsrtr(b + 2, vT, 32 * f + 512)]
    def mf(f, b): return [mfma16(ACC(qt, f), b, PR(qt), None if first else ACC(qt, f)) for qt in range(2)]
    return Half(16, reads, mf, pre)
def half_O(hh, aset, pre):
    def reads(f, b):
        ks, tau = f >> 2, f & 3
        return [dsrtr(b, vT, 256 * ks + 32 * tau), dsrtr(b + 2, vT, 256 * ks + 128 + 32 * tau)]
    def mf(f, b):
        ks, tau = f >> 2, f & 3
        u = 4 * hh + ks
        return [mfma16(OACC(aset, qt, tau), b, QF(qt, u), None if u == 0 else OACC(aset, qt, tau)) for qt in range(2)]
    return Half(16, reads, mf, pre)

class Stream:
    def __init__(self):
        self.o = []; self.q = []; self.pend = []
    def buf(self, f): return FB0 + 4 * BUFSEQ[f % 16]
    def lds(self, ins, key): self.o.append(ins); self.q.append(key)
    def first_read(self, h, f):
        rs = h.reads(f, self.buf(f)); key = (id(h), f)
        self.pend = [(r, key) for r in rs[1:]]
        return (h.pre if f == 0 else []), [(rs[0], key)]
    def preload(self, h):
        for f in range(DEPTH):
            for r, k in self.pend: self.lds(r, k)
            pre, rs = self.first_read(h, f)
            self.o += pre
            for r, k in rs: self.lds(r, k)
    def rekey(self, hold, hnew):
        f = lambda k: (id(hnew), k[1]) if k[0] == id(hold) else k
        self.q = [f(k) for k in self.q]; self.pend = [(r, f(k)) for r, k in self.pend]
    def waitfor(self, keys):
        idx = [i for i, k in enumerate(self.q) if k in keys]
        if idx:
            last = max(idx); n = len(self.q) - 1 - last
            assert n <= 15
            self.o.append(wait(lgkm=n)); self.q = self.q[last + 1:]
    def run(self, h, nxt, fill=None, head=None, post=None, ldsx=None, needs=None):
        fill = fill or {}; head = head or {}; post = post or {}; ldsx = ldsx or {}; needs = needs or {}
        for f in range(h.n):
            ms = h.mf(f, self.buf(f))
            for k, m in enumerate(ms):
                sl = 2 * f + k
                self.o += head.get(sl, [])
                if k == 0:
                    assert not any(kk == (id(h), f) for _, kk in self.pend)
                    self.waitfor([(id(h), f)] + needs.get(f, []))
                self.o.append(m)
                pre, rs = [], []
                if k == 0:
                    rs = self.pend; self.pend = []
                else:
                    g = f + DEPTH
                    if g < h.n: pre, rs = self.first_read(h, g)
                    elif nxt is not None: pre, rs = self.first_read(nxt, g - h.n)
                self.o += fill.get(sl, []) + pre
                for r, kk in rs: self.lds(r, kk)
                for r, kk in ldsx.get(sl, []): self.lds(r, kk)
                self.o += post.get(sl, [])

def spread(ops, lo, hi, d=None):
    d = d if d is not None else {}
    n = hi - lo + 1
    for i, op in enumerate(ops): d.setdefault(lo + (i * n) // len(ops), []).append(op)
    return d
def cost(op):
    if op.kind == "vst": return 2 if STGAP else 0
    return 2 if op.kind == "trans" else (1 if op.kind in ("valu", "perm") else 0)
def pack(ops, lo, d=None, cap=2):
    d = d if d is not None else {}
    s = lo
    for op in ops:
        while sum(cost(x) for x in d.get(s, [])) + cost(op) > cap: s += 1
        d.setdefault(s, []).append(op)
    return d, s

def sm_ops():
    ops = []
    def s(qt, j): return SR(qt, 0) + j
    for j in range(0, 9):
        if j < 8:
            for qt in range(2): ops.append(v_exp(s(qt, j), s(qt, j)))
        if j >= 2:
            for qt in range(2):
                ops.append(v_add(T(qt), s(qt, 0), s(qt, 1)) if j == 2 else v_add(T(qt), T(qt), s(qt, j - 1)))
    return ops
def check_ops():
    return [v_max(TMP0, T(0), T(1)), valu("v_cmp_nge_f32 vcc, %s, %s" % (S(sTHR), R(TMP0)), rd=[TMP0], swr=["vcc"])]
def pcvt(qt, z): return [v_cvtpk(PR(qt) + 2 * z, SR(qt, z), SR(qt, z) + 1), v_cvtpk(PR(qt) + 2 * z + 1, SR(qt, z) + 2, SR(qt, z) + 3)]
def ladd(): return [v_add(L(qt), L(qt), T(qt)) for qt in range(2)]
def rowreduce(reg, tmp, op):
    return [v_mov(tmp, R(reg), [reg]), v_swap16(reg, tmp), op(reg, reg, tmp),
            v_mov(tmp, R(reg), [reg]), v_swap32(reg, tmp), op(reg, reg, tmp)]
def qk_head():
    head = {0: pcvt(0, 0)}
    fill = {0: pcvt(1, 0), 1: pcvt(0, 1), 2: pcvt(1, 1), 3: ladd()}
    return head, fill

def compute_wave():
    st = Stream(); o = st.o; A = o.append
    o += [label("L_compute")]
    A(valu("v_and_b32 v1, 63, v0", wr=[1], rd=[0]))
    A(valu("v_lshrrev_b32 v5, 2, v1", wr=[5], rd=[1]))
    A(valu("v_and_b32 v6, 3, v1", wr=[6], rd=[1]))
    A(salu("s_lshl_b32 %s, %s, 5" % (S(sT0), S(sWID))))
    A(valu("v_add_u32 v4, %s, v5" % S(sT0), wr=[4], rd=[5]))
    A(valu("v_mul_u32_u24 v4, 896, v4", wr=[4], rd=[4]))
    A(valu("v_lshrrev_b32 v7, 4, v1", wr=[7], rd=[1]))
    A(valu("v_sub_u32 v7, 0, v7", wr=[7], rd=[7]))
    A(valu("v_xor_b32 v7, v7, v6", wr=[7], rd=[7, 6]))
    A(valu("v_and_b32 v7, 3, v7", wr=[7], rd=[7]))
    A(valu("v_lshl_add_u32 %s, v7, 4, v4" % R(vXO), wr=[vXO], rd=[7, 4]))
    A(salu("s_movk_i32 %s, 14336" % S(sT1)))
    A(salu("s_lshl_b32 %s, %s, 12" % (S(sXB), S(sWID))))
    def xdma(r, base):
        ops = []
        for e in range(2):
            for qt in range(2):
                sidx = 2 * r + e
                ops.append([salu("s_add_u32 m0, %s, %d" % (S(sXB), base + (2 * e + qt) * 1024 - 64 * sidx)),
                            vmem("buffer_load_dwordx4 %s, %s, %s offen offset:%d lds" % (R(vXO), S(sX, 4), S(sT1) if qt else "0", 64 * sidx), rd=[vXO])])
        return ops
    def xread(r, base):
        return [(dsr128(XF(qt, 2 * r + e), vBP, base - X0ADDR + (2 * e + qt) * 1024), ("x", r)) for e in range(2) for qt in range(2)]
    for g in xdma(0, X0ADDR) + xdma(1, XPRIV): o += g
    A(valu("v_mul_u32_u24 v5, %d, v5" % ISTR, wr=[5], rd=[5]))
    A(valu("v_lshl_add_u32 %s, v6, 3, v5" % R(vT), wr=[vT], rd=[5, 6]))
    A(valu("v_xor_b32 %s, 16, %s" % (R(vT1), R(vT)), wr=[vT1], rd=[vT]))
    A(valu("v_and_b32 v2, 15, v1", wr=[2], rd=[1]))
    A(valu("v_lshrrev_b32 v3, 4, v1", wr=[3], rd=[1]))
    A(valu("v_lshrrev_b32 v6, 2, v2", wr=[6], rd=[2]))
    A(valu("v_sub_u32 v6, 0, v6", wr=[6], rd=[6]))
    A(valu("v_xor_b32 v6, v6, v3", wr=[6], rd=[6, 3]))
    A(valu("v_and_b32 v6, 3, v6", wr=[6], rd=[6]))
    A(valu("v_lshl_add_u32 v6, v2, 2, v6", wr=[6], rd=[2, 6]))
    A(valu("v_lshlrev_b32 v6, 4, v6", wr=[6], rd=[6]))
    A(valu("v_add_u32 v6, %s, v6" % S(sXB), wr=[6], rd=[6]))
    A(valu("v_add_u32 %s, 0x%x, v6" % (R(vBP), X0ADDR), wr=[vBP], rd=[6]))
    A(valu("v_lshlrev_b32 v6, 1, v3", wr=[6], rd=[3]))
    A(valu("v_mov_b32 v7, 0x9c", wr=[7]))
    A(valu("v_lshrrev_b32 v6, v6, v7", wr=[6], rd=[6, 7]))
    A(valu("v_and_b32 v6, 3, v6", wr=[6], rd=[6]))
    A(valu("v_mul_u32_u24 v5, %d, v2" % ISTR, wr=[5], rd=[2]))
    A(valu("v_lshl_add_u32 %s, v6, 4, v5" % R(vK), wr=[vK], rd=[5, 6]))
    A(vadd_lit(vK, slot_addr(14)))
    A(salu("s_mov_b32 %s, 0x%x" % (S(sC), f2u(CSCALE))))
    A(salu("s_mov_b32 %s, 0x%x" % (S(sTHR), f2u(THR))))
    A(salu("s_mov_b32 %s, %d" % (S(sPOS), 2 * SLOT)))
    A(salu("s_mov_b32 %s, %d" % (S(sNEG), -7 * SLOT)))
    A(valu("v_lshlrev_b32 %s, %d, v1" % (R(vPF), PFSH), wr=[vPF], rd=[1]))
    A(salu("s_and_b32 %s, %s, 3" % (S(sPF + 2), S(sWID)))); A(salu("s_lshl_b32 %s, %s, 1" % (S(sPF + 2), S(sPF + 2))))
    A(salu("s_lshr_b32 %s, %s, 2" % (S(sPF), S(sWID)))); A(salu("s_add_u32 %s, %s, %s" % (S(sPF + 2), S(sPF + 2), S(sPF))))
    A(salu("s_cmp_lt_u32 %s, %d" % (S(sPF + 2), PFW))); A(salu("s_cselect_b32 %s, %s, 256" % (S(sPF + 2), S(sPF + 2))))
    pfc = [0]
    def pf():
        lg = 14 - (PFSH + 6)
        c = pfc[0]; pfc[0] += 1
        return [salu("s_add_u32 %s, %s, %d" % (S(sPF), S(sPF + 2), PFW * c)),
                salu("s_and_b32 %s, %s, %d" % (S(sPF + 1), S(sPF), (1 << lg) - 1)),
                salu("s_lshl_b32 %s, %s, %d" % (S(sPF + 1), S(sPF + 1), PFSH + 6)),
                salu("s_lshr_b32 %s, %s, %d" % (S(sPF), S(sPF), lg)),
                salu("s_mul_i32 %s, %s, %d" % (S(sPF), S(sPF), PFS * 16384)),
                salu("s_add_u32 %s, %s, %s" % (S(sPF), S(sPF), S(sPF + 1))),
                salu("s_add_u32 %s, %s, %d" % (S(sPF), S(sPF), PFT0 * 16384)),
                vmem("buffer_load_dword %s, %s, %s, %s offen%s" % (R(vPFD), R(vPF), S(sVd, 4), S(sPF), PFFLAG), wr=[vPFD], rd=[vPF])]
    A(wait(vm=4))
    for r, k in xread(0, X0ADDR): st.lds(r, k)
    A(wait(lgkm=0)); st.q = []
    def wpre(n):
        if n == 0: return []
        d = slot_addr(n) - slot_addr(n - 1)
        return [vadd_lit(vT, d), vadd_lit(vT1, d)]
    HW = [half_W(s, wpre(s)) for s in range(12)] + [half_W2(12, wpre(12))]
    HK0 = half_K([], first=True)
    A(barrier())
    st.preload(HW[0])
    def qconv(u):
        ops = []
        for qt in range(2):
            for e in range(2):
                a = ACC(qt, 2 * u + e)
                for h in range(2):
                    for r in range(2): ops.append(valu("v_mul_f32 %s, %s, %s" % (R(a + 2 * h + r), S(sC), R(a + 2 * h + r)), wr=[a + 2 * h + r], rd=[a + 2 * h + r]))
                    ops.append(v_cvtpk(QF(qt, u) + 2 * e + h, a + 2 * h, a + 2 * h + 1))
        for qt in range(2):
            for h in range(2): ops.append(v_swap16(QF(qt, u) + h, QF(qt, u) + 2 + h))
        return ops
    for s in range(12):
        post = {}; ldsx = {}; head = {}; needs = {}
        if not (s & 1):
            r = s // 2 + 1
            st0 = XSLOT0 if s == 0 else XSLOT
            head[st0] = [wait(vm=PFN if PFSKIP + 1 <= s // 2 <= PFR else 0)]
            for i, e in enumerate(xread(r, XPRIV)): ldsx.setdefault(st0 + 2 * i, []).append(e)
            fd = (st0 + 6) // 2 + 4
            assert fd + 4 <= 16
            needs[fd] = [("x", r)]
            if r + 1 < 7:
                for i, g in enumerate(xdma(r + 1, XPRIV)):
                    head.setdefault(2 * fd + 2 * i + 1, []).append(g[0]); post.setdefault(2 * fd + 2 * i + 1, []).append(g[1])
        elif PFSKIP <= s // 2 < PFR:
            ops = []
            for _ in range(PFN): ops += pf()
            for i, x in enumerate(ops): post.setdefault(i, []).append(x)
        st.run(HW[s], HW[s + 1], None, head, post, ldsx, needs)
        if s & 1: A(barrier())
    allc = [(u, op) for u in range(8) for op in qconv(u)]
    post = {}; i = 0
    for sl in range(64):
        if i < len(allc) and sl >= 8 * allc[i][0] + 11:
            post[sl] = [allc[i][1]]; i += 1
    st.run(HW[12], HK0, None, None, post)
    rest = allc[i:]
    caps = []
    for sl in range(26): caps += [sl] * (1 if sl & 1 else 2)
    take = 0
    while take < len(caps) and take < len(rest):
        cand = rest[len(rest) - take - 1:]
        if all(caps[k] < 4 * cand[k][0] - 2 for k in range(len(cand))): take += 1
        else: break
    blk = [op for _, op in rest[:len(rest) - take]]
    postK = {}
    for k, (u, op) in enumerate(rest[len(rest) - take:]): postK.setdefault(caps[k], []).append(op)
    print("conv: woven W", i, "block", len(blk), "woven K", take)
    A(salu("s_cmp_lt_u32 %s, 4" % S(sWID))); A(salu("s_cbranch_scc1 L_t1a")); A(barrier()); A(label("L_t1a"))
    A(nop(3))
    o += blk
    A(salu("s_cbranch_scc0 L_t1b")); A(barrier()); A(label("L_t1b"))
    HK1 = half_K([vadd_lit(vK, slot_addr(15) - slot_addr(14))])
    st.run(HK0, HK1, None, None, postK)
    A(salu("s_mov_b32 %s, %d" % (S(sKpos), slot_addr(17))))
    A(salu("s_mov_b32 %s, %d" % (S(sVpos), slot_addr(16))))
    A(salu("s_mov_b32 %s, 13" % S(sCNT)))
    A(salu("s_mov_b32 %s, 0" % S(sRET)))
    A(salu("s_add_u32 %s, %s, 16384" % (S(sKT), S(sROT))))
    ma = []; mb = []
    for qt, lst in ((0, ma), (1, mb)):
        s0 = SR(qt, 0); m = NM(qt)
        lst += [v_max3(m, s0, s0 + 1, s0 + 2), v_max3(m, m, s0 + 3, s0 + 4), v_max3(m, m, s0 + 5, s0 + 6), v_max(m, m, s0 + 7)]
        lst += rowreduce(m, TMP0 + qt, v_max)
    for a, b in zip(ma, mb): o += [a, b]
    for j in range(8):
        for qt in range(2): A(v_sub(SR(qt, 0) + j, SR(qt, 0) + j, NM(qt)))
    for qt in range(2):
        m = NM(qt)
        A(valu("v_sub_f32 %s, 0, %s" % (R(m), R(m)), wr=[m], rd=[m]))
        for j in range(1, 4): A(v_mov(m + j, R(m), [m]))
        A(v_mov(L(qt), "0"))
    o += sm_ops()
    HVn = half_V([vadd_lit(vT, slot_addr(16) - slot_addr(12))])
    head, fill = qk_head()
    st.run(HK1, HVn, fill, head)
    pre_loop = list(o)

    def pv_fill():
        if NOSM: return pack(check_ops(), 0)[0]
        if PVSP == "spread":
            ops = sm_ops() + check_ops()
            return {i: [op] for i, op in enumerate(ops)}
        d, n = pack(sm_ops() + check_ops(), 0)
        assert n < 31
        return d
    def slotcalc():
        return [salu("s_cmp_gt_u32 %s, %d" % (S(sKpos), 6 * SLOT)), salu("s_cselect_b32 %s, %s, %s" % (S(sDK), S(sNEG), S(sPOS))),
                salu("s_add_u32 %s, %s, %s" % (S(sKpos), S(sKpos), S(sDK))),
                salu("s_cmp_gt_u32 %s, %d" % (S(sVpos), 6 * SLOT)), salu("s_cselect_b32 %s, %s, %s" % (S(sDV), S(sNEG), S(sPOS))),
                salu("s_add_u32 %s, %s, %s" % (S(sVpos), S(sVpos), S(sDV)))]
    HKn = half_K([])
    def pv_part(first, nxt, extra):
        HV = half_V([], first=first); st.rekey(HVn, HV)
        st.o.append(barrier())
        post = {}
        for i, x in enumerate(extra): post.setdefault(2 * i, []).append(x)
        st.run(HV, nxt, pv_fill(), None, post)
    def qk_part(extra):
        HK = half_K([]); st.rekey(HKn, HK)
        nxt = half_V([vadd_s(vT, sDV)])
        head, fill = qk_head()
        post = {}
        for i, x in enumerate(extra): post.setdefault(4 + 2 * i, []).append(x)
        st.run(HK, nxt, fill, head, post)
        st.rekey(nxt, HVn)
    ktadd = salu("s_add_u32 %s, %s, 16384" % (S(sKT), S(sKT)))
    st.o = []; fb = st.o
    nk = half_K([vadd_s(vK, sDK)])
    pv_part(True, nk, [salu("s_mov_b32 %s, %d" % (S(sDK), slot_addr(17) - slot_addr(15)))] + slotcalc()[3:] + [salu("s_mov_b64 %s, 0" % S(sFL, 2))]); st.rekey(nk, HKn)
    fb.append(salu("s_cbranch_vccnz L_rare"))
    q0 = (list(st.q), [k for _, k in st.pend])
    st.o = []; lb = st.o
    qk_part([ktadd])
    nk = half_K([vadd_s(vK, sDK)])
    pv_part(False, nk, slotcalc() + [salu("s_sub_u32 %s, %s, 1" % (S(sCNT), S(sCNT))), salu("s_cmp_eq_u32 %s, 0" % S(sCNT)),
                                     salu("s_cselect_b32 %s, 1, 0" % S(sFL)), salu("s_mov_b32 %s, %s" % (S(sRET), S(sFL)))]); st.rekey(nk, HKn)
    lb.append(salu("s_or_b64 %s, vcc, %s" % (S(sOR, 2), S(sFL, 2))))
    lb.append(salu("s_cbranch_scc0 L_loop"))
    assert (st.q, [k for _, k in st.pend]) == q0
    st.o = []; o2 = st.o; A = o2.append
    A(salu("s_cbranch_vccnz L_rare")); A(label("L_ret1"))
    qk_part([ktadd, salu("s_mov_b32 %s, 2" % S(sRET))])
    def opre(n): return [vadd_lit(vT, slot_addr(n) - slot_addr(n - 1))]
    HO = [half_O(i & 1, (i >> 1) % 4, opre(46 + i)) for i in range(14)]
    HV15 = half_V(opre(45))
    pv_part(False, HV15, [])
    A(salu("s_cbranch_vccnz L_rare")); A(label("L_ret2"))
    def oconv(u):
        ops = []
        for qt in range(2):
            for e in range(2):
                a = ACC(qt, 2 * u + e)
                for h in range(2): ops.append(v_cvtpk(QF(qt, u) + 2 * e + h, a + 2 * h, a + 2 * h + 1))
        return ops
    o2 += pcvt(0, 0) + pcvt(0, 1) + pcvt(1, 0) + pcvt(1, 1)
    r0 = rowreduce(L(0), TMP0, v_add); r1 = rowreduce(L(1), TMP1, v_add)
    lops = ladd() + [x for ab in zip(r0, r1) for x in ab]
    fill, nx = pack(lops, 0)
    for u in range(8): fill, nx = pack(oconv(u), max(nx, 4 * u + 7), fill)
    lop2 = [trans("v_rcp_f32 %s, %s" % (R(L(qt)), R(L(qt))), wr=[L(qt)], rd=[L(qt)]) for qt in range(2)]
    lop2 += [valu("v_mbcnt_lo_u32_b32 %s, -1, 0" % R(vST), wr=[vST]), valu("v_mbcnt_hi_u32_b32 %s, -1, %s" % (R(vST), R(vST)), wr=[vST], rd=[vST]),
             salu("s_mul_i32 %s, %s, 28672" % (S(sT0), S(sWID))),
             valu("v_lshlrev_b32 %s, 4, %s" % (R(vST), R(vST)), wr=[vST], rd=[vST]), vadd_s(vST, sT0)]
    fill, nx = pack(lop2, nx, fill)
    st.run(HV15, HO[0], {k: v for k, v in fill.items() if k < 32})
    carry = {k - 32: v for k, v in fill.items() if k >= 32}
    def epi(j):
        ops = []; aset = j % 4
        for qt in range(2):
            for hf in range(2):
                dst = SR(qt, hf)
                for e in range(2):
                    a = OACC(aset, qt, 2 * hf + e)
                    for r in range(4): ops.append(v_mul(a + r, a + r, L(qt)))
                    for h in range(2): ops.append(v_cvtpk(dst + 2 * e + h, a + 2 * h, a + 2 * h + 1))
                if hf == 0: ops.append(salu("s_mov_b32 %s, %d" % (S(sOFF), qt * 14336 + j * 2048)))
                if not NOST: ops.append(vmem("buffer_store_dwordx4 %s, %s, %s, %s offen offset:%d%s" % (R(dst, 4), R(vST), S(sP, 4), S(sOFF), 1024 * hf, STFLAG),
                                rd=list(rr(dst, 4)) + [vST], store=True))
        return ops
    for i in range(14):
        j = i >> 1
        if not (i & 1): A(barrier())
        fill = {}
        if i == 0: fill = carry
        elif j >= 1 and not (i & 1) and EPI == "sparse": fill, _ = pack(epi(j - 1), 1)
        post = {}
        if j >= 1 and EPI == "dense":
            d, _ = pack(epi(j - 1), 2, None, 1)
            post = {k - 32 * (i & 1): v for k, v in d.items() if (k >> 5) == (i & 1)}
        st.run(HO[i], HO[i + 1] if i < 13 else None, fill, None, post)
    o2 += epi(6)
    if PROF:
        A(wait(vm=0)); A(barrier())
    A(salu("s_endpgm"))
    rp = [label("L_rare"), nop(15)]
    rp += [valu("v_mbcnt_lo_u32_b32 %s, -1, 0" % R(TMP0), wr=[TMP0]), valu("v_mbcnt_hi_u32_b32 %s, -1, %s" % (R(TMP0), R(TMP0)), wr=[TMP0], rd=[TMP0]),
           valu("v_lshrrev_b32 %s, 4, %s" % (R(TMP1), R(TMP0)), wr=[TMP1], rd=[TMP0]),
           valu("v_lshlrev_b32 %s, 1, %s" % (R(TMP1), R(TMP1)), wr=[TMP1], rd=[TMP1]),
           v_mov(T(0), "0x9c"),
           valu("v_lshrrev_b32 %s, %s, %s" % (R(TMP1), R(TMP1), R(T(0))), wr=[TMP1], rd=[TMP1, T(0)]),
           valu("v_and_b32 %s, 3, %s" % (R(TMP1), R(TMP1)), wr=[TMP1], rd=[TMP1]),
           valu("v_lshlrev_b32 %s, 4, %s" % (R(TMP1), R(TMP1)), wr=[TMP1], rd=[TMP1]),
           valu("v_and_b32 %s, 15, %s" % (R(TMP0), R(TMP0)), wr=[TMP0], rd=[TMP0]),
           valu("v_lshl_add_u32 %s, %s, 9, %s" % (R(TMP0), R(TMP0), R(TMP1)), wr=[TMP0], rd=[TMP0, TMP1]),
           salu("s_and_b32 %s, %s, 0x3ffff" % (S(sKT), S(sKT))),
           salu("s_add_u32 %s, %s, 8192" % (S(sT0), S(sKT)))]
    for u in range(8):
        for z in range(2):
            rp.append(vmem("buffer_load_dwordx4 %s, %s, %s, %s offen offset:%d" % (R(PR(z), 4), R(TMP0), S(sKd, 4), S(sT0 if z else sKT), 64 * u), wr=rr(PR(z), 4), rd=[TMP0]))
        rp.append(wait(vm=0))
        for z in range(2):
            for qt in range(2): rp.append(mfma16(SR(qt, z), PR(z), QF(qt, u), NM(qt) if u == 0 else SR(qt, z)))
        rp.append(nop(7))
    rp.append(nop(15))
    for qt in range(2):
        s0 = SR(qt, 0); d = T(qt)
        rp += [v_max3(d, s0, s0 + 1, s0 + 2), v_max3(d, d, s0 + 3, s0 + 4), v_max3(d, d, s0 + 5, s0 + 6), v_max(d, d, s0 + 7)]
        rp += rowreduce(d, TMP0, v_max)
        rp.append(valu("v_max_f32 %s, 0, %s" % (R(d), R(d)), wr=[d], rd=[d]))
        for j in range(8): rp.append(v_sub(s0 + j, s0 + j, d))
        for j in range(4): rp.append(v_sub(NM(qt) + j, NM(qt) + j, d))
        rp.append(trans("v_exp_f32 %s, -%s" % (R(TMP1), R(d)), wr=[TMP1], rd=[d]))
        rp.append(v_mul(L(qt), L(qt), TMP1))
        for t in range(16):
            for r in range(4): rp.append(v_mul(ACC(qt, t) + r, ACC(qt, t) + r, TMP1))
    rp += sm_ops()
    rp += [nop(7), salu("s_cmp_eq_u32 %s, 0" % S(sRET)), salu("s_cbranch_scc1 L_loop"),
           salu("s_cmp_eq_u32 %s, 1" % S(sRET)), salu("s_cbranch_scc1 L_ret1"), salu("s_branch L_ret2")]
    pre_loop = pad_hazards(pre_loop)
    fb = pad_hazards(fb, prefix=pre_loop)
    lb = pad_hazards(lb, prefix=fb)
    lb = pad_hazards(lb, prefix=lb)
    assert not check_hazards(pre_loop + fb + lb + lb)
    o2 = pad_hazards(o2, prefix=lb)
    rp = pad_hazards(rp)
    return pre_loop + fb + [directive(".p2align 6"), label("L_loop")] + lb + o2 + rp

def loader_wave():
    o = []; A = o.append
    vKV, vW, vO, vSTAMP = 1, 2, 3, 10
    A(label("L_loader"))
    A(salu("s_setprio 3"))
    A(valu("v_and_b32 v4, 63, v0", wr=[4], rd=[0]))
    A(valu("v_and_b32 v5, 31, v4", wr=[5], rd=[4]))
    A(valu("v_lshlrev_b32 v5, 4, v5", wr=[5], rd=[5]))
    A(valu("v_lshrrev_b32 v6, 5, v4", wr=[6], rd=[4]))
    A(valu("v_lshl_add_u32 %s, v6, 15, v5" % R(vW), wr=[vW], rd=[5, 6]))
    A(valu("v_lshl_add_u32 %s, v6, 13, v5" % R(vKV), wr=[vKV], rd=[5, 6]))
    A(valu("v_and_b32 v5, 7, v4", wr=[5], rd=[4]))
    A(valu("v_lshlrev_b32 v5, 4, v5", wr=[5], rd=[5]))
    A(valu("v_lshrrev_b32 v6, 3, v4", wr=[6], rd=[4]))
    A(valu("v_mul_u32_u24 v6, 14336, v6", wr=[6], rd=[6]))
    A(valu("v_add_u32 %s, v5, v6" % R(vO), wr=[vO], rd=[5, 6]))
    issued = []
    nstamp = [0]
    def stamp():
        if not PROF: return
        A(salu("s_memtime s[80:81]")); A(wait(lgkm=0))
        A(valu("v_writelane_b32 %s, s80, %d" % (R(vSTAMP), nstamp[0]), wr=[vSTAMP])); nstamp[0] += 1
    def issue(n):
        nonlocal issued
        if len(issued) > 47:
            A(wait(vm=47)); issued = issued[-47:]
        typ, idx = halves[n]
        if typ == "W": srd_, vo, base = sW, vW, idx * 32 * 8192
        elif typ == "K": srd_, vo, base = sKd, vKV, idx * 16384
        elif typ == "V": srd_, vo, base = sVd, vKV, idx * 16384
        else: srd_, vo, base = sO, vO, (idx & 1) * 128 * 896 + (idx >> 1) * 128
        A(salu("s_mov_b32 m0, %d" % slot_addr(n)))
        if typ in "KV":
            A(salu("s_add_u32 %s, %s, %d" % (S(sOFF), S(sROT), base))); A(salu("s_and_b32 %s, %s, 0x3ffff" % (S(sOFF), S(sOFF))))
        else: A(salu("s_mov_b32 %s, %d" % (S(sOFF), base)))
        for i in range(16):
            if i:
                A(salu("s_addk_i32 m0, %d" % ISTR))
                if typ == "W": step = 8192 if i & 3 else 5 * 8192
                elif typ == "O": step = 896
                else: step = 512
                if step < 32768: A(salu("s_addk_i32 %s, %d" % (S(sOFF), step)))
                else: A(salu("s_add_u32 %s, %s, %d" % (S(sOFF), S(sOFF), step)))
            A(vmem("buffer_load_dwordx4 %s, %s, %s offen%s lds" % (R(vo), S(srd_, 4), S(sOFF), KVFLAG if typ in "KV" else ""), rd=[vo]))
            issued.append(n)
    def landed(n):
        nonlocal issued
        idx = [i for i, k in enumerate(issued) if k <= n]
        if idx:
            cnt = len(issued) - 1 - max(idx)
            A(wait(vm=cnt)); issued = issued[max(idx) + 1:]
    if PROF: A(v_mov(vSTAMP, "0"))
    stamp()
    nxt = 0
    for k, iv in enumerate(intervals):
        consumed = sum(len(x) for x in intervals[:max(k - 1, 0)])
        def free(n):
            if n < 6: return True
            if n < 8: return k >= 1
            if n < 24: return n - 8 < consumed
            if n == 24: return k >= XFREE + 1
            return n - 9 < consumed
        limit = nxt
        while limit < 60 and free(limit): limit += 1
        needn = min(iv[-1] + 1, 59)
        if k == 5: needn = 13
        limit = min(limit, max(needn + 1, 4 if k == 0 else nxt + RAMP))
        while nxt < limit:
            if not (NODMA and nxt >= 9): issue(nxt)
            nxt += 1
        assert nxt > needn
        landed(needn)
        A(barrier())
        stamp()
    if PROF:
        A(barrier()); stamp()
        A(salu("s_memrealtime s[80:81]")); A(wait(lgkm=0))
        A(salu("s_sub_u32 s80, s80, s82"))
        A(valu("v_writelane_b32 %s, s80, 62" % R(vSTAMP), wr=[vSTAMP]))
        A(salu("s_getreg_b32 s80, hwreg(HW_REG_XCC_ID)"))
        A(valu("v_writelane_b32 %s, s80, 61" % R(vSTAMP), wr=[vSTAMP]))
        A(valu("v_writelane_b32 %s, s84, 63" % R(vSTAMP), wr=[vSTAMP]))
        A(valu("v_writelane_b32 %s, s82, 60" % R(vSTAMP), wr=[vSTAMP]))
        A(valu("v_lshlrev_b32 v4, 2, v4", wr=[4], rd=[4]))
        A(salu("s_lshl_b32 s80, s2, 8"))
        A(vmem("buffer_store_dword %s, v4, s[76:79], s80 offen" % R(vSTAMP), rd=[vSTAMP, 4], store=True))
        A(wait(vm=0))
    A(salu("s_endpgm"))
    return pad_hazards(o)

def srd(d, lo, hi, off_s, size):
    o = [salu("s_add_u32 %s, %s, %s" % (S(d), S(lo), S(off_s))), salu("s_addc_u32 %s, %s, 0" % (S(d + 1), S(hi)))]
    o.append(salu("s_mov_b32 %s, %s" % (S(d + 2), size if isinstance(size, str) else "0x%x" % size)))
    o.append(salu("s_mov_b32 %s, 0x20000" % S(d + 3)))
    return o

def k1():
    o = []; A = o.append
    A(salu("s_cmp_ge_u32 s2, 256")); A(salu("s_cbranch_scc1 L_exit1"))
    if PROF:
        A(salu("s_memrealtime s[82:83]")); A(salu("s_memtime s[84:85]"))
    A(salu("s_load_dwordx16 s[4:19], s[0:1], 0"))
    A(salu("s_load_dwordx4 s[20:23], s[0:1], 64"))
    A(salu("s_load_dwordx2 s[24:25], s[0:1], 96"))
    A(valu("v_lshrrev_b32 v1, 6, v0", wr=[1], rd=[0]))
    A(salu("s_and_b32 s26, s2, 3")); A(salu("s_lshl_b32 s26, s26, 2")); A(salu("s_lshr_b32 s27, s2, 6")); A(salu("s_add_u32 s26, s26, s27"))
    A(valu("v_readfirstlane_b32 %s, v1" % S(sWID), rd=[1], swr=[sWID]))
    A(salu("s_lshr_b32 s27, s2, 3")); A(salu("s_and_b32 s27, s27, 7"))
    A(salu("s_lshr_b32 s28, s2, 2")); A(salu("s_and_b32 s28, s28, 1"))
    A(salu("s_lshl_b32 s29, s27, 4")); A(salu("s_add_u32 s29, s29, s26"))
    A(salu("s_mul_i32 s30, s27, 200704"))
    A(salu("s_lshl_b32 s31, s29, 18"))
    A(salu("s_lshl_b32 s32, s26, 9"))
    A(salu("s_mul_i32 s33, s26, 229376"))
    A(salu("s_lshl_b32 s34, s28, 7")); A(salu("s_add_u32 s34, s34, s29")); A(salu("s_mul_i32 s34, s34, %d" % PART))
    A(salu("s_sub_u32 s35, %d, s32" % (448 * 8192)))
    if ROT == "0": A(salu("s_mov_b32 %s, 0" % S(sROT)))
    elif ROT == "1":
        A(salu("s_lshr_b32 %s, s2, 3" % S(sROT))); A(salu("s_and_b32 %s, %s, 15" % (S(sROT), S(sROT)))); A(salu("s_lshl_b32 %s, %s, 14" % (S(sROT), S(sROT))))
    elif ROT == "2":
        A(salu("s_and_b32 %s, s2, 15" % S(sROT))); A(salu("s_lshl_b32 %s, %s, 14" % (S(sROT), S(sROT))))
    elif ROT == "3":
        A(salu("s_lshr_b32 %s, s2, 4" % S(sROT))); A(salu("s_add_u32 %s, %s, s2" % (S(sROT), S(sROT)))); A(salu("s_and_b32 %s, %s, 15" % (S(sROT), S(sROT)))); A(salu("s_lshl_b32 %s, %s, 14" % (S(sROT), S(sROT))))
    A(salu("s_cmp_eq_u32 s28, 0"))
    A(wait(lgkm=0))
    for i in range(5): A(salu("s_cselect_b64 %s, %s, %s" % (S(4 + 2 * i, 2), S(4 + 2 * i, 2), S(14 + 2 * i, 2))))
    o += srd(sW, 10, 11, 32, "s35")
    o += srd(sX, 4, 5, 30, 200704)
    o += srd(sKd, 6, 7, 31, 262144)
    o += srd(sVd, 8, 9, 31, 262144)
    o += srd(sO, 12, 13, 33, 229376)
    o += srd(sP, 24, 25, 34, PART)
    if PROF:
        A(salu("s_mov_b32 s80, 0x%x" % PROF_OFF)); o += srd(76, 24, 25, 80, 65536)
    A(salu("s_cmp_eq_u32 %s, 7" % S(sWID))); A(salu("s_cbranch_scc1 L_loader"))
    o = pad_hazards(o)
    o += compute_wave() + loader_wave()
    o += [label("L_exit1"), salu("s_endpgm")]
    return o

def k2():
    o = []; A = o.append
    A(salu("s_cmp_ge_u32 s2, 784")); A(salu("s_cbranch_scc1 L_exit2"))
    A(salu("s_load_dwordx2 s[4:5], s[0:1], 80"))
    A(salu("s_load_dwordx2 s[6:7], s[0:1], 96"))
    A(valu("v_lshrrev_b32 v1, 6, v0", wr=[1], rd=[0]))
    A(valu("v_and_b32 v2, 63, v0", wr=[2], rd=[0]))
    A(valu("v_readfirstlane_b32 s3, v1", rd=[1], swr=[3]))
    A(valu("v_lshlrev_b32 v3, 4, v2", wr=[3], rd=[2]))
    A(salu("s_mul_i32 s8, s2, 1338")); A(salu("s_lshr_b32 s8, s8, 16"))
    A(salu("s_mul_i32 s9, s8, 49")); A(salu("s_sub_u32 s9, s2, s9")); A(salu("s_lshl_b32 s9, s9, 2")); A(salu("s_add_u32 s9, s9, s3"))
    A(salu("s_mul_i32 s10, s8, %d" % (16 * PART)))
    A(salu("s_lshl_b32 s11, s9, 10"))
    A(wait(lgkm=0))
    o += srd(12, 6, 7, 10, 16 * PART)
    for h in range(16):
        A(vmem("buffer_load_dwordx4 %s, v3, s[12:15], s11 offen%s" % (R(8 + 4 * h, 4), K2LD), wr=rr(8 + 4 * h, 4), rd=[3]))
        if h < 15: A(salu("s_add_u32 s11, s11, %d" % PART))
    A(salu("s_mul_i32 s16, s9, 4682")); A(salu("s_lshr_b32 s16, s16, 16"))
    A(salu("s_mul_i32 s17, s16, 14")); A(salu("s_sub_u32 s17, s9, s17"))
    A(salu("s_and_b32 s18, s8, 7")); A(salu("s_lshr_b32 s19, s8, 3"))
    A(salu("s_mul_i32 s18, s18, 224")); A(salu("s_lshl_b32 s16, s16, 4")); A(salu("s_add_u32 s18, s18, s16"))
    A(salu("s_mul_i32 s18, s18, 1792"))
    A(salu("s_mul_i32 s19, s19, 896")); A(salu("s_lshl_b32 s17, s17, 6")); A(salu("s_add_u32 s18, s18, s19")); A(salu("s_add_u32 s18, s18, s17"))
    A(salu("s_mov_b32 s20, s4")); A(salu("s_mov_b32 s21, s5")); A(salu("s_mov_b32 s22, %d" % (8 * 224 * 896 * 2))); A(salu("s_mov_b32 s23, 0x20000"))
    A(valu("v_and_b32 v4, 15, v2", wr=[4], rd=[2]))
    A(valu("v_mul_u32_u24 v4, 1792, v4", wr=[4], rd=[4]))
    A(valu("v_lshrrev_b32 v5, 4, v2", wr=[5], rd=[2]))
    A(valu("v_lshlrev_b32 v5, 1, v5", wr=[5], rd=[5]))
    A(valu("v_mov_b32 v6, 0xd8", wr=[6]))
    A(valu("v_lshrrev_b32 v5, v5, v6", wr=[5], rd=[5, 6]))
    A(valu("v_and_b32 v5, 3, v5", wr=[5], rd=[5]))
    A(valu("v_lshl_add_u32 v4, v5, 4, v4", wr=[4], rd=[4, 5]))
    acc = 72; tmp = 80
    for h in range(16):
        A(wait(vm=15 - h))
        for r in range(4):
            src = 8 + 4 * h + r
            if h == 0:
                A(valu("v_lshlrev_b32 %s, 16, %s" % (R(acc + 2 * r), R(src)), wr=[acc + 2 * r], rd=[src]))
                A(valu("v_and_b32 %s, 0xffff0000, %s" % (R(acc + 2 * r + 1), R(src)), wr=[acc + 2 * r + 1], rd=[src]))
            else:
                A(valu("v_lshlrev_b32 %s, 16, %s" % (R(tmp), R(src)), wr=[tmp], rd=[src]))
                A(valu("v_and_b32 %s, 0xffff0000, %s" % (R(src), R(src)), wr=[src], rd=[src]))
                A(v_add(acc + 2 * r, acc + 2 * r, tmp))
                A(v_add(acc + 2 * r + 1, acc + 2 * r + 1, src))
    for r in range(4): A(v_cvtpk(8 + r, acc + 2 * r, acc + 2 * r + 1))
    A(v_swap16(8, 10)); A(v_swap16(9, 11))
    A(vmem("buffer_store_dwordx4 v[8:11], v4, s[20:23], s18 offen", rd=[8, 9, 10, 11, 4], store=True))
    A(label("L_exit2")); A(salu("s_endpgm"))
    return pad_hazards(o)

def kd(name, vg, sg):
    return """.amdhsa_kernel %s
  .amdhsa_next_free_vgpr %d
  .amdhsa_next_free_sgpr %d
  .amdhsa_accum_offset %d
  .amdhsa_group_segment_fixed_size 0
  .amdhsa_kernarg_size 104
  .amdhsa_user_sgpr_count 2
  .amdhsa_user_sgpr_kernarg_segment_ptr 1
  .amdhsa_system_sgpr_workgroup_id_x 1
.end_amdhsa_kernel""" % (name, vg, sg, (vg + 3) // 4 * 4)

K1 = NAME + "_kernel"; K2 = "reduce_heads_kernel"
src = []
if ONLY != "k2": src.append("; @launch kernel=%s grid=(256,1,1) block=(512,1,1) lds=%d" % (K1, LDS_BYTES))
if ONLY != "k1": src.append("; @launch kernel=%s grid=(784,1,1) block=(256,1,1) lds=0" % K2)
src.append('.amdgcn_target "amdgcn-amd-amdhsa--gfx950"\n.text')
for nm, body in ((K1, k1()), (K2, k2())):
    src.append(".globl %s\n.p2align 8\n.type %s,@function\n%s:" % (nm, nm, nm))
    src.append(text(body))
src.append('.section .rodata,"a"\n.p2align 6')
src.append(kd(K1, 256, 96))
src.append(".p2align 6")
src.append(kd(K2, 88, 32))
open(OUT, "w").write("\n".join(src) + "\n")
print("wrote", OUT)
```

```python
import sys, math, struct
from asmlib import *

NAME = "concat_heads__mha_block_cached__gqa_block_cached__near_ridge"
PROF = "--prof" in sys.argv
def opt(name, default):
    for a in sys.argv:
        if a.startswith("--%s=" % name): return a.split("=", 1)[1]
    return default
KVFLAG = opt("kv", "_nt").replace("_", " ")
STFLAG = opt("st", "").replace("_", " ")
K2LD = opt("k2ld", "").replace("_", " ")
ONLY = opt("only", "")
RAMP = int(opt("ramp", "3"))
NOBP = "--nobp" in sys.argv
NOX = "--nox" in sys.argv
EPI = opt("epi", "sparse")
NOSM = "--nosm" in sys.argv
NOST = "--nost" in sys.argv
NODMA = "--nodma" in sys.argv
PVSP = opt("pvsp", "pack")
XSLOT = int(opt("xslot", "2")); XSLOT0 = int(opt("xslot0", "8"))
T1MODE = opt("t1", "stag")
STGAP = int(opt("stgap", "1"))
ROT = opt("rot", "0")
LIST = opt("list", "")
DBG = "--dbg" in sys.argv
if DBG: PROF = True
PFR = int(opt("pfr", "0"))
PFT0 = int(opt("pft0", "4")); PFS = int(opt("pfs", "1")); PFSH = int(opt("pfsh", "7")); PFFLAG = opt("pfflag", "").replace("_", " ")
PFN = int(opt("pfn", "1"))
PFW = int(opt("pfw", "7"))
PFSKIP = int(opt("pfskip", "0"))
OUT = [a for a in sys.argv[1:] if not a.startswith("--")]
OUT = OUT[0] if OUT else "cdna_kernels/%s.s" % NAME

SLOT = 16896; NSLOT = 9; ISTR = 1056
LDS_BYTES = 163840
PART = 200704
PROF_OFF = 64 << 20
CSCALE = math.log2(math.e) / 16.0
THR = 65536.0
def f2u(x): return struct.unpack("<I", struct.pack("<f", x))[0]

def ACC(qt, t): return 8 * t + 4 * qt
def OACC(s, qt, tau): return 32 * s + 8 * tau + 4 * qt
def QF(qt, u): return 128 + 32 * qt + 4 * u
def SR(qt, z): return 192 + 8 * qt + 4 * z
def PR(qt): return 208 + 4 * qt
def NM(qt): return 216 + 4 * qt
FB0 = 224
BUFSEQ = [0,1,2,3,4,5, 0,1,2,3,4, 0,1,2,3,4]; DEPTH = 5
vK, vT = 248, 249
def L(qt): return 250 + qt
def T(qt): return 252 + qt
TMP0, TMP1 = 254, 255
vT1, vXO, vBP = 252, 253, 254
vST = 248
def XF(qt, s):
    if s < 10: return 128 + 8 * (s % 8) + 4 * qt
    return 192 + 8 * (s - 10) + 4 * qt

sWID = 3
sX, sW, sKd, sVd, sO, sP = 36, 40, 44, 48, 52, 56
sC, sKT, sTHR, sKpos, sVpos, sDK, sDV, sPOS, sNEG, sCNT, sRET, sT0, sT1, sOFF = 60, 61, 62, 63, 64, 65, 66, 67, 68, 69, 70, 71, 72, 73
sXB = 74
sROT = 75
sPF = 90
vPF, vPFD = 250, 251
sFL = 86
sOR = 88

halves = [("W", i) for i in range(14)] + [("K", 0), ("K", 1)]
for i in range(1, 15): halves += [("V", i - 1), ("K", i + 1)]
halves += [("V", 14), ("V", 15)] + [("O", i) for i in range(14)]
assert len(halves) == 60
intervals = [[2 * i, 2 * i + 1] for i in range(30)]
def slot_idx(n): return n % 8 if n < 16 else (n - 16) % NSLOT
def slot_addr(n): return slot_idx(n) * SLOT
XPRIV = 8 * SLOT
X0ADDR = 6 * SLOT
XFREE = 6

class Half:
    def __init__(self, n, reads, mf, pre): self.n = n; self.reads = reads; self.mf = mf; self.pre = pre

def vadd_lit(reg, delta):
    return valu("v_add_u32 %s, 0x%x, %s" % (R(reg), delta & 0xffffffff, R(reg)), wr=[reg], rd=[reg])
def vadd_s(reg, s):
    return valu("v_add_u32 %s, %s, %s" % (R(reg), S(s), R(reg)), wr=[reg], rd=[reg])

def half_W(s, pre):
    def reads(f, b):
        a = vT1 if f & 1 else vT
        return [dsrtr(b, a, 32 * f), dsrtr(b + 2, a, 32 * f + 512)]
    def mf(f, b): return [mfma16(ACC(qt, f), b, XF(qt, s), None if s == 0 else ACC(qt, f)) for qt in range(2)]
    return Half(16, reads, mf, pre)
def half_W2(s, pre):
    assert slot_addr(s + 1) == slot_addr(s) + SLOT
    def reads(f, b):
        t, e = f >> 1, f & 1
        a = vT1 if t & 1 else vT
        return [dsrtr(b, a, e * SLOT + 32 * t), dsrtr(b + 2, a, e * SLOT + 32 * t + 512)]
    def mf(f, b):
        t, e = f >> 1, f & 1
        return [mfma16(ACC(qt, t), b, XF(qt, s + e), ACC(qt, t)) for qt in range(2)]
    return Half(32, reads, mf, pre)
def half_K(pre, first=False):
    def reads(f, b): return [dsr128(b, vK, 512 * (f & 1) + 64 * (f >> 1))]
    def mf(f, b):
        u, z = f >> 1, f & 1
        return [mfma16(SR(qt, z), b, QF(qt, u), (None if first else NM(qt)) if u == 0 else SR(qt, z)) for qt in range(2)]
    return Half(16, reads, mf, pre)
def half_V(pre, first=False):
    def reads(f, b): return [dsrtr(b, vT, 32 * f), dsrtr(b + 2, vT, 32 * f + 512)]
    def mf(f, b): return [mfma16(ACC(qt, f), b, PR(qt), None if first else ACC(qt, f)) for qt in range(2)]
    return Half(16, reads, mf, pre)
def half_O(hh, aset, pre):
    def reads(f, b):
        ks, tau = f >> 2, f & 3
        return [dsrtr(b, vT, 256 * ks + 32 * tau), dsrtr(b + 2, vT, 256 * ks + 128 + 32 * tau)]
    def mf(f, b):
        ks, tau = f >> 2, f & 3
        u = 4 * hh + ks
        return [mfma16(OACC(aset, qt, tau), b, QF(qt, u), None if u == 0 else OACC(aset, qt, tau)) for qt in range(2)]
    return Half(16, reads, mf, pre)

class Stream:
    def __init__(self):
        self.o = []; self.q = []; self.pend = []
    def buf(self, f): return FB0 + 4 * BUFSEQ[f % 16]
    def lds(self, ins, key): self.o.append(ins); self.q.append(key)
    def first_read(self, h, f):
        rs = h.reads(f, self.buf(f)); key = (id(h), f)
        self.pend = [(r, key) for r in rs[1:]]
        return (h.pre if f == 0 else []), [(rs[0], key)]
    def preload(self, h):
        for f in range(DEPTH):
            for r, k in self.pend: self.lds(r, k)
            pre, rs = self.first_read(h, f)
            self.o += pre
            for r, k in rs: self.lds(r, k)
    def rekey(self, hold, hnew):
        f = lambda k: (id(hnew), k[1]) if k[0] == id(hold) else k
        self.q = [f(k) for k in self.q]; self.pend = [(r, f(k)) for r, k in self.pend]
    def waitfor(self, keys):
        idx = [i for i, k in enumerate(self.q) if k in keys]
        if idx:
            last = max(idx); n = len(self.q) - 1 - last
            assert n <= 15
            self.o.append(wait(lgkm=n)); self.q = self.q[last + 1:]
    def run(self, h, nxt, fill=None, head=None, post=None, ldsx=None, needs=None):
        fill = fill or {}; head = head or {}; post = post or {}; ldsx = ldsx or {}; needs = needs or {}
        for f in range(h.n):
            ms = h.mf(f, self.buf(f))
            for k, m in enumerate(ms):
                sl = 2 * f + k
                self.o += head.get(sl, [])
                if k == 0:
                    assert not any(kk == (id(h), f) for _, kk in self.pend)
                    self.waitfor([(id(h), f)] + needs.get(f, []))
                self.o.append(m)
                pre, rs = [], []
                if k == 0:
                    rs = self.pend; self.pend = []
                else:
                    g = f + DEPTH
                    if g < h.n: pre, rs = self.first_read(h, g)
                    elif nxt is not None: pre, rs = self.first_read(nxt, g - h.n)
                self.o += fill.get(sl, []) + pre
                for r, kk in rs: self.lds(r, kk)
                for r, kk in ldsx.get(sl, []): self.lds(r, kk)
                self.o += post.get(sl, [])

def spread(ops, lo, hi, d=None):
    d = d if d is not None else {}
    n = hi - lo + 1
    for i, op in enumerate(ops): d.setdefault(lo + (i * n) // len(ops), []).append(op)
    return d
def cost(op):
    if op.kind == "vst": return 2 if STGAP else 0
    return 2 if op.kind == "trans" else (1 if op.kind in ("valu", "perm") else 0)
def pack(ops, lo, d=None, cap=2):
    d = d if d is not None else {}
    s = lo
    for op in ops:
        while sum(cost(x) for x in d.get(s, [])) + cost(op) > cap: s += 1
        d.setdefault(s, []).append(op)
    return d, s

def sm_ops():
    ops = []
    def s(qt, j): return SR(qt, 0) + j
    for j in range(0, 9):
        if j < 8:
            for qt in range(2): ops.append(v_exp(s(qt, j), s(qt, j)))
        if j >= 2:
            for qt in range(2):
                ops.append(v_add(T(qt), s(qt, 0), s(qt, 1)) if j == 2 else v_add(T(qt), T(qt), s(qt, j - 1)))
    return ops
def check_ops():
    return [v_max(TMP0, T(0), T(1)), valu("v_cmp_nge_f32 vcc, %s, %s" % (S(sTHR), R(TMP0)), rd=[TMP0], swr=["vcc"])]
def pcvt(qt, z): return [v_cvtpk(PR(qt) + 2 * z, SR(qt, z), SR(qt, z) + 1), v_cvtpk(PR(qt) + 2 * z + 1, SR(qt, z) + 2, SR(qt, z) + 3)]
def ladd(): return [v_add(L(qt), L(qt), T(qt)) for qt in range(2)]
def rowreduce(reg, tmp, op):
    return [v_mov(tmp, R(reg), [reg]), v_swap16(reg, tmp), op(reg, reg, tmp),
            v_mov(tmp, R(reg), [reg]), v_swap32(reg, tmp), op(reg, reg, tmp)]
def qk_head():
    head = {0: pcvt(0, 0)}
    fill = {0: pcvt(1, 0), 1: pcvt(0, 1), 2: pcvt(1, 1), 3: ladd()}
    return head, fill

def compute_wave():
    st = Stream(); o = st.o; A = o.append
    o += [label("L_compute")]
    A(valu("v_and_b32 v1, 63, v0", wr=[1], rd=[0]))
    A(valu("v_lshrrev_b32 v5, 2, v1", wr=[5], rd=[1]))
    A(valu("v_and_b32 v6, 3, v1", wr=[6], rd=[1]))
    A(salu("s_lshl_b32 %s, %s, 5" % (S(sT0), S(sWID))))
    A(valu("v_add_u32 v4, %s, v5" % S(sT0), wr=[4], rd=[5]))
    A(valu("v_mul_u32_u24 v4, 896, v4", wr=[4], rd=[4]))
    A(valu("v_lshrrev_b32 v7, 4, v1", wr=[7], rd=[1]))
    A(valu("v_sub_u32 v7, 0, v7", wr=[7], rd=[7]))
    A(valu("v_xor_b32 v7, v7, v6", wr=[7], rd=[7, 6]))
    A(valu("v_and_b32 v7, 3, v7", wr=[7], rd=[7]))
    A(valu("v_lshl_add_u32 %s, v7, 4, v4" % R(vXO), wr=[vXO], rd=[7, 4]))
    A(salu("s_movk_i32 %s, 14336" % S(sT1)))
    A(salu("s_lshl_b32 %s, %s, 12" % (S(sXB), S(sWID))))
    def xdma(r, base):
        ops = []
        for e in range(2):
            for qt in range(2):
                sidx = 2 * r + e
                ops.append([salu("s_add_u32 m0, %s, %d" % (S(sXB), base + (2 * e + qt) * 1024 - 64 * sidx)),
                            vmem("buffer_load_dwordx4 %s, %s, %s offen offset:%d lds" % (R(vXO), S(sX, 4), S(sT1) if qt else "0", 64 * sidx), rd=[vXO])])
        return ops
    def xread(r, base):
        return [(dsr128(XF(qt, 2 * r + e), vBP, base - X0ADDR + (2 * e + qt) * 1024), ("x", r)) for e in range(2) for qt in range(2)]
    for g in xdma(0, X0ADDR) + xdma(1, XPRIV): o += g
    A(valu("v_mul_u32_u24 v5, %d, v5" % ISTR, wr=[5], rd=[5]))
    A(valu("v_lshl_add_u32 %s, v6, 3, v5" % R(vT), wr=[vT], rd=[5, 6]))
    A(valu("v_xor_b32 %s, 16, %s" % (R(vT1), R(vT)), wr=[vT1], rd=[vT]))
    A(valu("v_and_b32 v2, 15, v1", wr=[2], rd=[1]))
    A(valu("v_lshrrev_b32 v3, 4, v1", wr=[3], rd=[1]))
    A(valu("v_lshrrev_b32 v6, 2, v2", wr=[6], rd=[2]))
    A(valu("v_sub_u32 v6, 0, v6", wr=[6], rd=[6]))
    A(valu("v_xor_b32 v6, v6, v3", wr=[6], rd=[6, 3]))
    A(valu("v_and_b32 v6, 3, v6", wr=[6], rd=[6]))
    A(valu("v_lshl_add_u32 v6, v2, 2, v6", wr=[6], rd=[2, 6]))
    A(valu("v_lshlrev_b32 v6, 4, v6", wr=[6], rd=[6]))
    A(valu("v_add_u32 v6, %s, v6" % S(sXB), wr=[6], rd=[6]))
    A(valu("v_add_u32 %s, 0x%x, v6" % (R(vBP), X0ADDR), wr=[vBP], rd=[6]))
    A(valu("v_lshlrev_b32 v6, 1, v3", wr=[6], rd=[3]))
    A(valu("v_mov_b32 v7, 0x9c", wr=[7]))
    A(valu("v_lshrrev_b32 v6, v6, v7", wr=[6], rd=[6, 7]))
    A(valu("v_and_b32 v6, 3, v6", wr=[6], rd=[6]))
    A(valu("v_mul_u32_u24 v5, %d, v2" % ISTR, wr=[5], rd=[2]))
    A(valu("v_lshl_add_u32 %s, v6, 4, v5" % R(vK), wr=[vK], rd=[5, 6]))
    A(vadd_lit(vK, slot_addr(14)))
    A(salu("s_mov_b32 %s, 0x%x" % (S(sC), f2u(CSCALE))))
    A(salu("s_mov_b32 %s, 0x%x" % (S(sTHR), f2u(THR))))
    A(salu("s_mov_b32 %s, %d" % (S(sPOS), 2 * SLOT)))
    A(salu("s_mov_b32 %s, %d" % (S(sNEG), -7 * SLOT)))
    A(valu("v_lshlrev_b32 %s, %d, v1" % (R(vPF), PFSH), wr=[vPF], rd=[1]))
    A(salu("s_and_b32 %s, %s, 3" % (S(sPF + 2), S(sWID)))); A(salu("s_lshl_b32 %s, %s, 1" % (S(sPF + 2), S(sPF + 2))))
    A(salu("s_lshr_b32 %s, %s, 2" % (S(sPF), S(sWID)))); A(salu("s_add_u32 %s, %s, %s" % (S(sPF + 2), S(sPF + 2), S(sPF))))
    A(salu("s_cmp_lt_u32 %s, %d" % (S(sPF + 2), PFW))); A(salu("s_cselect_b32 %s, %s, 256" % (S(sPF + 2), S(sPF + 2))))
    pfc = [0]
    def pf():
        lg = 14 - (PFSH + 6)
        c = pfc[0]; pfc[0] += 1
        return [salu("s_add_u32 %s, %s, %d" % (S(sPF), S(sPF + 2), PFW * c)),
                salu("s_and_b32 %s, %s, %d" % (S(sPF + 1), S(sPF), (1 << lg) - 1)),
                salu("s_lshl_b32 %s, %s, %d" % (S(sPF + 1), S(sPF + 1), PFSH + 6)),
                salu("s_lshr_b32 %s, %s, %d" % (S(sPF), S(sPF), lg)),
                salu("s_mul_i32 %s, %s, %d" % (S(sPF), S(sPF), PFS * 16384)),
                salu("s_add_u32 %s, %s, %s" % (S(sPF), S(sPF), S(sPF + 1))),
                salu("s_add_u32 %s, %s, %d" % (S(sPF), S(sPF), PFT0 * 16384)),
                vmem("buffer_load_dword %s, %s, %s, %s offen%s" % (R(vPFD), R(vPF), S(sVd, 4), S(sPF), PFFLAG), wr=[vPFD], rd=[vPF])]
    A(wait(vm=4))
    for r, k in xread(0, X0ADDR): st.lds(r, k)
    A(wait(lgkm=0)); st.q = []
    def wpre(n):
        if n == 0: return []
        d = slot_addr(n) - slot_addr(n - 1)
        return [vadd_lit(vT, d), vadd_lit(vT1, d)]
    HW = [half_W(s, wpre(s)) for s in range(12)] + [half_W2(12, wpre(12))]
    HK0 = half_K([], first=True)
    A(barrier())
    st.preload(HW[0])
    def qconv(u):
        ops = []
        for qt in range(2):
            for e in range(2):
                a = ACC(qt, 2 * u + e)
                for h in range(2):
                    for r in range(2): ops.append(valu("v_mul_f32 %s, %s, %s" % (R(a + 2 * h + r), S(sC), R(a + 2 * h + r)), wr=[a + 2 * h + r], rd=[a + 2 * h + r]))
                    ops.append(v_cvtpk(QF(qt, u) + 2 * e + h, a + 2 * h, a + 2 * h + 1))
        for qt in range(2):
            for h in range(2): ops.append(v_swap16(QF(qt, u) + h, QF(qt, u) + 2 + h))
        return ops
    for s in range(12):
        post = {}; ldsx = {}; head = {}; needs = {}
        if not (s & 1):
            r = s // 2 + 1
            st0 = XSLOT0 if s == 0 else XSLOT
            head[st0] = [wait(vm=PFN if PFSKIP + 1 <= s // 2 <= PFR else 0)]
            for i, e in enumerate(xread(r, XPRIV)): ldsx.setdefault(st0 + 2 * i, []).append(e)
            fd = (st0 + 6) // 2 + 4
            assert fd + 4 <= 16
            needs[fd] = [("x", r)]
            if r + 1 < 7:
                for i, g in enumerate(xdma(r + 1, XPRIV)):
                    head.setdefault(2 * fd + 2 * i + 1, []).append(g[0]); post.setdefault(2 * fd + 2 * i + 1, []).append(g[1])
        elif PFSKIP <= s // 2 < PFR:
            ops = []
            for _ in range(PFN): ops += pf()
            for i, x in enumerate(ops): post.setdefault(i, []).append(x)
        st.run(HW[s], HW[s + 1], None, head, post, ldsx, needs)
        if s & 1: A(barrier())
    allc = [(u, op) for u in range(8) for op in qconv(u)]
    post = {}; i = 0
    for sl in range(64):
        if i < len(allc) and sl >= 8 * allc[i][0] + 11:
            post[sl] = [allc[i][1]]; i += 1
    st.run(HW[12], HK0, None, None, post)
    rest = allc[i:]
    caps = []
    for sl in range(26): caps += [sl] * (1 if sl & 1 else 2)
    take = 0
    while take < len(caps) and take < len(rest):
        cand = rest[len(rest) - take - 1:]
        if all(caps[k] < 4 * cand[k][0] - 2 for k in range(len(cand))): take += 1
        else: break
    blk = [op for _, op in rest[:len(rest) - take]]
    postK = {}
    for k, (u, op) in enumerate(rest[len(rest) - take:]): postK.setdefault(caps[k], []).append(op)
    print("conv: woven W", i, "block", len(blk), "woven K", take)
    A(salu("s_cmp_lt_u32 %s, 4" % S(sWID))); A(salu("s_cbranch_scc1 L_t1a")); A(barrier()); A(label("L_t1a"))
    A(nop(3))
    o += blk
    A(salu("s_cbranch_scc0 L_t1b")); A(barrier()); A(label("L_t1b"))
    HK1 = half_K([vadd_lit(vK, slot_addr(15) - slot_addr(14))])
    st.run(HK0, HK1, None, None, postK)
    A(salu("s_mov_b32 %s, %d" % (S(sKpos), slot_addr(17))))
    A(salu("s_mov_b32 %s, %d" % (S(sVpos), slot_addr(16))))
    A(salu("s_mov_b32 %s, 13" % S(sCNT)))
    A(salu("s_mov_b32 %s, 0" % S(sRET)))
    A(salu("s_add_u32 %s, %s, 16384" % (S(sKT), S(sROT))))
    ma = []; mb = []
    for qt, lst in ((0, ma), (1, mb)):
        s0 = SR(qt, 0); m = NM(qt)
        lst += [v_max3(m, s0, s0 + 1, s0 + 2), v_max3(m, m, s0 + 3, s0 + 4), v_max3(m, m, s0 + 5, s0 + 6), v_max(m, m, s0 + 7)]
        lst += rowreduce(m, TMP0 + qt, v_max)
    for a, b in zip(ma, mb): o += [a, b]
    for j in range(8):
        for qt in range(2): A(v_sub(SR(qt, 0) + j, SR(qt, 0) + j, NM(qt)))
    for qt in range(2):
        m = NM(qt)
        A(valu("v_sub_f32 %s, 0, %s" % (R(m), R(m)), wr=[m], rd=[m]))
        for j in range(1, 4): A(v_mov(m + j, R(m), [m]))
        A(v_mov(L(qt), "0"))
    o += sm_ops()
    HVn = half_V([vadd_lit(vT, slot_addr(16) - slot_addr(12))])
    head, fill = qk_head()
    st.run(HK1, HVn, fill, head)
    pre_loop = list(o)

    def pv_fill():
        if NOSM: return pack(check_ops(), 0)[0]
        if PVSP == "spread":
            ops = sm_ops() + check_ops()
            return {i: [op] for i, op in enumerate(ops)}
        d, n = pack(sm_ops() + check_ops(), 0)
        assert n < 31
        return d
    def slotcalc():
        return [salu("s_cmp_gt_u32 %s, %d" % (S(sKpos), 6 * SLOT)), salu("s_cselect_b32 %s, %s, %s" % (S(sDK), S(sNEG), S(sPOS))),
                salu("s_add_u32 %s, %s, %s" % (S(sKpos), S(sKpos), S(sDK))),
                salu("s_cmp_gt_u32 %s, %d" % (S(sVpos), 6 * SLOT)), salu("s_cselect_b32 %s, %s, %s" % (S(sDV), S(sNEG), S(sPOS))),
                salu("s_add_u32 %s, %s, %s" % (S(sVpos), S(sVpos), S(sDV)))]
    HKn = half_K([])
    def pv_part(first, nxt, extra):
        HV = half_V([], first=first); st.rekey(HVn, HV)
        st.o.append(barrier())
        post = {}
        for i, x in enumerate(extra): post.setdefault(2 * i, []).append(x)
        st.run(HV, nxt, pv_fill(), None, post)
    def qk_part(extra):
        HK = half_K([]); st.rekey(HKn, HK)
        nxt = half_V([vadd_s(vT, sDV)])
        head, fill = qk_head()
        post = {}
        for i, x in enumerate(extra): post.setdefault(4 + 2 * i, []).append(x)
        st.run(HK, nxt, fill, head, post)
        st.rekey(nxt, HVn)
    ktadd = salu("s_add_u32 %s, %s, 16384" % (S(sKT), S(sKT)))
    st.o = []; fb = st.o
    nk = half_K([vadd_s(vK, sDK)])
    pv_part(True, nk, [salu("s_mov_b32 %s, %d" % (S(sDK), slot_addr(17) - slot_addr(15)))] + slotcalc()[3:] + [salu("s_mov_b64 %s, 0" % S(sFL, 2))]); st.rekey(nk, HKn)
    fb.append(salu("s_cbranch_vccnz L_rare"))
    q0 = (list(st.q), [k for _, k in st.pend])
    st.o = []; lb = st.o
    qk_part([ktadd])
    nk = half_K([vadd_s(vK, sDK)])
    pv_part(False, nk, slotcalc() + [salu("s_sub_u32 %s, %s, 1" % (S(sCNT), S(sCNT))), salu("s_cmp_eq_u32 %s, 0" % S(sCNT)),
                                     salu("s_cselect_b32 %s, 1, 0" % S(sFL)), salu("s_mov_b32 %s, %s" % (S(sRET), S(sFL)))]); st.rekey(nk, HKn)
    lb.append(salu("s_or_b64 %s, vcc, %s" % (S(sOR, 2), S(sFL, 2))))
    lb.append(salu("s_cbranch_scc0 L_loop"))
    assert (st.q, [k for _, k in st.pend]) == q0
    st.o = []; o2 = st.o; A = o2.append
    A(salu("s_cbranch_vccnz L_rare")); A(label("L_ret1"))
    qk_part([ktadd, salu("s_mov_b32 %s, 2" % S(sRET))])
    def opre(n): return [vadd_lit(vT, slot_addr(n) - slot_addr(n - 1))]
    HO = [half_O(i & 1, (i >> 1) % 4, opre(46 + i)) for i in range(14)]
    HV15 = half_V(opre(45))
    pv_part(False, HV15, [])
    A(salu("s_cbranch_vccnz L_rare")); A(label("L_ret2"))
    def oconv(u):
        ops = []
        for qt in range(2):
            for e in range(2):
                a = ACC(qt, 2 * u + e)
                for h in range(2): ops.append(v_cvtpk(QF(qt, u) + 2 * e + h, a + 2 * h, a + 2 * h + 1))
        return ops
    o2 += pcvt(0, 0) + pcvt(0, 1) + pcvt(1, 0) + pcvt(1, 1)
    r0 = rowreduce(L(0), TMP0, v_add); r1 = rowreduce(L(1), TMP1, v_add)
    lops = ladd() + [x for ab in zip(r0, r1) for x in ab]
    fill, nx = pack(lops, 0)
    for u in range(8): fill, nx = pack(oconv(u), max(nx, 4 * u + 7), fill)
    lop2 = [trans("v_rcp_f32 %s, %s" % (R(L(qt)), R(L(qt))), wr=[L(qt)], rd=[L(qt)]) for qt in range(2)]
    lop2 += [valu("v_mbcnt_lo_u32_b32 %s, -1, 0" % R(vST), wr=[vST]), valu("v_mbcnt_hi_u32_b32 %s, -1, %s" % (R(vST), R(vST)), wr=[vST], rd=[vST]),
             salu("s_mul_i32 %s, %s, 28672" % (S(sT0), S(sWID))),
             valu("v_lshlrev_b32 %s, 4, %s" % (R(vST), R(vST)), wr=[vST], rd=[vST]), vadd_s(vST, sT0)]
    fill, nx = pack(lop2, nx, fill)
    st.run(HV15, HO[0], {k: v for k, v in fill.items() if k < 32})
    carry = {k - 32: v for k, v in fill.items() if k >= 32}
    def epi(j):
        ops = []; aset = j % 4
        for qt in range(2):
            for hf in range(2):
                dst = SR(qt, hf)
                for e in range(2):
                    a = OACC(aset, qt, 2 * hf + e)
                    for r in range(4): ops.append(v_mul(a + r, a + r, L(qt)))
                    for h in range(2): ops.append(v_cvtpk(dst + 2 * e + h, a + 2 * h, a + 2 * h + 1))
                if hf == 0: ops.append(salu("s_mov_b32 %s, %d" % (S(sOFF), qt * 14336 + j * 2048)))
                if not NOST: ops.append(vmem("buffer_store_dwordx4 %s, %s, %s, %s offen offset:%d%s" % (R(dst, 4), R(vST), S(sP, 4), S(sOFF), 1024 * hf, STFLAG),
                                rd=list(rr(dst, 4)) + [vST], store=True))
        return ops
    for i in range(14):
        j = i >> 1
        if not (i & 1): A(barrier())
        fill = {}
        if i == 0: fill = carry
        elif j >= 1 and not (i & 1) and EPI == "sparse": fill, _ = pack(epi(j - 1), 1)
        post = {}
        if j >= 1 and EPI == "dense":
            d, _ = pack(epi(j - 1), 2, None, 1)
            post = {k - 32 * (i & 1): v for k, v in d.items() if (k >> 5) == (i & 1)}
        st.run(HO[i], HO[i + 1] if i < 13 else None, fill, None, post)
    o2 += epi(6)
    if PROF:
        A(wait(vm=0)); A(barrier())
    A(salu("s_endpgm"))
    rp = [label("L_rare"), nop(15)]
    rp += [valu("v_mbcnt_lo_u32_b32 %s, -1, 0" % R(TMP0), wr=[TMP0]), valu("v_mbcnt_hi_u32_b32 %s, -1, %s" % (R(TMP0), R(TMP0)), wr=[TMP0], rd=[TMP0]),
           valu("v_lshrrev_b32 %s, 4, %s" % (R(TMP1), R(TMP0)), wr=[TMP1], rd=[TMP0]),
           valu("v_lshlrev_b32 %s, 1, %s" % (R(TMP1), R(TMP1)), wr=[TMP1], rd=[TMP1]),
           v_mov(T(0), "0x9c"),
           valu("v_lshrrev_b32 %s, %s, %s" % (R(TMP1), R(TMP1), R(T(0))), wr=[TMP1], rd=[TMP1, T(0)]),
           valu("v_and_b32 %s, 3, %s" % (R(TMP1), R(TMP1)), wr=[TMP1], rd=[TMP1]),
           valu("v_lshlrev_b32 %s, 4, %s" % (R(TMP1), R(TMP1)), wr=[TMP1], rd=[TMP1]),
           valu("v_and_b32 %s, 15, %s" % (R(TMP0), R(TMP0)), wr=[TMP0], rd=[TMP0]),
           valu("v_lshl_add_u32 %s, %s, 9, %s" % (R(TMP0), R(TMP0), R(TMP1)), wr=[TMP0], rd=[TMP0, TMP1]),
           salu("s_and_b32 %s, %s, 0x3ffff" % (S(sKT), S(sKT))),
           salu("s_add_u32 %s, %s, 8192" % (S(sT0), S(sKT)))]
    for u in range(8):
        for z in range(2):
            rp.append(vmem("buffer_load_dwordx4 %s, %s, %s, %s offen offset:%d" % (R(PR(z), 4), R(TMP0), S(sKd, 4), S(sT0 if z else sKT), 64 * u), wr=rr(PR(z), 4), rd=[TMP0]))
        rp.append(wait(vm=0))
        for z in range(2):
            for qt in range(2): rp.append(mfma16(SR(qt, z), PR(z), QF(qt, u), NM(qt) if u == 0 else SR(qt, z)))
        rp.append(nop(7))
    rp.append(nop(15))
    for qt in range(2):
        s0 = SR(qt, 0); d = T(qt)
        rp += [v_max3(d, s0, s0 + 1, s0 + 2), v_max3(d, d, s0 + 3, s0 + 4), v_max3(d, d, s0 + 5, s0 + 6), v_max(d, d, s0 + 7)]
        rp += rowreduce(d, TMP0, v_max)
        rp.append(valu("v_max_f32 %s, 0, %s" % (R(d), R(d)), wr=[d], rd=[d]))
        for j in range(8): rp.append(v_sub(s0 + j, s0 + j, d))
        for j in range(4): rp.append(v_sub(NM(qt) + j, NM(qt) + j, d))
        rp.append(trans("v_exp_f32 %s, -%s" % (R(TMP1), R(d)), wr=[TMP1], rd=[d]))
        rp.append(v_mul(L(qt), L(qt), TMP1))
        for t in range(16):
            for r in range(4): rp.append(v_mul(ACC(qt, t) + r, ACC(qt, t) + r, TMP1))
    rp += sm_ops()
    rp += [nop(7), salu("s_cmp_eq_u32 %s, 0" % S(sRET)), salu("s_cbranch_scc1 L_loop"),
           salu("s_cmp_eq_u32 %s, 1" % S(sRET)), salu("s_cbranch_scc1 L_ret1"), salu("s_branch L_ret2")]
    pre_loop = pad_hazards(pre_loop)
    fb = pad_hazards(fb, prefix=pre_loop)
    lb = pad_hazards(lb, prefix=fb)
    lb = pad_hazards(lb, prefix=lb)
    assert not check_hazards(pre_loop + fb + lb + lb)
    o2 = pad_hazards(o2, prefix=lb)
    rp = pad_hazards(rp)
    return pre_loop + fb + [directive(".p2align 6"), label("L_loop")] + lb + o2 + rp

def loader_wave():
    o = []; A = o.append
    vKV, vW, vO, vSTAMP = 1, 2, 3, 10
    A(label("L_loader"))
    A(salu("s_setprio 3"))
    A(valu("v_and_b32 v4, 63, v0", wr=[4], rd=[0]))
    A(valu("v_and_b32 v5, 31, v4", wr=[5], rd=[4]))
    A(valu("v_lshlrev_b32 v5, 4, v5", wr=[5], rd=[5]))
    A(valu("v_lshrrev_b32 v6, 5, v4", wr=[6], rd=[4]))
    A(valu("v_lshl_add_u32 %s, v6, 15, v5" % R(vW), wr=[vW], rd=[5, 6]))
    A(valu("v_lshl_add_u32 %s, v6, 13, v5" % R(vKV), wr=[vKV], rd=[5, 6]))
    A(valu("v_and_b32 v5, 7, v4", wr=[5], rd=[4]))
    A(valu("v_lshlrev_b32 v5, 4, v5", wr=[5], rd=[5]))
    A(valu("v_lshrrev_b32 v6, 3, v4", wr=[6], rd=[4]))
    A(valu("v_mul_u32_u24 v6, 14336, v6", wr=[6], rd=[6]))
    A(valu("v_add_u32 %s, v5, v6" % R(vO), wr=[vO], rd=[5, 6]))
    issued = []
    nstamp = [0]
    def stamp():
        if not PROF: return
        A(salu("s_memtime s[80:81]")); A(wait(lgkm=0))
        A(valu("v_writelane_b32 %s, s80, %d" % (R(vSTAMP), nstamp[0]), wr=[vSTAMP])); nstamp[0] += 1
    def issue(n):
        nonlocal issued
        if len(issued) > 47:
            A(wait(vm=47)); issued = issued[-47:]
        typ, idx = halves[n]
        if typ == "W": srd_, vo, base = sW, vW, idx * 32 * 8192
        elif typ == "K": srd_, vo, base = sKd, vKV, idx * 16384
        elif typ == "V": srd_, vo, base = sVd, vKV, idx * 16384
        else: srd_, vo, base = sO, vO, (idx & 1) * 128 * 896 + (idx >> 1) * 128
        A(salu("s_mov_b32 m0, %d" % slot_addr(n)))
        if typ in "KV":
            A(salu("s_add_u32 %s, %s, %d" % (S(sOFF), S(sROT), base))); A(salu("s_and_b32 %s, %s, 0x3ffff" % (S(sOFF), S(sOFF))))
        else: A(salu("s_mov_b32 %s, %d" % (S(sOFF), base)))
        for i in range(16):
            if i:
                A(salu("s_addk_i32 m0, %d" % ISTR))
                if typ == "W": step = 8192 if i & 3 else 5 * 8192
                elif typ == "O": step = 896
                else: step = 512
                if step < 32768: A(salu("s_addk_i32 %s, %d" % (S(sOFF), step)))
                else: A(salu("s_add_u32 %s, %s, %d" % (S(sOFF), S(sOFF), step)))
            A(vmem("buffer_load_dwordx4 %s, %s, %s offen%s lds" % (R(vo), S(srd_, 4), S(sOFF), KVFLAG if typ in "KV" else ""), rd=[vo]))
            issued.append(n)
    def landed(n):
        nonlocal issued
        idx = [i for i, k in enumerate(issued) if k <= n]
        if idx:
            cnt = len(issued) - 1 - max(idx)
            A(wait(vm=cnt)); issued = issued[max(idx) + 1:]
    if PROF: A(v_mov(vSTAMP, "0"))
    stamp()
    nxt = 0
    for k, iv in enumerate(intervals):
        consumed = sum(len(x) for x in intervals[:max(k - 1, 0)])
        def free(n):
            if n < 6: return True
            if n < 8: return k >= 1
            if n < 24: return n - 8 < consumed
            if n == 24: return k >= XFREE + 1
            return n - 9 < consumed
        limit = nxt
        while limit < 60 and free(limit): limit += 1
        needn = min(iv[-1] + 1, 59)
        if k == 5: needn = 13
        limit = min(limit, max(needn + 1, 4 if k == 0 else nxt + RAMP))
        while nxt < limit:
            if not (NODMA and nxt >= 9): issue(nxt)
            nxt += 1
        assert nxt > needn
        landed(needn)
        A(barrier())
        stamp()
    if PROF:
        A(barrier()); stamp()
        A(salu("s_memrealtime s[80:81]")); A(wait(lgkm=0))
        A(salu("s_sub_u32 s80, s80, s82"))
        A(valu("v_writelane_b32 %s, s80, 62" % R(vSTAMP), wr=[vSTAMP]))
        A(salu("s_getreg_b32 s80, hwreg(HW_REG_XCC_ID)"))
        A(valu("v_writelane_b32 %s, s80, 61" % R(vSTAMP), wr=[vSTAMP]))
        A(valu("v_writelane_b32 %s, s84, 63" % R(vSTAMP), wr=[vSTAMP]))
        A(valu("v_writelane_b32 %s, s82, 60" % R(vSTAMP), wr=[vSTAMP]))
        A(valu("v_lshlrev_b32 v4, 2, v4", wr=[4], rd=[4]))
        A(salu("s_lshl_b32 s80, s2, 8"))
        A(vmem("buffer_store_dword %s, v4, s[76:79], s80 offen" % R(vSTAMP), rd=[vSTAMP, 4], store=True))
        A(wait(vm=0))
        if DBG:
            A(salu("s_cmp_lg_u32 s2, 37")); A(salu("s_cbranch_scc1 L_exit1"))
            A(salu("s_load_dwordx2 s[92:93], s[0:1], 88")); A(wait(lgkm=0))
            A(salu("s_mov_b32 s94, 64")); A(salu("s_mov_b32 s95, 0x20000"))
            picks = [0, 1, 2, 3, 5, 8, 9, 13, 17, 21, 24, 26, 28, 30, 31]
            A(v_mov(11, "0"))
            for i, p in enumerate(picks):
                A(valu("v_readlane_b32 s80, %s, %d" % (R(vSTAMP), p), rd=[vSTAMP], swr=[80])); A(nop(3))
                A(salu("s_sub_u32 s80, s80, s84")); A(valu("v_writelane_b32 v11, s80, %d" % i, wr=[11]))
            A(valu("v_readlane_b32 s80, %s, 62" % R(vSTAMP), rd=[vSTAMP], swr=[80])); A(nop(3)); A(valu("v_writelane_b32 v11, s80, 15", wr=[11]))
            A(nop(3))
            A(vmem("buffer_store_dword v11, v4, s[92:95], 0 offen", rd=[11, 4], store=True))
            A(wait(vm=0))
    A(salu("s_endpgm"))
    return pad_hazards(o)

def srd(d, lo, hi, off_s, size):
    o = [salu("s_add_u32 %s, %s, %s" % (S(d), S(lo), S(off_s))), salu("s_addc_u32 %s, %s, 0" % (S(d + 1), S(hi)))]
    o.append(salu("s_mov_b32 %s, %s" % (S(d + 2), size if isinstance(size, str) else "0x%x" % size)))
    o.append(salu("s_mov_b32 %s, 0x20000" % S(d + 3)))
    return o

def k1():
    o = []; A = o.append
    A(salu("s_cmp_ge_u32 s2, 256")); A(salu("s_cbranch_scc1 L_exit1"))
    if PROF:
        A(salu("s_memrealtime s[82:83]")); A(salu("s_memtime s[84:85]"))
    A(salu("s_load_dwordx16 s[4:19], s[0:1], 0"))
    A(salu("s_load_dwordx4 s[20:23], s[0:1], 64"))
    A(salu("s_load_dwordx2 s[24:25], s[0:1], 96"))
    A(valu("v_lshrrev_b32 v1, 6, v0", wr=[1], rd=[0]))
    A(salu("s_and_b32 s26, s2, 3")); A(salu("s_lshl_b32 s26, s26, 2")); A(salu("s_lshr_b32 s27, s2, 6")); A(salu("s_add_u32 s26, s26, s27"))
    A(valu("v_readfirstlane_b32 %s, v1" % S(sWID), rd=[1], swr=[sWID]))
    A(salu("s_lshr_b32 s27, s2, 3")); A(salu("s_and_b32 s27, s27, 7"))
    A(salu("s_lshr_b32 s28, s2, 2")); A(salu("s_and_b32 s28, s28, 1"))
    A(salu("s_lshl_b32 s29, s27, 4")); A(salu("s_add_u32 s29, s29, s26"))
    A(salu("s_mul_i32 s30, s27, 200704"))
    A(salu("s_lshl_b32 s31, s29, 18"))
    A(salu("s_lshl_b32 s32, s26, 9"))
    A(salu("s_mul_i32 s33, s26, 229376"))
    A(salu("s_lshl_b32 s34, s28, 7")); A(salu("s_add_u32 s34, s34, s29")); A(salu("s_mul_i32 s34, s34, %d" % PART))
    A(salu("s_sub_u32 s35, %d, s32" % (448 * 8192)))
    if ROT == "0": A(salu("s_mov_b32 %s, 0" % S(sROT)))
    elif ROT == "1":
        A(salu("s_lshr_b32 %s, s2, 3" % S(sROT))); A(salu("s_and_b32 %s, %s, 15" % (S(sROT), S(sROT)))); A(salu("s_lshl_b32 %s, %s, 14" % (S(sROT), S(sROT))))
    elif ROT == "2":
        A(salu("s_and_b32 %s, s2, 15" % S(sROT))); A(salu("s_lshl_b32 %s, %s, 14" % (S(sROT), S(sROT))))
    elif ROT == "3":
        A(salu("s_lshr_b32 %s, s2, 4" % S(sROT))); A(salu("s_add_u32 %s, %s, s2" % (S(sROT), S(sROT)))); A(salu("s_and_b32 %s, %s, 15" % (S(sROT), S(sROT)))); A(salu("s_lshl_b32 %s, %s, 14" % (S(sROT), S(sROT))))
    A(salu("s_cmp_eq_u32 s28, 0"))
    A(wait(lgkm=0))
    for i in range(5): A(salu("s_cselect_b64 %s, %s, %s" % (S(4 + 2 * i, 2), S(4 + 2 * i, 2), S(14 + 2 * i, 2))))
    o += srd(sW, 10, 11, 32, "s35")
    o += srd(sX, 4, 5, 30, 200704)
    o += srd(sKd, 6, 7, 31, 262144)
    o += srd(sVd, 8, 9, 31, 262144)
    o += srd(sO, 12, 13, 33, 229376)
    o += srd(sP, 24, 25, 34, PART)
    if PROF:
        A(salu("s_mov_b32 s80, 0x%x" % PROF_OFF)); o += srd(76, 24, 25, 80, 65536)
    A(salu("s_cmp_eq_u32 %s, 7" % S(sWID))); A(salu("s_cbranch_scc1 L_loader"))
    o = pad_hazards(o)
    o += compute_wave() + loader_wave()
    o += [label("L_exit1"), salu("s_endpgm")]
    return o

def k2():
    o = []; A = o.append
    A(salu("s_cmp_ge_u32 s2, 784")); A(salu("s_cbranch_scc1 L_exit2"))
    A(salu("s_load_dwordx2 s[4:5], s[0:1], 80"))
    A(salu("s_load_dwordx2 s[6:7], s[0:1], 96"))
    A(valu("v_lshrrev_b32 v1, 6, v0", wr=[1], rd=[0]))
    A(valu("v_and_b32 v2, 63, v0", wr=[2], rd=[0]))
    A(valu("v_readfirstlane_b32 s3, v1", rd=[1], swr=[3]))
    A(valu("v_lshlrev_b32 v3, 4, v2", wr=[3], rd=[2]))
    A(salu("s_mul_i32 s8, s2, 1338")); A(salu("s_lshr_b32 s8, s8, 16"))
    A(salu("s_mul_i32 s9, s8, 49")); A(salu("s_sub_u32 s9, s2, s9")); A(salu("s_lshl_b32 s9, s9, 2")); A(salu("s_add_u32 s9, s9, s3"))
    A(salu("s_mul_i32 s10, s8, %d" % (16 * PART)))
    A(salu("s_lshl_b32 s11, s9, 10"))
    A(wait(lgkm=0))
    o += srd(12, 6, 7, 10, 16 * PART)
    for h in range(16):
        A(vmem("buffer_load_dwordx4 %s, v3, s[12:15], s11 offen%s" % (R(8 + 4 * h, 4), K2LD), wr=rr(8 + 4 * h, 4), rd=[3]))
        if h < 15: A(salu("s_add_u32 s11, s11, %d" % PART))
    A(salu("s_mul_i32 s16, s9, 4682")); A(salu("s_lshr_b32 s16, s16, 16"))
    A(salu("s_mul_i32 s17, s16, 14")); A(salu("s_sub_u32 s17, s9, s17"))
    A(salu("s_and_b32 s18, s8, 7")); A(salu("s_lshr_b32 s19, s8, 3"))
    A(salu("s_mul_i32 s18, s18, 224")); A(salu("s_lshl_b32 s16, s16, 4")); A(salu("s_add_u32 s18, s18, s16"))
    A(salu("s_mul_i32 s18, s18, 1792"))
    A(salu("s_mul_i32 s19, s19, 896")); A(salu("s_lshl_b32 s17, s17, 6")); A(salu("s_add_u32 s18, s18, s19")); A(salu("s_add_u32 s18, s18, s17"))
    A(salu("s_mov_b32 s20, s4")); A(salu("s_mov_b32 s21, s5")); A(salu("s_mov_b32 s22, %d" % (8 * 224 * 896 * 2))); A(salu("s_mov_b32 s23, 0x20000"))
    A(valu("v_and_b32 v4, 15, v2", wr=[4], rd=[2]))
    A(valu("v_mul_u32_u24 v4, 1792, v4", wr=[4], rd=[4]))
    A(valu("v_lshrrev_b32 v5, 4, v2", wr=[5], rd=[2]))
    A(valu("v_lshlrev_b32 v5, 1, v5", wr=[5], rd=[5]))
    A(valu("v_mov_b32 v6, 0xd8", wr=[6]))
    A(valu("v_lshrrev_b32 v5, v5, v6", wr=[5], rd=[5, 6]))
    A(valu("v_and_b32 v5, 3, v5", wr=[5], rd=[5]))
    A(valu("v_lshl_add_u32 v4, v5, 4, v4", wr=[4], rd=[4, 5]))
    acc = 72; tmp = 80
    for h in range(16):
        A(wait(vm=15 - h))
        for r in range(4):
            src = 8 + 4 * h + r
            if h == 0:
                A(valu("v_lshlrev_b32 %s, 16, %s" % (R(acc + 2 * r), R(src)), wr=[acc + 2 * r], rd=[src]))
                A(valu("v_and_b32 %s, 0xffff0000, %s" % (R(acc + 2 * r + 1), R(src)), wr=[acc + 2 * r + 1], rd=[src]))
            else:
                A(valu("v_lshlrev_b32 %s, 16, %s" % (R(tmp), R(src)), wr=[tmp], rd=[src]))
                A(valu("v_and_b32 %s, 0xffff0000, %s" % (R(src), R(src)), wr=[src], rd=[src]))
                A(v_add(acc + 2 * r, acc + 2 * r, tmp))
                A(v_add(acc + 2 * r + 1, acc + 2 * r + 1, src))
    for r in range(4): A(v_cvtpk(8 + r, acc + 2 * r, acc + 2 * r + 1))
    A(v_swap16(8, 10)); A(v_swap16(9, 11))
    A(vmem("buffer_store_dwordx4 v[8:11], v4, s[20:23], s18 offen", rd=[8, 9, 10, 11, 4], store=True))
    A(label("L_exit2")); A(salu("s_endpgm"))
    return pad_hazards(o)

def kd(name, vg, sg):
    return """.amdhsa_kernel %s
  .amdhsa_next_free_vgpr %d
  .amdhsa_next_free_sgpr %d
  .amdhsa_accum_offset %d
  .amdhsa_group_segment_fixed_size 0
  .amdhsa_kernarg_size 104
  .amdhsa_user_sgpr_count 2
  .amdhsa_user_sgpr_kernarg_segment_ptr 1
  .amdhsa_system_sgpr_workgroup_id_x 1
.end_amdhsa_kernel""" % (name, vg, sg, (vg + 3) // 4 * 4)

K1 = NAME + "_kernel"; K2 = "reduce_heads_kernel"
src = []
L1 = "; @launch kernel=%s grid=(256,1,1) block=(512,1,1) lds=%d" % (K1, LDS_BYTES)
L2 = "; @launch kernel=%s grid=(784,1,1) block=(256,1,1) lds=0" % K2
L0 = "; @launch kernel=empty_kernel grid=(1,1,1) block=(64,1,1) lds=0"
if LIST:
    for ch in LIST: src.append({"1": L1, "2": L2, "0": L0}[ch])
else:
    if ONLY != "k2": src.append(L1)
    if ONLY != "k1": src.append(L2)
src.append('.amdgcn_target "amdgcn-amd-amdhsa--gfx950"\n.text')
for nm, body in ((K1, k1()), (K2, k2())) + ((("empty_kernel", [salu("s_endpgm")]),) if "0" in LIST else ()):
    src.append(".globl %s\n.p2align 8\n.type %s,@function\n%s:" % (nm, nm, nm))
    src.append(text(body))
src.append('.section .rodata,"a"\n.p2align 6')
src.append(kd(K1, 256, 96))
src.append(".p2align 6")
src.append(kd(K2, 88, 32))
if "0" in LIST:
    src.append(".p2align 6"); src.append(kd("empty_kernel", 8, 16))
open(OUT, "w").write("\n".join(src) + "\n")
print("wrote", OUT)
```

```python
import sys, math, struct
from asmlib import *

NAME = "concat_heads__mha_block_cached__gqa_block_cached__near_ridge"
def opt(name, default):
    for a in sys.argv:
        if a.startswith("--%s=" % name): return a.split("=", 1)[1]
    return default
DBG = "--dbg" in sys.argv
PROF = "--prof" in sys.argv or DBG
KVFLAG = opt("kv", "_nt").replace("_", " ")
RAMP = int(opt("ramp", "3"))
XSLOT = int(opt("xslot", "2")); XSLOT0 = int(opt("xslot0", "8"))
STGAP = int(opt("stgap", "1"))
PUB = opt("pub", "late")
PUBSLOT = int(opt("pubslot", "8"))
LPAIRS = [tuple(int(c) for c in p) for p in opt("lpairs", "01").split(",") if p]
CBATCH = [tuple(int(c) for c in p) for p in opt("cbatch", "23,456").split(",")]
PUBS = sorted(set([p[-1] for p in LPAIRS] + [p[-1] for p in CBATCH]) - {6})
THROT = int(opt("throt", "0"))
ENDBAR = int(opt("endbar", "0"))
WOPF = int(opt("wopf", "15"))
CODEPF = int(opt("codepf", "1"))
FAST0 = int(opt("fast0", "1"))
KLATE = int(opt("klate", "1"))
SLEEP = int(opt("sleep", "4"))
NORED = "--nored" in sys.argv
PUB1 = int(opt("pub1", "3"))
WARMX = int(opt("warmx", "0")); WARMW = int(opt("warmw", "0"))
STOCK = [int(x) for x in opt("stock", "").split(",") if x]
STOCKW = [int(x) for x in opt("stockw", "2,3,4").split(",") if x]
def dct(name, default): return {int(x.split(":")[0]): int(x.split(":")[1]) for x in opt(name, default).split(",") if x}
BUD = int(opt("bud", "99")); BUDO = dct("budo", "")
L2PF = [int(x) for x in opt("l2pf", "").split(",") if x]
PFW = dct("pfw", "1:2,2:2,3:2,4:2")
XPF = int(opt("xpf", "0"))
MUSTA = int(opt("musta", "2"))
E24 = int(opt("e24", "0"))
XPFW = {0: [2], 1: [3], 2: [4], 3: [5], 4: [6]}
TAILV = int(opt("tailv", "2"))
STFLAG = opt("st", "_sc1").replace("_", " ")
OUT = [a for a in sys.argv[1:] if not a.startswith("--")]
OUT = OUT[0] if OUT else "cdna_kernels/%s.s" % NAME

SLOT = 16896; NSLOT = 9; ISTR = 1056
LDS_BYTES = 163840
PART = 200704; STG = 28672
FLAG_OFF = 56 << 20
PROF_OFF = 64 << 20
CSCALE = math.log2(math.e) / 16.0
THR = 65536.0
SPIN = 400000
def f2u(x): return struct.unpack("<I", struct.pack("<f", x))[0]

def ACC(qt, t): return 8 * t + 4 * qt
def OACC(s, qt, tau): return 32 * s + 8 * tau + 4 * qt
def QF(qt, u): return 128 + 32 * qt + 4 * u
def SR(qt, z): return 192 + 8 * qt + 4 * z
def SR0(qt, z): return 8 * qt + 4 * z
def PR(qt): return 208 + 4 * qt
def NM(qt): return 216 + 4 * qt
FB0 = 224
BUFSEQ = [0,1,2,3,4,5, 0,1,2,3,4, 0,1,2,3,4]; DEPTH = 5
vK, vT = 248, 249
def L(qt): return 250 + qt
def T(qt): return 252 + qt
TMP0, TMP1 = 254, 255
vT1, vXO, vBP = 252, 253, 254
vST, vFO, vFV = 248, 252, 253
def XF(qt, s):
    if s < 10: return 128 + 8 * (s % 8) + 4 * qt
    return 192 + 8 * (s - 10) + 4 * qt

sWID = 3
sH, sB, sBLK = 26, 27, 28
sX, sW, sKd, sVd, sO, sP, sF, sOUT = 36, 40, 44, 48, 52, 56, 92, 96
sC, sKT, sTHR, sKpos, sVpos, sDK, sDV, sPOS, sNEG, sCNT, sRET, sT0, sT1, sOFF, sXB = 60, 61, 62, 63, 64, 65, 66, 67, 68, 69, 70, 71, 72, 73, 74
sPB = 75
sFL, sOR = 86, 88
sTAG = 90
sT2, sT3 = 29, 30

halves = [("W", i) for i in range(14)] + [("K", 0), ("K", 1)]
for i in range(1, 15): halves += [("V", i - 1), ("K", i + 1)]
halves += [("V", 14), ("V", 15)] + [("O", i) for i in range(14)]
assert len(halves) == 60
def slot_idx(n): return n % 8 if n < 16 else (n - 16) % NSLOT
def slot_addr(n): return slot_idx(n) * SLOT
XPRIV = 8 * SLOT; X0ADDR = 6 * SLOT
LASTBAR = 27

class Half:
    def __init__(self, n, reads, mf, pre): self.n = n; self.reads = reads; self.mf = mf; self.pre = pre
def vadd_lit(reg, delta): return valu("v_add_u32 %s, 0x%x, %s" % (R(reg), delta & 0xffffffff, R(reg)), wr=[reg], rd=[reg])
def vadd_s(reg, s): return valu("v_add_u32 %s, %s, %s" % (R(reg), S(s), R(reg)), wr=[reg], rd=[reg])
def vop(op, d, *src):
    t = "%s %s, %s" % (op, R(d), ", ".join(R(x) if isinstance(x, int) else x for x in src))
    return valu(t, wr=[d], rd=[x for x in src if isinstance(x, int)])
def lane_id(d): return [vop("v_mbcnt_lo_u32_b32", d, "-1", "0"), vop("v_mbcnt_hi_u32_b32", d, "-1", d)]

def half_W(s, pre):
    def reads(f, b):
        a = vT1 if f & 1 else vT
        return [dsrtr(b, a, 32 * f), dsrtr(b + 2, a, 32 * f + 512)]
    def mf(f, b): return [mfma16(ACC(qt, f), b, XF(qt, s), None if s == 0 else ACC(qt, f)) for qt in range(2)]
    return Half(16, reads, mf, pre)
def half_W2(s, pre):
    assert slot_addr(s + 1) == slot_addr(s) + SLOT
    def reads(f, b):
        t, e = f >> 1, f & 1
        a = vT1 if t & 1 else vT
        return [dsrtr(b, a, e * SLOT + 32 * t), dsrtr(b + 2, a, e * SLOT + 32 * t + 512)]
    def mf(f, b):
        t, e = f >> 1, f & 1
        return [mfma16(ACC(qt, t), b, XF(qt, s + e), ACC(qt, t)) for qt in range(2)]
    return Half(32, reads, mf, pre)
def half_K(pre, first=False):
    sr = SR0 if first else SR
    def reads(f, b): return [dsr128(b, vK, 512 * (f & 1) + 64 * (f >> 1))]
    def mf(f, b):
        u, z = f >> 1, f & 1
        return [mfma16(sr(qt, z), b, QF(qt, u), (None if first else NM(qt)) if u == 0 else sr(qt, z)) for qt in range(2)]
    return Half(16, reads, mf, pre)
def half_V(pre, first=False):
    def reads(f, b): return [dsrtr(b, vT, 32 * f), dsrtr(b + 2, vT, 32 * f + 512)]
    def mf(f, b): return [mfma16(ACC(qt, f), b, PR(qt), None if first else ACC(qt, f)) for qt in range(2)]
    return Half(16, reads, mf, pre)
def half_O(hh, aset, pre):
    def reads(f, b):
        ks, tau = f >> 2, f & 3
        return [dsrtr(b, vT, 256 * ks + 32 * tau), dsrtr(b + 2, vT, 256 * ks + 128 + 32 * tau)]
    def mf(f, b):
        ks, tau = f >> 2, f & 3
        u = 4 * hh + ks
        return [mfma16(OACC(aset, qt, tau), b, QF(qt, u), None if u == 0 else OACC(aset, qt, tau)) for qt in range(2)]
    return Half(16, reads, mf, pre)

class Stream:
    def __init__(self): self.o = []; self.q = []; self.pend = []
    def buf(self, f): return FB0 + 4 * BUFSEQ[f % 16]
    def lds(self, ins, key): self.o.append(ins); self.q.append(key)
    def first_read(self, h, f):
        rs = h.reads(f, self.buf(f)); key = (id(h), f)
        if KLATE and len(rs) == 1:
            self.pend = [(rs[0], key)]
            return (h.pre if f == 0 else []), []
        self.pend = [(r, key) for r in rs[1:]]
        return (h.pre if f == 0 else []), [(rs[0], key)]
    def preload(self, h):
        for f in range(DEPTH):
            for r, k in self.pend: self.lds(r, k)
            pre, rs = self.first_read(h, f)
            self.o += pre
            for r, k in rs: self.lds(r, k)
    def rekey(self, hold, hnew):
        f = lambda k: (id(hnew), k[1]) if k[0] == id(hold) else k
        self.q = [f(k) for k in self.q]; self.pend = [(r, f(k)) for r, k in self.pend]
    def waitfor(self, keys):
        idx = [i for i, k in enumerate(self.q) if k in keys]
        if idx:
            last = max(idx); n = len(self.q) - 1 - last
            assert n <= 15
            self.o.append(wait(lgkm=n)); self.q = self.q[last + 1:]
    def run(self, h, nxt, fill=None, head=None, post=None, ldsx=None, needs=None):
        fill = fill or {}; head = head or {}; post = post or {}; ldsx = ldsx or {}; needs = needs or {}
        for d in (fill, head, post, ldsx): assert all(0 <= k < 2 * h.n for k in d), d.keys()
        for f in range(h.n):
            ms = h.mf(f, self.buf(f))
            for k, m in enumerate(ms):
                sl = 2 * f + k
                self.o += head.get(sl, [])
                if k == 0:
                    assert not any(kk == (id(h), f) for _, kk in self.pend)
                    self.waitfor([(id(h), f)] + needs.get(f, []))
                self.o.append(m)
                pre, rs = [], []
                if k == 0:
                    rs = self.pend; self.pend = []
                else:
                    g = f + DEPTH
                    if g < h.n: pre, rs = self.first_read(h, g)
                    elif nxt is not None: pre, rs = self.first_read(nxt, g - h.n)
                self.o += fill.get(sl, []) + pre
                for r, kk in rs: self.lds(r, kk)
                for r, kk in ldsx.get(sl, []): self.lds(r, kk)
                self.o += post.get(sl, [])

def cost(op):
    if op.kind == "vst": return 2 if STGAP else 0
    return 2 if op.kind in ("trans", "perm") else (1 if op.kind == "valu" else 0)
def pack(ops, lo, d=None, cap=2):
    d = d if d is not None else {}
    s = lo
    for op in ops:
        while sum(cost(x) for x in d.get(s, [])) + cost(op) > cap: s += 1
        d.setdefault(s, []).append(op)
    return d, s
def split(d, n): return {k: v for k, v in d.items() if k < n}, {k - n: v for k, v in d.items() if k >= n}
def flat(d):
    o = []
    for k in sorted(d): o += d[k]
    return o

def sm_ops(sr=SR):
    ops = []
    def s(qt, j): return sr(qt, 0) + j
    for j in range(0, 9):
        if j < 8:
            for qt in range(2): ops.append(v_exp(s(qt, j), s(qt, j)))
        if j >= 2:
            for qt in range(2):
                ops.append(v_add(T(qt), s(qt, 0), s(qt, 1)) if j == 2 else v_add(T(qt), T(qt), s(qt, j - 1)))
    return ops
def check_ops():
    return [v_max(TMP0, T(0), T(1)), valu("v_cmp_nge_f32 vcc, %s, %s" % (S(sTHR), R(TMP0)), rd=[TMP0], swr=["vcc"])]
def pcvt(qt, z, sr=SR): return [v_cvtpk(PR(qt) + 2 * z, sr(qt, z), sr(qt, z) + 1), v_cvtpk(PR(qt) + 2 * z + 1, sr(qt, z) + 2, sr(qt, z) + 3)]
def ladd(): return [v_add(L(qt), L(qt), T(qt)) for qt in range(2)]
def rowreduce(reg, tmp, op):
    return [v_mov(tmp, R(reg), [reg]), v_swap16(reg, tmp), op(reg, reg, tmp),
            v_mov(tmp, R(reg), [reg]), v_swap32(reg, tmp), op(reg, reg, tmp)]
def qk_head():
    head = {0: pcvt(0, 0)}
    fill = {0: pcvt(1, 0), 1: pcvt(0, 1), 2: pcvt(1, 1), 3: ladd()}
    return head, fill

def red_consts(lane, a1, a2, vld, vout, t0, t1):
    o = []
    o.append(vop("v_and_b32", t0, "15", lane))
    for base, sh in ((a1, 0), (a2, 8)):
        for r in range(4):
            o.append(vop("v_mov_b32", base + r, "0"))
            o.append(valu("v_cmp_eq_u32 vcc, %d, %s" % (2 * r + sh, R(t0)), rd=[t0], swr=["vcc"]))
            o.append(vop("v_mov_b32", t1, "0x3f80"))
            o.append(valu("v_cndmask_b32 %s, %s, %s, vcc" % (R(base + r), R(base + r), R(t1)), wr=[base + r], rd=[base + r, t1], srd=["vcc"]))
            o.append(valu("v_cmp_eq_u32 vcc, %d, %s" % (2 * r + 1 + sh, R(t0)), rd=[t0], swr=["vcc"]))
            o.append(vop("v_mov_b32", t1, "0x3f800000"))
            o.append(valu("v_cndmask_b32 %s, %s, %s, vcc" % (R(base + r), R(base + r), R(t1)), wr=[base + r], rd=[base + r, t1], srd=["vcc"]))
    o.append(vop("v_lshrrev_b32", t1, "4", lane))
    o.append(vop("v_mul_u32_u24", vld, "0x%x" % PART, t1))
    o.append(vop("v_lshl_add_u32", vld, t0, "4", vld))
    o.append(vop("v_mul_u32_u24", vout, "1792", t0))
    o.append(vop("v_and_b32", t0, "1", t1))
    o.append(vop("v_lshl_add_u32", vout, t0, "5", vout))
    o.append(vop("v_lshrrev_b32", t0, "1", t1))
    o.append(vop("v_lshl_add_u32", vout, t0, "7", vout))
    return o
def out_base(dst, ci, tmp):
    return [salu("s_lshr_b32 %s, %s, 3" % (S(dst), S(ci))), salu("s_mul_i32 %s, %s, %d" % (S(dst), S(dst), 16 * 1792)),
            salu("s_and_b32 %s, %s, 3" % (S(tmp), S(ci))), salu("s_lshl_b32 %s, %s, 3" % (S(tmp), S(tmp))),
            salu("s_add_u32 %s, %s, %s" % (S(dst), S(dst), S(tmp))),
            salu("s_and_b32 %s, %s, 4" % (S(tmp), S(ci))), salu("s_lshl_b32 %s, %s, 4" % (S(tmp), S(tmp))),
            salu("s_add_u32 %s, %s, %s" % (S(dst), S(dst), S(tmp)))]
def mktag(): return [salu("s_mul_i32 %s, %s, 0x9e3779b1" % (S(sTAG), S(sTAG))), salu("s_add_u32 %s, %s, 0x7f4a7c15" % (S(sTAG), S(sTAG)))]
_pl = [0]
def pollload(vaddr, vdat):
    return vmem("buffer_load_dword %s, %s, %s, 0 offen sc1" % (R(vdat), R(vaddr), S(sF, 4)), wr=[vdat], rd=[vaddr])
def poll(vaddr, vdat, need, pre=False):
    _pl[0] += 1; lb = "L_poll%d" % _pl[0]
    first = [salu("s_add_u32 %s, %s, %d" % (S(sT1), S(sTAG), need)), wait(vm=4), salu("s_branch %sc" % lb)] if pre else []
    return [salu("s_mov_b32 %s, %d" % (S(sCNT), SPIN))] + first + [label(lb),
            vmem("buffer_load_dword %s, %s, %s, 0 offen sc1" % (R(vdat), R(vaddr), S(sF, 4)), wr=[vdat], rd=[vaddr]),
            salu("s_sub_u32 %s, %s, 1" % (S(sCNT), S(sCNT))), salu("s_cbranch_scc1 L_exit1"),
            salu("s_add_u32 %s, %s, %d" % (S(sT1), S(sTAG), need)),
            wait(vm=0), label(lb + "c"),
            vop("v_subrev_u32", vdat, S(sT1), vdat),
            valu("v_cmp_lt_u32 vcc, %d, %s" % (7 - need, R(vdat)), rd=[vdat], swr=["vcc"]),
            nop(0), salu("s_cbranch_vccz %sx" % lb), salu("s_sleep %d" % SLEEP), salu("s_branch %s" % lb), label(lb + "x")]

def compute_wave():
    st = Stream(); o = st.o; A = o.append
    o += [label("L_compute")]
    A(vop("v_lshrrev_b32", 5, "2", 1)); A(vop("v_and_b32", 6, "3", 1))
    A(salu("s_lshl_b32 %s, %s, 5" % (S(sT0), S(sWID))))
    A(vop("v_add_u32", 4, S(sT0), 5)); A(vop("v_mul_u32_u24", 4, "896", 4))
    A(vop("v_lshrrev_b32", 7, "4", 1)); A(vop("v_sub_u32", 7, "0", 7)); A(vop("v_xor_b32", 7, 7, 6)); A(vop("v_and_b32", 7, "3", 7))
    A(vop("v_lshl_add_u32", vXO, 7, "4", 4))
    A(salu("s_movk_i32 %s, 14336" % S(sT1)))
    A(salu("s_lshl_b32 %s, %s, 12" % (S(sXB), S(sWID))))
    def xdma(r, base):
        ops = []
        for e in range(2):
            for qt in range(2):
                sidx = 2 * r + e
                ops.append([salu("s_add_u32 m0, %s, %d" % (S(sXB), base + (2 * e + qt) * 1024 - 64 * sidx)),
                            vmem("buffer_load_dwordx4 %s, %s, %s offen offset:%d lds" % (R(vXO), S(sX, 4), S(sT1) if qt else "0", 64 * sidx), rd=[vXO])])
        return ops
    def xread(r, base):
        return [(dsr128(XF(qt, 2 * r + e), vBP, base - X0ADDR + (2 * e + qt) * 1024), ("x", r)) for e in range(2) for qt in range(2)]
    for g in xdma(0, X0ADDR) + xdma(1, XPRIV): o += g
    NG = WARMX + WARMW
    if WARMX:
        A(salu("s_lshr_b32 %s, s2, 6" % S(sT0))); A(salu("s_mul_i32 %s, %s, 7" % (S(sT0), S(sT0)))); A(salu("s_add_u32 %s, %s, %s" % (S(sT0), S(sT0), S(sWID))))
        A(salu("s_mul_i32 %s, %s, %d" % (S(sT0), S(sT0), 56 * 128))); A(vop("v_lshlrev_b32", 8, "7", 1))
        A(vmem("buffer_load_dword v251, v8, %s, %s offen" % (S(sX, 4), S(sT0)), wr=[251], rd=[8]))
    if WARMW:
        A(salu("s_mul_i32 %s, %s, 44" % (S(sT0), S(sB)))); A(salu("s_lshl_b32 %s, %s, 4" % (S(sOFF), S(sWID)))); A(salu("s_add_u32 %s, %s, %s" % (S(sT0), S(sT0), S(sOFF))))
        A(salu("s_add_u32 %s, %s, 96" % (S(sT0), S(sT0)))); A(salu("s_cmp_lt_u32 %s, 3" % S(sWID))); A(salu("s_cselect_b32 %s, %s, 4096" % (S(sT0), S(sT0))))
        A(salu("s_lshl_b32 %s, %s, 13" % (S(sT0), S(sT0))))
        A(vop("v_lshlrev_b32", 10, "13", 5)); A(vop("v_lshl_add_u32", 10, 6, "7", 10))
        A(vmem("buffer_load_dword v255, v10, %s, %s offen" % (S(sW, 4), S(sT0)), wr=[255], rd=[10]))
    A(vop("v_mul_u32_u24", 5, str(ISTR), 5)); A(vop("v_lshl_add_u32", vT, 6, "3", 5)); A(vop("v_xor_b32", vT1, "16", vT))
    A(vop("v_and_b32", 2, "15", 1)); A(vop("v_lshrrev_b32", 3, "4", 1))
    A(vop("v_lshrrev_b32", 6, "2", 2)); A(vop("v_sub_u32", 6, "0", 6)); A(vop("v_xor_b32", 6, 6, 3)); A(vop("v_and_b32", 6, "3", 6))
    A(vop("v_lshl_add_u32", 6, 2, "2", 6)); A(vop("v_lshlrev_b32", 6, "4", 6)); A(vop("v_add_u32", 6, S(sXB), 6))
    A(vop("v_add_u32", vBP, "0x%x" % X0ADDR, 6))
    A(vop("v_lshlrev_b32", 6, "1", 3)); A(vop("v_mov_b32", 7, "0x9c")); A(vop("v_lshrrev_b32", 6, 6, 7)); A(vop("v_and_b32", 6, "3", 6))
    A(vop("v_mul_u32_u24", 5, str(ISTR), 2)); A(vop("v_lshl_add_u32", vK, 6, "4", 5)); A(vadd_lit(vK, slot_addr(14)))
    A(vop("v_mov_b32", L(0), "0x%x" % f2u(CSCALE)))
    A(salu("s_mov_b32 %s, 0x%x" % (S(sTHR), f2u(THR))))
    A(salu("s_mov_b32 %s, %d" % (S(sPOS), 2 * SLOT)))
    A(salu("s_mov_b32 %s, %d" % (S(sNEG), -7 * SLOT)))
    A(wait(vm=4 + NG))
    for r, k in xread(0, X0ADDR): st.lds(r, k)
    A(wait(lgkm=0)); st.q = []
    o += mktag()
    def wpre(n):
        if n == 0: return []
        d = slot_addr(n) - slot_addr(n - 1)
        return [vadd_lit(vT, d), vadd_lit(vT1, d)]
    HW = [half_W(s, wpre(s)) for s in range(12)] + [half_W2(12, wpre(12))]
    HK0 = half_K([], first=True)
    A(barrier())
    st.preload(HW[0])
    def qconv(u):
        grp = [(qt, e) for e in range(2) for qt in range(2)]
        mul = lambda qt, e: [vop("v_mul_f32", ACC(qt, 2 * u + e) + r, L(0), ACC(qt, 2 * u + e) + r) for r in range(4)]
        cvt = lambda qt, e: [v_cvtpk(QF(qt, u) + 2 * e + h, ACC(qt, 2 * u + e) + 2 * h, ACC(qt, 2 * u + e) + 2 * h + 1) for h in range(2)]
        swp = lambda qt: [v_swap16(QF(qt, u) + h, QF(qt, u) + 2 + h) for h in range(2)]
        return mul(0, 0) + mul(1, 0) + cvt(0, 0) + mul(0, 1) + cvt(1, 0) + mul(1, 1) + cvt(0, 1) + cvt(1, 1) + swp(0) + swp(1)
    for s in range(12):
        post = {}; ldsx = {}; head = {}; needs = {}
        if not (s & 1):
            r = s // 2 + 1
            st0 = XSLOT0 if s == 0 else XSLOT
            head[st0] = [wait(vm=NG if s == 0 else 0)]
            for i, e in enumerate(xread(r, XPRIV)): ldsx.setdefault(st0 + 2 * i, []).append(e)
            fd = (st0 + 6) // 2 + 4
            assert fd + 4 <= 16
            needs[fd] = [("x", r)]
            if r + 1 < 7:
                for i, g in enumerate(xdma(r + 1, XPRIV)):
                    head.setdefault(2 * fd + 2 * i + 1, []).append(g[0]); post.setdefault(2 * fd + 2 * i + 1, []).append(g[1])
        st.run(HW[s], HW[s + 1], None, head, post, ldsx, needs)
        if (s & 1) or (s == 0 and FAST0): A(barrier())
    allc = [(u, op) for u in range(8) for op in qconv(u)]
    fill = {}; i = 0
    for sl in range(64):
        while i < len(allc) and sl >= 8 * allc[i][0] + 11 and sum(cost(x) for x in fill.get(sl, [])) + cost(allc[i][1]) <= 2:
            fill.setdefault(sl, []).append(allc[i][1]); i += 1
    st.run(HW[12], HK0, fill)
    rest = allc[i:]
    def try_take(n):
        d = {}; sl = 0
        for u, op in rest[len(rest) - n:]:
            while sum(cost(x) for x in d.get(sl, [])) + cost(op) > 2: sl += 1
            if sl >= 4 * u - 2: return None
            d.setdefault(sl, []).append(op)
        return d
    take = max(n for n in range(len(rest) + 1) if try_take(n) is not None)
    fillK = try_take(take)
    blk = [op for _, op in rest[:len(rest) - take]]
    A(barrier())
    o += blk
    HK1 = half_K([vadd_lit(vK, slot_addr(15) - slot_addr(14))])
    post = {27: [salu("s_mov_b32 %s, %d" % (S(sKpos), slot_addr(17))), salu("s_mov_b32 %s, %d" % (S(sVpos), slot_addr(16)))],
            28: [salu("s_mov_b32 %s, 13" % S(sCNT)), salu("s_mov_b32 %s, 0" % S(sRET))], 29: [salu("s_mov_b32 %s, 16384" % S(sKT))]}
    st.run(HK0, HK1, fillK, None, post)
    ma = []; mb = []
    for qt, lst in ((0, ma), (1, mb)):
        s0 = SR0(qt, 0); m = NM(qt)
        lst += [v_max3(m, s0, s0 + 1, s0 + 2), v_max3(m, m, s0 + 3, s0 + 4), v_max3(m, m, s0 + 5, s0 + 6), v_max(m, m, s0 + 7)]
        lst += rowreduce(m, TMP0 + qt, v_max)
        lst += [vop("v_sub_f32", m, "0", m)] + [v_mov(m + j, R(m), [m]) for j in range(1, 4)]
    for a, b in zip(ma, mb): o += [a, b]
    adds = [v_add(SR0(qt, 0) + j, SR0(qt, 0) + j, NM(qt)) for j in range(8) for qt in range(2)]
    sm0 = sm_ops(SR0)
    ops = adds[:4]; ai = 4
    for op in sm0:
        ops.append(op)
        if op.kind == "trans" and (len([x for x in ops if x.kind == "trans"]) % 2 == 0) and ai < 16:
            ops += adds[ai:ai + 2]; ai += 2
    ops += pcvt(0, 0, SR0) + pcvt(1, 0, SR0) + pcvt(0, 1, SR0) + pcvt(1, 1, SR0) + [v_mov(L(qt), R(T(qt)), [T(qt)]) for qt in range(2)]
    fill, nx = pack(ops, 0)
    fill, over = split(fill, 32)
    HVn = half_V([vadd_lit(vT, slot_addr(16) - slot_addr(12))])
    st.run(HK1, HVn, fill)
    o += flat(over)
    print("conv: woven W", i, "block", len(blk), "woven K", take, "sm0 overflow", len(flat(over)))
    pre_loop = list(o)

    def pv_fill():
        d, n = pack(sm_ops() + check_ops(), 0)
        assert n < 31
        return d
    def slotcalc():
        return [salu("s_cmp_gt_u32 %s, %d" % (S(sKpos), 6 * SLOT)), salu("s_cselect_b32 %s, %s, %s" % (S(sDK), S(sNEG), S(sPOS))),
                salu("s_add_u32 %s, %s, %s" % (S(sKpos), S(sKpos), S(sDK))),
                salu("s_cmp_gt_u32 %s, %d" % (S(sVpos), 6 * SLOT)), salu("s_cselect_b32 %s, %s, %s" % (S(sDV), S(sNEG), S(sPOS))),
                salu("s_add_u32 %s, %s, %s" % (S(sVpos), S(sVpos), S(sDV)))]
    HKn = half_K([])
    def pv_part(first, nxt, extra):
        HV = half_V([], first=first); st.rekey(HVn, HV)
        st.o.append(barrier())
        post = {}
        for i, x in enumerate(extra): post.setdefault(2 * i, []).append(x)
        st.run(HV, nxt, pv_fill(), None, post)
    def qk_part(extra):
        HK = half_K([]); st.rekey(HKn, HK)
        nxt = half_V([vadd_s(vT, sDV)])
        head, fill = qk_head()
        post = {}
        for i, x in enumerate(extra): post.setdefault(4 + 2 * i, []).append(x)
        st.run(HK, nxt, fill, head, post)
        st.rekey(nxt, HVn)
    ktadd = salu("s_add_u32 %s, %s, 16384" % (S(sKT), S(sKT)))
    st.o = []; fb = st.o
    nk = half_K([vadd_s(vK, sDK)])
    pv_part(True, nk, [salu("s_mov_b32 %s, %d" % (S(sDK), slot_addr(17) - slot_addr(15)))] + slotcalc()[3:] + [salu("s_mov_b64 %s, 0" % S(sFL, 2))]); st.rekey(nk, HKn)
    fb.append(salu("s_cbranch_vccnz L_rare"))
    q0 = (list(st.q), [k for _, k in st.pend])
    st.o = []; lb = st.o
    qk_part([ktadd])
    nk = half_K([vadd_s(vK, sDK)])
    pv_part(False, nk, slotcalc() + [salu("s_sub_u32 %s, %s, 1" % (S(sCNT), S(sCNT))), salu("s_cmp_eq_u32 %s, 0" % S(sCNT)),
                                     salu("s_cselect_b32 %s, 1, 0" % S(sFL)), salu("s_mov_b32 %s, %s" % (S(sRET), S(sFL)))]); st.rekey(nk, HKn)
    lb.append(salu("s_or_b64 %s, vcc, %s" % (S(sOR, 2), S(sFL, 2))))
    lb.append(salu("s_cbranch_scc0 L_loop"))
    assert (st.q, [k for _, k in st.pend]) == q0
    st.o = []; o2 = st.o; A = o2.append
    A(salu("s_cbranch_vccnz L_rare")); A(label("L_ret1"))
    pfo = []
    if WOPF:
        pfo += lane_id(TMP1) + [salu("s_mul_i32 %s, %s, 28672" % (S(sT0), S(sB))), salu("s_add_u32 %s, %s, %s" % (S(sT0), S(sT0), S(sXB))),
                vop("v_lshlrev_b32", TMP1, "6", TMP1),
                vmem("buffer_load_dword %s, %s, %s, %s offen" % (R(vK), R(TMP1), S(sO, 4), S(sT0)), wr=[vK], rd=[TMP1])]
    if CODEPF:
        pfo += [salu("s_getpc_b64 s[4:5]"), label("L_pcc"), salu("s_mul_i32 %s, %s, 6144" % (S(sT0), S(sWID))),
                salu("s_mov_b32 s6, L_exit1-L_pcc"), salu("s_mov_b32 s7, 0x20000")] + lane_id(TMP1) + [vop("v_mul_u32_u24", TMP1, "96", TMP1),
                vmem("buffer_load_dword %s, %s, s[4:7], %s offen" % (R(vK), R(TMP1), S(sT0)), wr=[vK], rd=[TMP1])]
    qk_part([ktadd, salu("s_mov_b32 %s, 2" % S(sRET))])
    o2 += pfo
    def opre(n): return [vadd_lit(vT, slot_addr(n) - slot_addr(n - 1))]
    HO = [half_O(i & 1, (i >> 1) % 4, opre(46 + i)) for i in range(14)]
    HV15 = half_V(opre(45))
    pv_part(False, HV15, [])
    A(salu("s_cbranch_vccnz L_rare")); A(label("L_ret2"))
    def oconv(u):
        ops = []
        for qt in range(2):
            for e in range(2):
                a = ACC(qt, 2 * u + e)
                for h in range(2): ops.append(v_cvtpk(QF(qt, u) + 2 * e + h, a + 2 * h, a + 2 * h + 1))
        return ops
    o2 += pcvt(0, 0) + pcvt(0, 1) + pcvt(1, 0) + pcvt(1, 1)
    r0 = rowreduce(L(0), TMP0, v_add); r1 = rowreduce(L(1), TMP1, v_add)
    lops = ladd() + [x for ab in zip(r0, r1) for x in ab]
    fill, nx = pack(lops, 0)
    for u in range(8): fill, nx = pack(oconv(u), max(nx, 4 * u + 7), fill)
    lop2 = [trans("v_rcp_f32 %s, %s" % (R(L(qt)), R(L(qt))), wr=[L(qt)], rd=[L(qt)]) for qt in range(2)]
    lop2 += lane_id(TMP0) + [wait(vm=0), vop("v_lshlrev_b32", vST, "4", TMP0),
             salu("s_add_u32 %s, %s, %s" % (S(sT0), S(sXB), S(sPB))), vadd_s(vST, sT0),
             salu("s_lshl_b32 %s, %s, 7" % (S(sT0), S(sWID))), salu("s_lshl_b32 %s, %s, 10" % (S(sT1), S(sH))), salu("s_add_u32 %s, %s, %s" % (S(sT0), S(sT0), S(sT1))),
             vop("v_and_b32", TMP1, "32", TMP0), vop("v_lshlrev_b32", TMP1, "12", TMP1), vop("v_lshl_add_u32", vFO, TMP0, "2", TMP1), vadd_s(vFO, sT0)]
    fill, nx = pack(lop2, nx, fill)
    fill, carry = split(fill, 32)
    st.run(HV15, HO[0], fill)
    def epi(j):
        ops = []; aset = j % 4
        for qt in range(2):
            for hf in range(2):
                dst = SR(qt, hf)
                for e in range(2):
                    a = OACC(aset, qt, 2 * hf + e)
                    for r in range(4): ops.append(v_mul(a + r, a + r, L(qt)))
                    for h in range(2): ops.append(v_cvtpk(dst + 2 * e + h, a + 2 * h, a + 2 * h + 1))
                if qt == 0 and hf == 0: ops.append(salu("s_mov_b32 %s, %d" % (S(sOFF), j * STG)))
                ops.append(vmem("buffer_store_dwordx4 %s, %s, %s, %s offen offset:%d%s" % (R(dst, 4), R(vST), S(sP, 4), S(sOFF), 2048 * qt + 1024 * hf, STFLAG),
                                rd=list(rr(dst, 4)) + [vST], store=True))
        return ops
    def publish(j, vm):
        if "--noflag" in sys.argv: return [wait(vm=vm)]
        if "--nopub" in sys.argv: return []
        return [salu("s_add_u32 %s, %s, %d" % (S(sT1), S(sTAG), j + 1)), vop("v_mov_b32", vFV, S(sT1)), wait(vm=vm if "--nowait" not in sys.argv else 63),
                vmem("buffer_store_dword %s, %s, %s, 0 offen sc1" % (R(vFV), R(vFO), S(sF, 4)), rd=[vFV, vFO], store=True)]
    a1, a2, vld, vout, vpa, vpd, lane = 208, 212, 216, 217, 218, 219, 220
    tailc = lane_id(lane) + red_consts(lane, a1, a2, vld, vout, 221, 222)
    tailc += [salu("s_mul_i32 %s, %s, 7" % (S(sT2), S(sH))), salu("s_add_u32 %s, %s, %s" % (S(sT2), S(sT2), S(sWID))),
              salu("s_lshr_b32 %s, %s, 4" % (S(sT0), S(sT2))), salu("s_lshl_b32 %s, %s, 7" % (S(sT0), S(sT0))),
              vop("v_and_b32", vpa, "15", lane), vop("v_lshlrev_b32", vpa, "10", vpa), vadd_s(vpa, sT0)]
    tailc += out_base(sT3, sT2, sT0) + [salu("s_lshl_b32 %s, %s, 8" % (S(sT2), S(sT2)))]
    tc, _ = pack(tailc, 0, None, 1)
    for i in range(14):
        j = i >> 1
        if not (i & 1) and (23 + j <= LASTBAR or ENDBAR): A(barrier())
        fill = {}; post = {}
        if i == 0: fill = carry
        elif j >= 1 and not (i & 1): fill, _ = pack(epi(j - 1), 1)
        if i & 1:
            post, tc = split(tc, 32)
            if j >= 2:
                extra_ = 1 if (j - 3) in PUBS else 0
                if j - 2 in PUBS: post.setdefault(PUBSLOT, []).extend(publish(j - 2, 4 + extra_))
                elif THROT: post.setdefault(PUBSLOT, []).append(wait(vm=4 + extra_))
        st.run(HO[i], HO[i + 1] if i < 13 else None, fill, None, post)
    assert not tc
    tsn = [0]
    def tstamp():
        if not PROF: return []
        r = 6 + 2 * tsn[0]; tsn[0] += 1
        return [salu("s_memrealtime s[%d:%d]" % (r, r + 1))]
    o2 += tstamp()
    if len(CBATCH) > 1 and not NORED: A(pollload(vpa, vpd))
    o2 += epi(6)
    cst = [j for bt in CBATCH for j in bt]
    def bufreg(j, i):
        n = 4 * cst.index(j) + i
        return 4 * n if n < 16 else 96 + 4 * (n - 16)
    def loads(j):
        ops = []
        for i in range(4):
            ops.append(salu("s_add_u32 %s, %s, %d" % (S(sOFF), S(sT2), j * STG + 4 * i * PART)))
            ops.append(vmem("buffer_load_dwordx4 %s, %s, %s, %s offen sc1" % (R(bufreg(j, i), 4), R(vld), S(sP, 4), S(sOFF)), wr=rr(bufreg(j, i), 4), rd=[vld]))
        return ops
    if not NORED:
        assert 5 not in PUBS
        o2 += tstamp() + publish(6, 0) + tstamp()
        for bi, bt in enumerate(CBATCH):
            o2 += poll(vpa, vpd, bt[-1] + 1, pre=(bi == 0 and len(CBATCH) > 1)) + tstamp()
            if bi == 0:
                A(vop("v_mov_b32", 221, S(sTAG))); A(salu("s_lshl_b32 %s, %s, 6" % (S(sT0), S(sT2))))
                A(vmem("buffer_store_dword v221, off, %s, %s offset:896" % (S(sF, 4), S(sT0)), rd=[221], store=True))
            for j in bt: o2 += loads(j)
            if bi == 0: o2 += tstamp()
        left = 4 * len(CBATCH[-1]); nst = 0
        for p in range(4):
            js = [j for j in (2 * p, 2 * p + 1) if j in cst]
            if not js: continue
            assert js[0] == 2 * p and (len(js) == 2 or p == 3)
            acc = 144 + 8 * p
            n = 0
            for k, j in enumerate(js):
                for i in range(4):
                    if j in CBATCH[-1]:
                        left -= 1; A(wait(vm=left + nst))
                    A(mfma16(acc, a2 if k else a1, bufreg(j, i), acc if n else None)); n += 1
            A(v_cvtpk(acc + 4, acc, acc + 1)); A(v_cvtpk(acc + 5, acc + 2, acc + 3))
            if p == 3: A(salu("s_mov_b32 exec_hi, 0"))
            A(vmem("buffer_store_dwordx2 %s, %s, %s, %s offen offset:%d" % (R(acc + 4, 2), R(vout), S(sOUT, 4), S(sT3), 256 * p), rd=[acc + 4, acc + 5, vout], store=True)); nst += 1
    if PROF:
        o2 += tstamp(); A(wait(vm=0)); o2 += tstamp(); A(wait(lgkm=0))
        A(salu("s_mov_b64 exec, -1")); A(v_mov(0, "0"))
        for i in range(tsn[0]): A(valu("v_writelane_b32 v0, s%d, %d" % (6 + 2 * i, i), wr=[0]))
        A(vop("v_lshlrev_b32", 1, "2", 220)); A(salu("s_lshl_b32 s80, s2, 3")); A(salu("s_add_u32 s80, s80, %s" % S(sWID))); A(salu("s_lshl_b32 s80, s80, 5"))
        A(salu("s_add_u32 s80, s80, 65536")); A(salu("s_mov_b32 s78, 0x30000")); A(salu("s_mov_b64 exec, 0xff"))
        A(vmem("buffer_store_dword v0, v1, s[76:79], s80 offen", rd=[0, 1], store=True))
        A(wait(vm=0)); A(barrier())
    A(salu("s_endpgm"))
    rp = [label("L_rare"), nop(15)]
    rp += lane_id(TMP0) + [vop("v_lshrrev_b32", TMP1, "4", TMP0), vop("v_lshlrev_b32", TMP1, "1", TMP1), v_mov(T(0), "0x9c"),
           vop("v_lshrrev_b32", TMP1, TMP1, T(0)), vop("v_and_b32", TMP1, "3", TMP1), vop("v_lshlrev_b32", TMP1, "4", TMP1),
           vop("v_and_b32", TMP0, "15", TMP0), vop("v_lshl_add_u32", TMP0, TMP0, "9", TMP1),
           salu("s_add_u32 %s, %s, 8192" % (S(sT0), S(sKT)))]
    for u in range(8):
        for z in range(2):
            rp.append(vmem("buffer_load_dwordx4 %s, %s, %s, %s offen offset:%d" % (R(PR(z), 4), R(TMP0), S(sKd, 4), S(sT0 if z else sKT), 64 * u), wr=rr(PR(z), 4), rd=[TMP0]))
        rp.append(wait(vm=0))
        for z in range(2):
            for qt in range(2): rp.append(mfma16(SR(qt, z), PR(z), QF(qt, u), NM(qt) if u == 0 else SR(qt, z)))
        rp.append(nop(7))
    rp.append(nop(15))
    for qt in range(2):
        s0 = SR(qt, 0); d = T(qt)
        rp += [v_max3(d, s0, s0 + 1, s0 + 2), v_max3(d, d, s0 + 3, s0 + 4), v_max3(d, d, s0 + 5, s0 + 6), v_max(d, d, s0 + 7)]
        rp += rowreduce(d, TMP0, v_max)
        rp.append(vop("v_max_f32", d, "0", d))
        for j in range(8): rp.append(v_sub(s0 + j, s0 + j, d))
        for j in range(4): rp.append(v_sub(NM(qt) + j, NM(qt) + j, d))
        rp.append(trans("v_exp_f32 %s, -%s" % (R(TMP1), R(d)), wr=[TMP1], rd=[d]))
        rp.append(v_mul(L(qt), L(qt), TMP1))
        for t in range(16):
            for r in range(4): rp.append(v_mul(ACC(qt, t) + r, ACC(qt, t) + r, TMP1))
    rp += sm_ops()
    rp += [nop(7), salu("s_cmp_eq_u32 %s, 0" % S(sRET)), salu("s_cbranch_scc1 L_loop"),
           salu("s_cmp_eq_u32 %s, 1" % S(sRET)), salu("s_cbranch_scc1 L_ret1"), salu("s_branch L_ret2")]
    pre_loop = pad_hazards(pre_loop)
    fb = pad_hazards(fb, prefix=pre_loop)
    lb = pad_hazards(lb, prefix=fb)
    lb = pad_hazards(lb, prefix=lb)
    assert not check_hazards(pre_loop + fb + lb + lb)
    o2 = pad_hazards(o2, prefix=lb)
    rp = pad_hazards(rp)
    return pre_loop + fb + [directive(".p2align 6"), label("L_loop")] + lb + [label("L_post")] + o2 + [label("L_postend")] + rp

def loader_wave():
    o = []; A = o.append
    lane, vKV, vW, vO, vSTAMP, vG, vD = 240, 241, 242, 243, 244, 245, 246
    A(label("L_loader"))
    A(salu("s_setprio 3"))
    A(vop("v_mov_b32", lane, 1))
    A(vop("v_and_b32", 5, "31", lane)); A(vop("v_lshlrev_b32", 5, "4", 5)); A(vop("v_lshrrev_b32", 6, "5", lane))
    A(vop("v_lshl_add_u32", vW, 6, "15", 5)); A(vop("v_lshl_add_u32", vKV, 6, "13", 5))
    issued = []
    nstamp = [0]
    def stamp():
        if not PROF: return
        A(salu("s_memtime s[80:81]")); A(wait(lgkm=0))
        A(valu("v_writelane_b32 %s, s80, %d" % (R(vSTAMP), nstamp[0]), wr=[vSTAMP])); nstamp[0] += 1
    def room(n):
        nonlocal issued
        if len(issued) > 63 - n:
            A(wait(vm=63 - n)); issued = issued[-(63 - n):]
    cont = [None]
    def off_of(typ, idx, i):
        if typ == "W": return (idx * 32 + 8 * (i >> 2) + (i & 3)) * 8192
        if typ in "KV": return idx * 16384 + 512 * i
        return ((idx & 1) * 128 + i) * 896 + (idx >> 1) * 128
    def issue1(n, i, ahead):
        if len(issued) >= 63: room(min(8, ahead))
        typ, idx = halves[n]
        srd_, vo = {"W": (sW, vW), "K": (sKd, vKV), "V": (sVd, vKV), "O": (sO, vO)}[typ]
        if cont[0] == (n, i):
            A(salu("s_addk_i32 m0, %d" % ISTR))
            step = off_of(typ, idx, i) - off_of(typ, idx, i - 1)
            if step < 32768: A(salu("s_addk_i32 %s, %d" % (S(sOFF), step)))
            else: A(salu("s_add_u32 %s, %s, %d" % (S(sOFF), S(sOFF), step)))
        else:
            A(salu("s_mov_b32 m0, %d" % (slot_addr(n) + ISTR * i)))
            A(salu("s_mov_b32 %s, %d" % (S(sOFF), off_of(typ, idx, i))))
        cont[0] = (n, i + 1)
        A(vmem("buffer_load_dwordx4 %s, %s, %s offen%s lds" % (R(vo), S(srd_, 4), S(sOFF), KVFLAG if typ in "KV" else ""), rd=[vo]))
        issued.append(n)
    def landed(n):
        nonlocal issued
        idx = [i for i, k in enumerate(issued) if k <= n]
        if idx:
            cnt = len(issued) - 1 - max(idx)
            A(wait(vm=cnt)); issued = issued[max(idx) + 1:]
    def extra(ins):
        room(1); A(ins); issued.append(1000)
    def codepf(lo, neg, n):
        A(salu("s_getpc_b64 s[82:83]" if not PROF else "s_getpc_b64 s[4:5]"))
        p = 82 if not PROF else 4
        lbl = "L_pc%d" % len(o); A(label(lbl))
        A(salu("s_sub_u32 s%d, s%d, %s-L_compute" % (p, p, lbl))); A(salu("s_subb_u32 s%d, s%d, 0" % (p + 1, p + 1)))
        A(salu("s_add_u32 s%d, s%d, %s-L_compute" % (p, p, lo))); A(salu("s_addc_u32 s%d, s%d, 0" % (p + 1, p + 1)))
        for i in range(n):
            extra(vmem("global_load_dword %s, %s, s[%d:%d]" % (R(vD), R(vG), p, p + 1), wr=[vD], rd=[vG]))
            if i + 1 < n:
                A(salu("s_add_u32 s%d, s%d, 8192" % (p, p))); A(salu("s_addc_u32 s%d, s%d, 0" % (p + 1, p + 1)))
    if PROF: A(v_mov(vSTAMP, "0"))
    stamp()
    bars = [(0, 1), (0, 2)] if FAST0 else [(0, 2)]
    bars += [(k, 13 if k == 5 else (59 if k == LASTBAR else min(2 * k + 2, 59))) for k in range(1, LASTBAR + 1)]
    pos = 0
    pfq = [(n, p) for n in L2PF for p in range(2)]
    vXG = 247
    log = []
    for bi, (k, needn) in enumerate(bars):
        consumed = 2 * max(k - 1, 0)
        def free(n):
            if n < 6: return True
            if n < 8: return bi >= 1
            if n < 24: return n - 8 < consumed
            if n == 24: return k >= 7
            return n - 9 < consumed
        nextneed = bars[bi + 1][1] if bi + 1 < len(bars) else 59
        if bi + 1 < len(bars) and bars[bi + 1][0] == LASTBAR: nextneed = 2 * LASTBAR + 2
        bud = BUDO.get(k, BUD)
        npf = min(len(pfq), PFW.get(k, 0)) if bi >= 1 else 0
        bud -= 8 * npf
        wcap = 16 * ((3 if FAST0 else 4) if bi == 0 else (2 if (FAST0 and bi in (1, 2)) else RAMP))
        todo = []
        p = pos
        while p < 960:
            n = p // 16
            if not free(n): break
            if E24 and n == 24:
                p += 1; continue
            must = n <= needn or (n <= (nextneed if k < 9 else min(nextneed, needn + MUSTA)) and bi > 0)
            kv = halves[n][0] in "KV" and n not in L2PF
            if not must:
                if len(todo) >= wcap: break
                if kv and bud <= 0: break
            if kv: bud -= 1
            todo.append(p); p += 1
        if E24 and k == E24: todo += [24 * 16 + i for i in range(16)]
        for t, q in enumerate(todo): issue1(q // 16, q % 16, len(todo) - t)
        log.append("%d:%d/%d" % (k, sum(1 for q in todo if halves[q // 16][0] in "KV" and q // 16 not in L2PF) + 8 * npf, p // 16))
        pos = p
        assert pos >= 16 * (needn + 1), (k, pos, needn)
        if bi == 0:
            A(vop("v_and_b32", 5, "7", lane)); A(vop("v_lshlrev_b32", 5, "4", 5)); A(vop("v_lshrrev_b32", 6, "3", lane))
            A(vop("v_mul_u32_u24", 6, "14336", 6)); A(vop("v_add_u32", vO, 5, 6))
            A(vop("v_lshlrev_b32", vG, "7", lane))
            A(vop("v_mul_u32_u24", vXG, "896", lane))
            A(salu("s_lshr_b32 %s, s2, 6" % S(sT2))); A(salu("s_mul_i32 %s, %s, %d" % (S(sT2), S(sT2), 56 * 896)))
            if CODEPF: codepf("L_compute", True, 2)
            A(wait(lgkm=0)); o += mktag()
        if XPF:
            for r in XPFW.get(bi, []):
                extra(vmem("buffer_load_dword %s, %s, %s, %s offen offset:%d" % (R(vD), R(vXG), S(sX, 4), S(sT2), 128 * r), wr=[vD], rd=[vXG]))
        for _ in range(npf):
            n, part = pfq.pop(0); typ, idx = halves[n]
            A(salu("s_mov_b32 %s, %d" % (S(sT0), idx * 16384 + 8192 * part)))
            extra(vmem("buffer_load_dword %s, %s, %s, %s offen" % (R(vD), R(vG), S(sKd if typ == "K" else sVd, 4), S(sT0)), wr=[vD], rd=[vG]))
        landed(needn)
        A(barrier())
        stamp()
    assert pos == 960 and not pfq
    print("loader windows k:kvunits/nexthalf", " ".join(log))
    return o, stamp, nstamp

def loader_full():
    o, stamp, nstamp = loader_wave()
    A = o.append
    lane, vSTAMP = 240, 244
    assert not (ENDBAR and (LPAIRS or PROF))
    a1, a2, vld, vout, vpa, vpd = 224, 228, 241, 242, 243, 245
    accs = [232, 236]; pk = [246, 248]
    o += red_consts(lane, a1, a2, vld, vout, 250, 251)
    A(salu("s_mul_i32 %s, %s, 7" % (S(sT2), S(sH))))
    A(salu("s_lshr_b32 %s, %s, 4" % (S(sT0), S(sT2)))); A(salu("s_add_u32 %s, %s, 6" % (S(sT1), S(sT2)))); A(salu("s_lshr_b32 %s, %s, 4" % (S(sT1), S(sT1))))
    A(salu("s_sub_u32 %s, %s, %s" % (S(sT1), S(sT1), S(sT0)))); A(salu("s_lshl_b32 %s, %s, 3" % (S(sT1), S(sT1)))); A(salu("s_lshl_b32 %s, %s, 7" % (S(sT0), S(sT0))))
    A(vop("v_and_b32", 250, "16", lane)); A(vop("v_mul_lo_u32", 250, 250, S(sT1)))
    A(vop("v_and_b32", vpa, "15", lane)); A(vop("v_lshl_add_u32", vpa, vpa, "10", 250)); A(vadd_s(vpa, sT0))
    ob = [4 + 2, 7, 8, 9, 10, 11, 12]
    for c in range(7):
        A(salu("s_add_u32 %s, %s, %d" % (S(sT3), S(sT2), c))); o += out_base(ob[c], sT3, sT0)
    A(salu("s_lshl_b32 %s, %s, 8" % (S(sT2), S(sT2))))
    for grp in ([] if NORED else LPAIRS):
        o += poll(vpa, vpd, grp[-1] + 1)
        stamp()
        offs = [13, 14, 15, 16, 17, 18, 19, 20]
        for k, j in enumerate(grp):
            for i in range(4): A(salu("s_add_u32 %s, %s, %d" % (S(offs[4 * k + i]), S(sT2), j * STG + 4 * i * PART)))
        per = 4 * len(grp)
        for c in range(7):
            for t in range(per):
                b = (c * per + t) * 4
                A(vmem("buffer_load_dwordx4 %s, %s, %s, %s offen offset:%d sc1" % (R(b, 4), R(vld), S(sP, 4), S(offs[t]), 256 * c), wr=rr(b, 4), rd=[vld]))
        for c in range(7):
            acc = accs[c & 1]; p = pk[c & 1]
            A(wait(vm=(6 - c) * per + c))
            for t in range(per): A(mfma16(acc, a2 if t >= 4 else a1, (c * per + t) * 4, acc if t else None))
            A(v_cvtpk(p, acc, acc + 1)); A(v_cvtpk(p + 1, acc + 2, acc + 3))
            A(salu("s_add_u32 %s, %s, %d" % (S(sOFF), S(ob[c]), 128 * grp[0])))
            if len(grp) == 1: A(salu("s_mov_b32 exec_hi, 0"))
            A(vmem("buffer_store_dwordx2 %s, %s, %s, %s offen" % (R(p, 2), R(vout), S(sOUT, 4), S(sOFF)), rd=[p, p + 1, vout], store=True))
            if len(grp) == 1: A(salu("s_mov_b64 exec, -1")); A(nop(4))
        stamp()
    if PROF:
        A(barrier()); stamp()
        A(salu("s_memrealtime s[80:81]")); A(wait(lgkm=0))
        A(salu("s_sub_u32 s80, s80, s82"))
        A(valu("v_writelane_b32 %s, s80, 62" % R(vSTAMP), wr=[vSTAMP]))
        A(valu("v_writelane_b32 %s, s84, 63" % R(vSTAMP), wr=[vSTAMP]))
        A(valu("v_writelane_b32 %s, s82, 60" % R(vSTAMP), wr=[vSTAMP]))
        A(vop("v_lshlrev_b32", 4, "2", lane))
        A(salu("s_lshl_b32 s80, s2, 8"))
        A(vmem("buffer_store_dword %s, v4, s[76:79], s80 offen" % R(vSTAMP), rd=[vSTAMP, 4], store=True))
        A(wait(vm=0))
    A(salu("s_endpgm"))
    return pad_hazards(o)

def srd(d, lo, hi, off_s, size):
    o = [salu("s_add_u32 %s, %s, %s" % (S(d), S(lo), S(off_s))), salu("s_addc_u32 %s, %s, 0" % (S(d + 1), S(hi)))]
    o.append(salu("s_mov_b32 %s, %s" % (S(d + 2), size if isinstance(size, str) else "0x%x" % size)))
    o.append(salu("s_mov_b32 %s, 0x20000" % S(d + 3)))
    return o

def k1():
    o = []; A = o.append
    A(salu("s_load_dwordx16 s[4:19], s[0:1], 0"))
    A(salu("s_load_dwordx8 s[60:67], s[0:1], 64"))
    A(salu("s_load_dwordx2 s[24:25], s[0:1], 96"))
    A(salu("s_cmp_ge_u32 s2, 256")); A(salu("s_cbranch_scc1 L_exit1"))
    if PROF:
        A(salu("s_memrealtime s[82:83]")); A(salu("s_memtime s[84:85]"))
    A(vop("v_lshrrev_b32", 2, "6", 0)); A(vop("v_and_b32", 1, "63", 0))
    A(salu("s_and_b32 s26, s2, 3")); A(salu("s_lshl_b32 s26, s26, 2")); A(salu("s_lshr_b32 s27, s2, 6")); A(salu("s_add_u32 s26, s26, s27"))
    A(valu("v_readfirstlane_b32 %s, v2" % S(sWID), rd=[2], swr=[sWID]))
    A(salu("s_lshr_b32 s27, s2, 3")); A(salu("s_and_b32 s27, s27, 7"))
    A(salu("s_lshr_b32 s28, s2, 2")); A(salu("s_and_b32 s28, s28, 1"))
    A(salu("s_lshl_b32 s29, s27, 4")); A(salu("s_add_u32 s29, s29, s26"))
    A(salu("s_mul_i32 s30, s27, 200704"))
    A(salu("s_lshl_b32 s31, s29, 18"))
    A(salu("s_lshl_b32 s32, s26, 9"))
    A(salu("s_mul_i32 s33, s26, 229376"))
    A(salu("s_lshl_b32 s34, s28, 3")); A(salu("s_add_u32 s34, s34, s27"))
    A(salu("s_lshl_b32 s20, s34, 14")); A(salu("s_add_u32 s20, s20, 0x%x" % FLAG_OFF))
    A(salu("s_mul_i32 s34, s34, %d" % (16 * PART)))
    A(salu("s_mul_i32 %s, s26, %d" % (S(sPB), PART)))
    A(salu("s_mul_i32 s21, s27, %d" % (224 * 1792))); A(salu("s_mul_i32 s22, s28, 896")); A(salu("s_add_u32 s21, s21, s22"))
    A(salu("s_sub_u32 s22, %d, s21" % (8 * 224 * 1792)))
    A(salu("s_sub_u32 s35, %d, s32" % (448 * 8192)))
    A(salu("s_cmp_eq_u32 s28, 0"))
    A(wait(lgkm=0))
    for d, b in ((10, 60), (4, 14), (6, 16), (8, 18), (12, 62)): A(salu("s_cselect_b64 %s, %s, %s" % (S(d, 2), S(d, 2), S(b, 2))))
    o += srd(sW, 10, 11, 32, "s35")
    o += srd(sX, 4, 5, 30, 200704)
    o += srd(sKd, 6, 7, 31, 262144)
    o += srd(sVd, 8, 9, 31, 262144)
    o += srd(sO, 12, 13, 33, 229376)
    o += srd(sP, 24, 25, 34, 16 * PART)
    o += srd(sF, 24, 25, 20, 16384)
    o += srd(sOUT, 64, 65, 21, "s22")
    A(salu("s_buffer_load_dword %s, %s, 0x380" % (S(sTAG), S(sF, 4))))
    if PROF:
        A(salu("s_mov_b32 s80, 0x%x" % PROF_OFF)); o += srd(76, 24, 25, 80, 65536)
    A(salu("s_cmp_eq_u32 %s, 7" % S(sWID))); A(salu("s_cbranch_scc1 L_loader"))
    o = pad_hazards(o)
    o += compute_wave() + loader_full()
    o += [label("L_exit1"), salu("s_endpgm")]
    return o

def kd(name, vg, sg):
    return """.amdhsa_kernel %s
  .amdhsa_next_free_vgpr %d
  .amdhsa_next_free_sgpr %d
  .amdhsa_accum_offset %d
  .amdhsa_group_segment_fixed_size 0
  .amdhsa_kernarg_size 104
  .amdhsa_user_sgpr_count 2
  .amdhsa_user_sgpr_kernarg_segment_ptr 1
  .amdhsa_system_sgpr_workgroup_id_x 1
.end_amdhsa_kernel""" % (name, vg, sg, (vg + 3) // 4 * 4)

K1 = NAME + "_kernel"
src = []
src.append("; @launch grid=(256,1,1) block=(512,1,1) lds=%d" % LDS_BYTES)
src.append('.amdgcn_target "amdgcn-amd-amdhsa--gfx950"\n.text')
src.append(".globl %s\n.p2align 8\n.type %s,@function\n%s:" % (K1, K1, K1))
src.append(text(k1()))
src.append('.section .rodata,"a"\n.p2align 6')
src.append(kd(K1, 256, 100))
open(OUT, "w").write("\n".join(src) + "\n")
print("wrote", OUT)
```

```python
import sys, math, struct
from asmlib import *

NAME = "concat_heads__mha_block_cached__gqa_block_cached__near_ridge"
def opt(name, default):
    for a in sys.argv:
        if a.startswith("--%s=" % name): return a.split("=", 1)[1]
    return default
DBG = "--dbg" in sys.argv
PROF = "--prof" in sys.argv or DBG
KVFLAG = opt("kv", "_nt").replace("_", " ")
RAMP = int(opt("ramp", "3"))
XSLOT = int(opt("xslot", "2")); XSLOT0 = int(opt("xslot0", "8"))
STGAP = int(opt("stgap", "1"))
PUB = opt("pub", "late")
PUBSLOT = int(opt("pubslot", "8"))
LPAIRS = [tuple(int(c) for c in p) for p in opt("lpairs", "").split(",") if p]
CBATCH = [tuple(int(c) for c in p) for p in opt("cbatch", "0123,456").split(",")]
PUBS = sorted(set([p[-1] for p in LPAIRS] + [p[-1] for p in CBATCH]) - {6})
THROT = int(opt("throt", "0"))
ENDBAR = int(opt("endbar", "1"))
WOPF = int(opt("wopf", "15"))
CODEPF = int(opt("codepf", "1"))
FAST0 = int(opt("fast0", "1"))
KLATE = int(opt("klate", "1"))
SLEEP = int(opt("sleep", "4"))
NORED = "--nored" in sys.argv
PUB1 = int(opt("pub1", "3"))
WARMX = int(opt("warmx", "0")); WARMW = int(opt("warmw", "0"))
STOCK = [int(x) for x in opt("stock", "").split(",") if x]
STOCKW = [int(x) for x in opt("stockw", "2,3,4").split(",") if x]
def dct(name, default): return {int(x.split(":")[0]): int(x.split(":")[1]) for x in opt(name, default).split(",") if x}
BUD = int(opt("bud", "28")); BUDO = dct("budo", "5:28,6:28,7:30,8:42")
L2PF = [int(x) for x in opt("l2pf", "").split(",") if x]
PFW = dct("pfw", "1:2,2:2,3:2,4:2")
XPF = int(opt("xpf", "0"))
OLOOP = int(opt("oloop", "1"))
CPF2 = int(opt("cpf2", "1"))
W0CAP = int(opt("w0cap", "1"))
OCV = int(opt("ocv", "4"))
MUSTA = int(opt("musta", "1"))
E24 = int(opt("e24", "8"))
XPFW = {0: [2], 1: [3], 2: [4], 3: [5], 4: [6]}
TAILV = int(opt("tailv", "2"))
STFLAG = opt("st", "_sc1").replace("_", " ")
OUT = [a for a in sys.argv[1:] if not a.startswith("--")]
OUT = OUT[0] if OUT else "cdna_kernels/%s.s" % NAME

SLOT = 16896; NSLOT = 9; ISTR = 1056
LDS_BYTES = 163840
PART = 200704; STG = 28672
FLAG_OFF = 56 << 20
PROF_OFF = 64 << 20
CSCALE = math.log2(math.e) / 16.0
THR = 65536.0
SPIN = 400000
def f2u(x): return struct.unpack("<I", struct.pack("<f", x))[0]

def ACC(qt, t): return 8 * t + 4 * qt
def OACC(s, qt, tau): return 32 * s + 8 * tau + 4 * qt
def QF(qt, u): return 128 + 32 * qt + 4 * u
def SR(qt, z): return 192 + 8 * qt + 4 * z
def SR0(qt, z): return 8 * qt + 4 * z
def PR(qt): return 208 + 4 * qt
def NM(qt): return 216 + 4 * qt
FB0 = 224
BUFSEQ = [0,1,2,3,4,5, 0,1,2,3,4, 0,1,2,3,4]; DEPTH = 5
vK, vT = 248, 249
def L(qt): return 250 + qt
def T(qt): return 252 + qt
TMP0, TMP1 = 254, 255
vT1, vXO, vBP = 252, 253, 254
vST, vFO, vFV = 248, 252, 253
def XF(qt, s):
    if s < 10: return 128 + 8 * (s % 8) + 4 * qt
    return 192 + 8 * (s - 10) + 4 * qt

sWID = 3
sH, sB, sBLK = 26, 27, 28
sX, sW, sKd, sVd, sO, sP, sF, sOUT = 36, 40, 44, 48, 52, 56, 92, 96
sC, sKT, sTHR, sKpos, sVpos, sDK, sDV, sPOS, sNEG, sCNT, sRET, sT0, sT1, sOFF, sXB = 60, 61, 62, 63, 64, 65, 66, 67, 68, 69, 70, 71, 72, 73, 74
sPB = 75
sFL, sOR = 86, 88
sTAG = 90
sT2, sT3 = 29, 30

halves = [("W", i) for i in range(14)] + [("K", 0), ("K", 1)]
for i in range(1, 15): halves += [("V", i - 1), ("K", i + 1)]
halves += [("V", 14), ("V", 15)] + [("O", i) for i in range(14)]
assert len(halves) == 60
def slot_idx(n): return n % 8 if n < 16 else (n - 16) % NSLOT
def slot_addr(n): return slot_idx(n) * SLOT
XPRIV = 8 * SLOT; X0ADDR = 6 * SLOT
LASTBAR = int(opt("lastbar", "28"))

class Half:
    def __init__(self, n, reads, mf, pre): self.n = n; self.reads = reads; self.mf = mf; self.pre = pre
def vadd_lit(reg, delta): return valu("v_add_u32 %s, 0x%x, %s" % (R(reg), delta & 0xffffffff, R(reg)), wr=[reg], rd=[reg])
def vadd_s(reg, s): return valu("v_add_u32 %s, %s, %s" % (R(reg), S(s), R(reg)), wr=[reg], rd=[reg])
def vop(op, d, *src):
    t = "%s %s, %s" % (op, R(d), ", ".join(R(x) if isinstance(x, int) else x for x in src))
    return valu(t, wr=[d], rd=[x for x in src if isinstance(x, int)])
def lane_id(d): return [vop("v_mbcnt_lo_u32_b32", d, "-1", "0"), vop("v_mbcnt_hi_u32_b32", d, "-1", d)]

def half_W(s, pre):
    def reads(f, b):
        a = vT1 if f & 1 else vT
        return [dsrtr(b, a, 32 * f), dsrtr(b + 2, a, 32 * f + 512)]
    def mf(f, b): return [mfma16(ACC(qt, f), b, XF(qt, s), None if s == 0 else ACC(qt, f)) for qt in range(2)]
    return Half(16, reads, mf, pre)
def half_W2(s, pre):
    assert slot_addr(s + 1) == slot_addr(s) + SLOT
    def reads(f, b):
        t, e = f >> 1, f & 1
        a = vT1 if t & 1 else vT
        return [dsrtr(b, a, e * SLOT + 32 * t), dsrtr(b + 2, a, e * SLOT + 32 * t + 512)]
    def mf(f, b):
        t, e = f >> 1, f & 1
        return [mfma16(ACC(qt, t), b, XF(qt, s + e), ACC(qt, t)) for qt in range(2)]
    return Half(32, reads, mf, pre)
def half_K(pre, first=False):
    sr = SR0 if first else SR
    def reads(f, b): return [dsr128(b, vK, 512 * (f & 1) + 64 * (f >> 1))]
    def mf(f, b):
        u, z = f >> 1, f & 1
        return [mfma16(sr(qt, z), b, QF(qt, u), (None if first else NM(qt)) if u == 0 else sr(qt, z)) for qt in range(2)]
    return Half(16, reads, mf, pre)
def half_V(pre, first=False):
    def reads(f, b): return [dsrtr(b, vT, 32 * f), dsrtr(b + 2, vT, 32 * f + 512)]
    def mf(f, b): return [mfma16(ACC(qt, f), b, PR(qt), None if first else ACC(qt, f)) for qt in range(2)]
    return Half(16, reads, mf, pre)
def half_O(hh, aset, pre):
    def reads(f, b):
        ks, tau = f >> 2, f & 3
        return [dsrtr(b, vT, 256 * ks + 32 * tau), dsrtr(b + 2, vT, 256 * ks + 128 + 32 * tau)]
    def mf(f, b):
        ks, tau = f >> 2, f & 3
        u = 4 * hh + ks
        return [mfma16(OACC(aset, qt, tau), b, QF(qt, u), None if u == 0 else OACC(aset, qt, tau)) for qt in range(2)]
    return Half(16, reads, mf, pre)

class Stream:
    def __init__(self): self.o = []; self.q = []; self.pend = []
    def buf(self, f): return FB0 + 4 * BUFSEQ[f % 16]
    def lds(self, ins, key): self.o.append(ins); self.q.append(key)
    def first_read(self, h, f):
        rs = h.reads(f, self.buf(f)); key = (id(h), f)
        if KLATE and len(rs) == 1:
            self.pend = [(rs[0], key)]
            return (h.pre if f == 0 else []), []
        self.pend = [(r, key) for r in rs[1:]]
        return (h.pre if f == 0 else []), [(rs[0], key)]
    def preload(self, h):
        for f in range(DEPTH):
            for r, k in self.pend: self.lds(r, k)
            pre, rs = self.first_read(h, f)
            self.o += pre
            for r, k in rs: self.lds(r, k)
    def rekey(self, hold, hnew):
        f = lambda k: (id(hnew), k[1]) if k[0] == id(hold) else k
        self.q = [f(k) for k in self.q]; self.pend = [(r, f(k)) for r, k in self.pend]
    def waitfor(self, keys):
        idx = [i for i, k in enumerate(self.q) if k in keys]
        if idx:
            last = max(idx); n = len(self.q) - 1 - last
            assert n <= 15
            self.o.append(wait(lgkm=n)); self.q = self.q[last + 1:]
    def run(self, h, nxt, fill=None, head=None, post=None, ldsx=None, needs=None):
        fill = fill or {}; head = head or {}; post = post or {}; ldsx = ldsx or {}; needs = needs or {}
        for d in (fill, head, post, ldsx): assert all(0 <= k < 2 * h.n for k in d), d.keys()
        for f in range(h.n):
            ms = h.mf(f, self.buf(f))
            for k, m in enumerate(ms):
                sl = 2 * f + k
                self.o += head.get(sl, [])
                if k == 0:
                    assert not any(kk == (id(h), f) for _, kk in self.pend)
                    self.waitfor([(id(h), f)] + needs.get(f, []))
                self.o.append(m)
                pre, rs = [], []
                if k == 0:
                    rs = self.pend; self.pend = []
                else:
                    g = f + DEPTH
                    if g < h.n: pre, rs = self.first_read(h, g)
                    elif nxt is not None: pre, rs = self.first_read(nxt, g - h.n)
                self.o += fill.get(sl, []) + pre
                for r, kk in rs: self.lds(r, kk)
                for r, kk in ldsx.get(sl, []): self.lds(r, kk)
                self.o += post.get(sl, [])

def cost(op):
    if op.kind == "vst": return 2 if STGAP else 0
    return 2 if op.kind in ("trans", "perm") else (1 if op.kind == "valu" else 0)
def pack(ops, lo, d=None, cap=2):
    d = d if d is not None else {}
    s = lo
    for op in ops:
        while sum(cost(x) for x in d.get(s, [])) + cost(op) > cap: s += 1
        d.setdefault(s, []).append(op)
    return d, s
def split(d, n): return {k: v for k, v in d.items() if k < n}, {k - n: v for k, v in d.items() if k >= n}
def flat(d):
    o = []
    for k in sorted(d): o += d[k]
    return o

def sm_ops(sr=SR):
    ops = []
    def s(qt, j): return sr(qt, 0) + j
    for j in range(0, 9):
        if j < 8:
            for qt in range(2): ops.append(v_exp(s(qt, j), s(qt, j)))
        if j >= 2:
            for qt in range(2):
                ops.append(v_add(T(qt), s(qt, 0), s(qt, 1)) if j == 2 else v_add(T(qt), T(qt), s(qt, j - 1)))
    return ops
def check_ops():
    return [v_max(TMP0, T(0), T(1)), valu("v_cmp_nge_f32 vcc, %s, %s" % (S(sTHR), R(TMP0)), rd=[TMP0], swr=["vcc"])]
def pcvt(qt, z, sr=SR): return [v_cvtpk(PR(qt) + 2 * z, sr(qt, z), sr(qt, z) + 1), v_cvtpk(PR(qt) + 2 * z + 1, sr(qt, z) + 2, sr(qt, z) + 3)]
def ladd(): return [v_add(L(qt), L(qt), T(qt)) for qt in range(2)]
def rowreduce(reg, tmp, op):
    return [v_mov(tmp, R(reg), [reg]), v_swap16(reg, tmp), op(reg, reg, tmp),
            v_mov(tmp, R(reg), [reg]), v_swap32(reg, tmp), op(reg, reg, tmp)]
def qk_head():
    head = {0: pcvt(0, 0)}
    fill = {0: pcvt(1, 0), 1: pcvt(0, 1), 2: pcvt(1, 1), 3: ladd()}
    return head, fill

def red_consts(lane, a1, a2, vld, vout, t0, t1):
    o = []
    o.append(vop("v_and_b32", t0, "15", lane))
    for base, sh in ((a1, 0), (a2, 8)):
        for r in range(4):
            o.append(vop("v_mov_b32", base + r, "0"))
            o.append(valu("v_cmp_eq_u32 vcc, %d, %s" % (2 * r + sh, R(t0)), rd=[t0], swr=["vcc"]))
            o.append(vop("v_mov_b32", t1, "0x3f80"))
            o.append(valu("v_cndmask_b32 %s, %s, %s, vcc" % (R(base + r), R(base + r), R(t1)), wr=[base + r], rd=[base + r, t1], srd=["vcc"]))
            o.append(valu("v_cmp_eq_u32 vcc, %d, %s" % (2 * r + 1 + sh, R(t0)), rd=[t0], swr=["vcc"]))
            o.append(vop("v_mov_b32", t1, "0x3f800000"))
            o.append(valu("v_cndmask_b32 %s, %s, %s, vcc" % (R(base + r), R(base + r), R(t1)), wr=[base + r], rd=[base + r, t1], srd=["vcc"]))
    o.append(vop("v_lshrrev_b32", t1, "4", lane))
    o.append(vop("v_mul_u32_u24", vld, "0x%x" % PART, t1))
    o.append(vop("v_lshl_add_u32", vld, t0, "4", vld))
    o.append(vop("v_mul_u32_u24", vout, "1792", t0))
    o.append(vop("v_and_b32", t0, "1", t1))
    o.append(vop("v_lshl_add_u32", vout, t0, "5", vout))
    o.append(vop("v_lshrrev_b32", t0, "1", t1))
    o.append(vop("v_lshl_add_u32", vout, t0, "7", vout))
    return o
def out_base(dst, ci, tmp):
    return [salu("s_lshr_b32 %s, %s, 3" % (S(dst), S(ci))), salu("s_mul_i32 %s, %s, %d" % (S(dst), S(dst), 16 * 1792)),
            salu("s_and_b32 %s, %s, 3" % (S(tmp), S(ci))), salu("s_lshl_b32 %s, %s, 3" % (S(tmp), S(tmp))),
            salu("s_add_u32 %s, %s, %s" % (S(dst), S(dst), S(tmp))),
            salu("s_and_b32 %s, %s, 4" % (S(tmp), S(ci))), salu("s_lshl_b32 %s, %s, 4" % (S(tmp), S(tmp))),
            salu("s_add_u32 %s, %s, %s" % (S(dst), S(dst), S(tmp)))]
def mktag(): return [salu("s_mul_i32 %s, %s, 0x9e3779b1" % (S(sTAG), S(sTAG))), salu("s_add_u32 %s, %s, 0x7f4a7c15" % (S(sTAG), S(sTAG)))]
_pl = [0]
def pollload(vaddr, vdat):
    return vmem("buffer_load_dword %s, %s, %s, 0 offen sc1" % (R(vdat), R(vaddr), S(sF, 4)), wr=[vdat], rd=[vaddr])
def poll(vaddr, vdat, need, pre=False):
    _pl[0] += 1; lb = "L_poll%d" % _pl[0]
    first = [salu("s_add_u32 %s, %s, %d" % (S(sT1), S(sTAG), need)), wait(vm=4), salu("s_branch %sc" % lb)] if pre else []
    return [salu("s_mov_b32 %s, %d" % (S(sCNT), SPIN))] + first + [label(lb),
            vmem("buffer_load_dword %s, %s, %s, 0 offen sc1" % (R(vdat), R(vaddr), S(sF, 4)), wr=[vdat], rd=[vaddr]),
            salu("s_sub_u32 %s, %s, 1" % (S(sCNT), S(sCNT))), salu("s_cbranch_scc1 L_exit1"),
            salu("s_add_u32 %s, %s, %d" % (S(sT1), S(sTAG), need)),
            wait(vm=0), label(lb + "c"),
            vop("v_subrev_u32", vdat, S(sT1), vdat),
            valu("v_cmp_lt_u32 vcc, %d, %s" % (7 - need, R(vdat)), rd=[vdat], swr=["vcc"]),
            nop(0), salu("s_cbranch_vccz %sx" % lb), salu("s_sleep %d" % SLEEP), salu("s_branch %s" % lb), label(lb + "x")]

def compute_wave(late):
    st = Stream(); o = st.o; A = o.append
    o += [label("L_compute")]
    def xdma(r, base):
        ops = []
        for e in range(2):
            for qt in range(2):
                sidx = 2 * r + e
                ops.append([salu("s_add_u32 m0, %s, %d" % (S(sXB), base + (2 * e + qt) * 1024 - 64 * sidx)),
                            vmem("buffer_load_dwordx4 %s, %s, %s offen offset:%d lds" % (R(vXO), S(sX, 4), S(sT1) if qt else "0", 64 * sidx), rd=[vXO])])
        return ops
    def xread(r, base):
        return [(dsr128(XF(qt, 2 * r + e), vBP, base - X0ADDR + (2 * e + qt) * 1024), ("x", r)) for e in range(2) for qt in range(2)]
    for g in xdma(0, X0ADDR) + xdma(1, XPRIV): o += g
    o += late
    NG = WARMX + WARMW
    if WARMX:
        A(salu("s_lshr_b32 %s, s2, 6" % S(sT0))); A(salu("s_mul_i32 %s, %s, 7" % (S(sT0), S(sT0)))); A(salu("s_add_u32 %s, %s, %s" % (S(sT0), S(sT0), S(sWID))))
        A(salu("s_mul_i32 %s, %s, %d" % (S(sT0), S(sT0), 56 * 128))); A(vop("v_lshlrev_b32", 8, "7", 1))
        A(vmem("buffer_load_dword v251, v8, %s, %s offen" % (S(sX, 4), S(sT0)), wr=[251], rd=[8]))
    if WARMW:
        A(salu("s_mul_i32 %s, %s, 44" % (S(sT0), S(sB)))); A(salu("s_lshl_b32 %s, %s, 4" % (S(sOFF), S(sWID)))); A(salu("s_add_u32 %s, %s, %s" % (S(sT0), S(sT0), S(sOFF))))
        A(salu("s_add_u32 %s, %s, 96" % (S(sT0), S(sT0)))); A(salu("s_cmp_lt_u32 %s, 3" % S(sWID))); A(salu("s_cselect_b32 %s, %s, 4096" % (S(sT0), S(sT0))))
        A(salu("s_lshl_b32 %s, %s, 13" % (S(sT0), S(sT0))))
        A(vop("v_lshlrev_b32", 10, "13", 5)); A(vop("v_lshl_add_u32", 10, 6, "7", 10))
        A(vmem("buffer_load_dword v255, v10, %s, %s offen" % (S(sW, 4), S(sT0)), wr=[255], rd=[10]))
    A(vop("v_mul_u32_u24", 5, str(ISTR), 5)); A(vop("v_lshl_add_u32", vT, 6, "3", 5)); A(vop("v_xor_b32", vT1, "16", vT))
    A(vop("v_and_b32", 2, "15", 1)); A(vop("v_lshrrev_b32", 3, "4", 1))
    A(vop("v_lshrrev_b32", 6, "2", 2)); A(vop("v_sub_u32", 6, "0", 6)); A(vop("v_xor_b32", 6, 6, 3)); A(vop("v_and_b32", 6, "3", 6))
    A(vop("v_lshl_add_u32", 6, 2, "2", 6)); A(vop("v_lshlrev_b32", 6, "4", 6)); A(vop("v_add_u32", 6, S(sXB), 6))
    A(vop("v_add_u32", vBP, "0x%x" % X0ADDR, 6))
    A(vop("v_lshlrev_b32", 6, "1", 3)); A(vop("v_mov_b32", 7, "0x9c")); A(vop("v_lshrrev_b32", 6, 6, 7)); A(vop("v_and_b32", 6, "3", 6))
    A(vop("v_mul_u32_u24", 5, str(ISTR), 2)); A(vop("v_lshl_add_u32", vK, 6, "4", 5)); A(vadd_lit(vK, slot_addr(14)))
    A(vop("v_mov_b32", L(0), "0x%x" % f2u(CSCALE)))
    A(salu("s_mov_b32 %s, 0x%x" % (S(sTHR), f2u(THR))))
    A(salu("s_mov_b32 %s, %d" % (S(sPOS), 2 * SLOT)))
    A(salu("s_mov_b32 %s, %d" % (S(sNEG), -7 * SLOT)))
    A(wait(vm=4 + NG))
    for r, k in xread(0, X0ADDR): st.lds(r, k)
    A(wait(lgkm=0)); st.q = []
    def wpre(n):
        if n == 0: return []
        d = slot_addr(n) - slot_addr(n - 1)
        return [vadd_lit(vT, d), vadd_lit(vT1, d)]
    HW = [half_W(s, wpre(s)) for s in range(12)] + [half_W2(12, wpre(12))]
    HK0 = half_K([], first=True)
    A(barrier())
    st.preload(HW[0])
    A(salu("s_buffer_load_dword %s, %s, 0x380" % (S(sTAG), S(sF, 4))))
    def qconv(u):
        grp = [(qt, e) for e in range(2) for qt in range(2)]
        mul = lambda qt, e: [vop("v_mul_f32", ACC(qt, 2 * u + e) + r, L(0), ACC(qt, 2 * u + e) + r) for r in range(4)]
        cvt = lambda qt, e: [v_cvtpk(QF(qt, u) + 2 * e + h, ACC(qt, 2 * u + e) + 2 * h, ACC(qt, 2 * u + e) + 2 * h + 1) for h in range(2)]
        swp = lambda qt: [v_swap16(QF(qt, u) + h, QF(qt, u) + 2 + h) for h in range(2)]
        return mul(0, 0) + mul(1, 0) + cvt(0, 0) + mul(0, 1) + cvt(1, 0) + mul(1, 1) + cvt(0, 1) + cvt(1, 1) + swp(0) + swp(1)
    for s in range(12):
        post = {}; ldsx = {}; head = {}; needs = {}
        if not (s & 1):
            r = s // 2 + 1
            st0 = XSLOT0 if s == 0 else XSLOT
            head[st0] = [wait(vm=NG if s == 0 else 0)]
            for i, e in enumerate(xread(r, XPRIV)): ldsx.setdefault(st0 + 2 * i, []).append(e)
            fd = (st0 + 6) // 2 + 4
            assert fd + 4 <= 16
            needs[fd] = [("x", r)]
            if r + 1 < 7:
                for i, g in enumerate(xdma(r + 1, XPRIV)):
                    head.setdefault(2 * fd + 2 * i + 1, []).append(g[0]); post.setdefault(2 * fd + 2 * i + 1, []).append(g[1])
        st.run(HW[s], HW[s + 1], None, head, post, ldsx, needs)
        if s == 5:
            A(wait(lgkm=0)); st.q = []; o += mktag()
        if (s & 1) or (s == 0 and FAST0): A(barrier())
    allc = [(u, op) for u in range(8) for op in qconv(u)]
    fill = {}; i = 0
    for sl in range(64):
        while i < len(allc) and sl >= 8 * allc[i][0] + 11 and sum(cost(x) for x in fill.get(sl, [])) + cost(allc[i][1]) <= 2:
            fill.setdefault(sl, []).append(allc[i][1]); i += 1
    st.run(HW[12], HK0, fill)
    rest = allc[i:]
    def try_take(n):
        d = {}; sl = 0
        for u, op in rest[len(rest) - n:]:
            while sum(cost(x) for x in d.get(sl, [])) + cost(op) > 2: sl += 1
            if sl >= 4 * u - 2: return None
            d.setdefault(sl, []).append(op)
        return d
    take = max(n for n in range(len(rest) + 1) if try_take(n) is not None)
    fillK = try_take(take)
    blk = [op for _, op in rest[:len(rest) - take]]
    A(barrier())
    o += blk
    HK1 = half_K([vadd_lit(vK, slot_addr(15) - slot_addr(14))])
    post = {27: [salu("s_mov_b32 %s, %d" % (S(sKpos), slot_addr(17))), salu("s_mov_b32 %s, %d" % (S(sVpos), slot_addr(16)))],
            28: [salu("s_mov_b32 %s, 13" % S(sCNT)), salu("s_mov_b32 %s, 0" % S(sRET))], 29: [salu("s_mov_b32 %s, 16384" % S(sKT))]}
    st.run(HK0, HK1, fillK, None, post)
    ma = []; mb = []
    for qt, lst in ((0, ma), (1, mb)):
        s0 = SR0(qt, 0); m = NM(qt)
        lst += [v_max3(m, s0, s0 + 1, s0 + 2), v_max3(m, m, s0 + 3, s0 + 4), v_max3(m, m, s0 + 5, s0 + 6), v_max(m, m, s0 + 7)]
        lst += rowreduce(m, TMP0 + qt, v_max)
        lst += [vop("v_sub_f32", m, "0", m)] + [v_mov(m + j, R(m), [m]) for j in range(1, 4)]
    for a, b in zip(ma, mb): o += [a, b]
    adds = [v_add(SR0(qt, 0) + j, SR0(qt, 0) + j, NM(qt)) for j in range(8) for qt in range(2)]
    sm0 = sm_ops(SR0)
    ops = adds[:4]; ai = 4
    for op in sm0:
        ops.append(op)
        if op.kind == "trans" and (len([x for x in ops if x.kind == "trans"]) % 2 == 0) and ai < 16:
            ops += adds[ai:ai + 2]; ai += 2
    ops += pcvt(0, 0, SR0) + pcvt(1, 0, SR0) + pcvt(0, 1, SR0) + pcvt(1, 1, SR0) + [v_mov(L(qt), R(T(qt)), [T(qt)]) for qt in range(2)]
    fill, nx = pack(ops, 0)
    fill, over = split(fill, 32)
    HVn = half_V([vadd_lit(vT, slot_addr(16) - slot_addr(12))])
    st.run(HK1, HVn, fill)
    o += flat(over)
    print("conv: woven W", i, "block", len(blk), "woven K", take, "sm0 overflow", len(flat(over)))
    pre_loop = list(o)

    def pv_fill():
        d, n = pack(sm_ops() + check_ops(), 0)
        assert n < 31
        return d
    def slotcalc():
        return [salu("s_cmp_gt_u32 %s, %d" % (S(sKpos), 6 * SLOT)), salu("s_cselect_b32 %s, %s, %s" % (S(sDK), S(sNEG), S(sPOS))),
                salu("s_add_u32 %s, %s, %s" % (S(sKpos), S(sKpos), S(sDK))),
                salu("s_cmp_gt_u32 %s, %d" % (S(sVpos), 6 * SLOT)), salu("s_cselect_b32 %s, %s, %s" % (S(sDV), S(sNEG), S(sPOS))),
                salu("s_add_u32 %s, %s, %s" % (S(sVpos), S(sVpos), S(sDV)))]
    HKn = half_K([])
    def pv_part(first, nxt, extra):
        HV = half_V([], first=first); st.rekey(HVn, HV)
        st.o.append(barrier())
        post = {}
        for i, x in enumerate(extra): post.setdefault(2 * i, []).append(x)
        st.run(HV, nxt, pv_fill(), None, post)
    def qk_part(extra):
        HK = half_K([]); st.rekey(HKn, HK)
        nxt = half_V([vadd_s(vT, sDV)])
        head, fill = qk_head()
        post = {}
        for i, x in enumerate(extra): post.setdefault(4 + 2 * i, []).append(x)
        st.run(HK, nxt, fill, head, post)
        st.rekey(nxt, HVn)
    ktadd = salu("s_add_u32 %s, %s, 16384" % (S(sKT), S(sKT)))
    st.o = []; fb = st.o
    nk = half_K([vadd_s(vK, sDK)])
    pv_part(True, nk, [salu("s_mov_b32 %s, %d" % (S(sDK), slot_addr(17) - slot_addr(15)))] + slotcalc()[3:] + [salu("s_mov_b64 %s, 0" % S(sFL, 2))]); st.rekey(nk, HKn)
    fb.append(salu("s_cbranch_vccnz L_rare"))
    q0 = (list(st.q), [k for _, k in st.pend])
    st.o = []; lb = st.o
    qk_part([ktadd])
    nk = half_K([vadd_s(vK, sDK)])
    pv_part(False, nk, slotcalc() + [salu("s_sub_u32 %s, %s, 1" % (S(sCNT), S(sCNT))), salu("s_cmp_eq_u32 %s, 0" % S(sCNT)),
                                     salu("s_cselect_b32 %s, 1, 0" % S(sFL)), salu("s_mov_b32 %s, %s" % (S(sRET), S(sFL)))]); st.rekey(nk, HKn)
    lb.append(salu("s_or_b64 %s, vcc, %s" % (S(sOR, 2), S(sFL, 2))))
    lb.append(salu("s_cbranch_scc0 L_loop"))
    assert (st.q, [k for _, k in st.pend]) == q0
    st.o = []; o2 = st.o; A = o2.append
    A(salu("s_cbranch_vccnz L_rare")); A(label("L_ret1"))
    pfo = []
    if WOPF:
        pfo += lane_id(TMP1) + [salu("s_mul_i32 %s, %s, 28672" % (S(sT0), S(sB))), salu("s_add_u32 %s, %s, %s" % (S(sT0), S(sT0), S(sXB))),
                vop("v_and_b32", TMP0, "32", TMP1), vop("v_lshlrev_b32", TMP0, "16", TMP0), vop("v_lshl_add_u32", TMP0, TMP1, "7", TMP0),
                vmem("buffer_load_dword %s, %s, %s, %s offen" % (R(vK), R(TMP0), S(sO, 4), S(sT0)), wr=[vK], rd=[TMP0])]
    if CODEPF and not CPF2:
        pfo += [salu("s_getpc_b64 s[4:5]"), label("L_pcc"), salu("s_mul_i32 %s, %s, 6144" % (S(sT0), S(sWID))),
                salu("s_mov_b32 s6, L_exit1-L_pcc"), salu("s_mov_b32 s7, 0x20000")] + lane_id(TMP1) + [vop("v_mul_u32_u24", TMP1, "96", TMP1),
                vmem("buffer_load_dword %s, %s, s[4:7], %s offen" % (R(vK), R(TMP1), S(sT0)), wr=[vK], rd=[TMP1])]
    qk_part([ktadd, salu("s_mov_b32 %s, 2" % S(sRET))])
    o2 += pfo
    def opre(n): return [vadd_lit(vT, slot_addr(n) - slot_addr(n - 1))]
    NSET = 2 if OLOOP else 4
    HO = [half_O(i & 1, (i >> 1) % NSET, opre(46 + i)) for i in range(14)]
    HV15 = half_V(opre(45))
    pv_part(False, HV15, [])
    A(salu("s_cbranch_vccnz L_rare")); A(label("L_ret2"))
    def oconv(u):
        ops = []
        for qt in range(2):
            for e in range(2):
                a = ACC(qt, 2 * u + e)
                for h in range(2): ops.append(v_cvtpk(QF(qt, u) + 2 * e + h, a + 2 * h, a + 2 * h + 1))
        return ops
    o2 += pcvt(0, 0) + pcvt(0, 1) + pcvt(1, 0) + pcvt(1, 1)
    r0 = rowreduce(L(0), TMP0, v_add); r1 = rowreduce(L(1), TMP1, v_add)
    lops = ladd() + [x for ab in zip(r0, r1) for x in ab]
    fill, nx = pack(lops, 0)
    for u in range(8): fill, nx = pack(oconv(u), max(nx, 4 * u + 7 if u < OCV else 32), fill)
    lop2 = [trans("v_rcp_f32 %s, %s" % (R(L(qt)), R(L(qt))), wr=[L(qt)], rd=[L(qt)]) for qt in range(2)]
    lop2 += lane_id(TMP0) + [wait(vm=0), vop("v_lshlrev_b32", vST, "4", TMP0),
             salu("s_add_u32 %s, %s, %s" % (S(sT0), S(sXB), S(sPB))), vadd_s(vST, sT0),
             salu("s_lshl_b32 %s, %s, 7" % (S(sT0), S(sWID))), salu("s_lshl_b32 %s, %s, 10" % (S(sT1), S(sH))), salu("s_add_u32 %s, %s, %s" % (S(sT0), S(sT0), S(sT1))),
             vop("v_and_b32", TMP1, "32", TMP0), vop("v_lshlrev_b32", TMP1, "12", TMP1), vop("v_lshl_add_u32", vFO, TMP0, "2", TMP1), vadd_s(vFO, sT0)]
    fill, nx = pack(lop2, nx, fill)
    fill, carry = split(fill, 32)
    st.run(HV15, HO[0], fill)
    def epi(j):
        ops = []; aset = j % NSET
        for qt in range(2):
            for hf in range(2):
                dst = SR(qt, hf)
                for e in range(2):
                    a = OACC(aset, qt, 2 * hf + e)
                    for r in range(4): ops.append(v_mul(a + r, a + r, L(qt)))
                    for h in range(2): ops.append(v_cvtpk(dst + 2 * e + h, a + 2 * h, a + 2 * h + 1))
                if qt == 0 and hf == 0: ops.append(salu("s_add_u32 %s, %s, %d" % (S(sOFF), S(sOFF), STG)) if OLOOP else salu("s_mov_b32 %s, %d" % (S(sOFF), j * STG)))
                ops.append(vmem("buffer_store_dwordx4 %s, %s, %s, %s offen offset:%d%s" % (R(dst, 4), R(vST), S(sP, 4), S(sOFF), 2048 * qt + 1024 * hf, STFLAG),
                                rd=list(rr(dst, 4)) + [vST], store=True))
        return ops
    def publish(j, vm):
        if "--noflag" in sys.argv: return [wait(vm=vm)]
        if "--nopub" in sys.argv: return []
        return [salu("s_add_u32 %s, %s, %d" % (S(sT1), S(sTAG), j + 1)), vop("v_mov_b32", vFV, S(sT1)), wait(vm=vm if "--nowait" not in sys.argv else 63),
                vmem("buffer_store_dword %s, %s, %s, 0 offen sc1" % (R(vFV), R(vFO), S(sF, 4)), rd=[vFV, vFO], store=True)]
    a1, a2, vld, vout, vpa, vpd, lane = 208, 212, 216, 217, 218, 219, 220
    tailc = lane_id(lane) + red_consts(lane, a1, a2, vld, vout, 221, 222)
    tailc += [salu("s_mul_i32 %s, %s, 7" % (S(sT2), S(sH))), salu("s_add_u32 %s, %s, %s" % (S(sT2), S(sT2), S(sWID))),
              salu("s_lshr_b32 %s, %s, 4" % (S(sT0), S(sT2))), salu("s_lshl_b32 %s, %s, 7" % (S(sT0), S(sT0))),
              vop("v_and_b32", vpa, "15", lane), vop("v_lshlrev_b32", vpa, "10", vpa), vadd_s(vpa, sT0)]
    tailc += out_base(sT3, sT2, sT0) + [salu("s_lshl_b32 %s, %s, 8" % (S(sT2), S(sT2)))]
    tc = {}
    npre = 9
    pa = lane_id(lane) + tailc[-16:-9]
    if len(CBATCH) > 1: tc, _ = pack(pa, 0, None, 1)
    olb = None
    if not OLOOP:
        for i in range(14):
            j = i >> 1
            if not (i & 1) and (23 + j <= LASTBAR or ENDBAR): A(barrier())
            fill = {}; post = {}
            if i == 0: fill = carry
            elif j >= 1 and not (i & 1): fill, _ = pack(epi(j - 1), 1)
            if i & 1:
                post, tc = split(tc, 32)
                if j >= 2:
                    extra_ = 1 if (j - 3) in PUBS else 0
                    if j - 2 in PUBS: post.setdefault(PUBSLOT, []).extend(publish(j - 2, 4 + extra_))
                    elif THROT: post.setdefault(PUBSLOT, []).append(wait(vm=4 + extra_))
            st.run(HO[i], HO[i + 1] if i < 13 else None, fill, None, post)
    else:
        assert ENDBAR and set(PUBS) <= {1, 3}
        A(barrier())
        st.run(HO[0], HO[1], carry)
        post, tc = split(tc, 32)
        init = [salu("s_mov_b32 %s, %d" % (S(sVpos), slot_addr(48))), salu("s_mov_b32 %s, %d" % (S(sPOS), SLOT)), salu("s_mov_b32 %s, %d" % (S(sNEG), -8 * SLOT)),
                salu("s_mov_b32 %s, %d" % (S(sOFF), -STG)), salu("s_mov_b32 %s, 3" % S(sCNT)), salu("s_sub_u32 %s, %s, 2" % (S(sT1), S(sTAG))), vop("v_mov_b32", vFV, S(sT1))]
        for i, x in enumerate(init): post.setdefault(14 + 2 * i, []).append(x)
        st.run(HO[1], HO[2], None, None, post)
        o2a = st.o; st.o = []; olb = st.o
        q1 = (list(st.q), [k for _, k in st.pend])
        dyn = lambda: [vadd_s(vT, sDV)]
        LH = [half_O(0, 1, []), half_O(1, 1, dyn()), half_O(0, 0, dyn()), half_O(1, 0, dyn()), half_O(0, 1, dyn())]
        st.rekey(HO[2], LH[0])
        for i in range(4):
            if not (i & 1): olb.append(barrier())
            post = {0: [salu("s_cmp_eq_u32 %s, %d" % (S(sVpos), 8 * SLOT))], 2: [salu("s_cselect_b32 %s, %s, %s" % (S(sDV), S(sNEG), S(sPOS)))],
                    4: [salu("s_add_u32 %s, %s, %s" % (S(sVpos), S(sVpos), S(sDV)))]}
            fill = {}
            if not (i & 1):
                e = epi(i >> 1)
                sa = [x for x in e if x.kind == "salu"]; e = [x for x in e if x.kind != "salu"]
                post[5] = sa
                fill, _ = pack(e, 1)
            if i == 1 and PUBS:
                post.setdefault(PUBSLOT, []).extend([vop("v_add_u32", vFV, "2", vFV), wait(vm=4),
                    vmem("buffer_store_dword %s, %s, %s, 0 offen sc1" % (R(vFV), R(vFO), S(sF, 4)), rd=[vFV, vFO], store=True)])
            if i == 3:
                post[10] = [salu("s_sub_u32 %s, %s, 1" % (S(sCNT), S(sCNT)))]; post[12] = [salu("s_cmp_lg_u32 %s, 0" % S(sCNT))]
            st.run(LH[i], LH[i + 1], fill, None, post)
        olb.append(salu("s_cbranch_scc1 L_oloop"))
        st.rekey(LH[4], HO[2])
        assert (st.q, [k for _, k in st.pend]) == q1
        st.o = []; o2 = st.o; A = o2.append
    assert not tc
    tsn = [0]
    def tstamp():
        if not PROF: return []
        r = 6 + 2 * tsn[0]; tsn[0] += 1
        return [salu("s_memrealtime s[%d:%d]" % (r, r + 1))]
    o2 += tstamp()
    if len(CBATCH) > 1 and not NORED: A(pollload(vpa, vpd))
    o2 += epi(6)
    cst = [j for bt in CBATCH for j in bt]
    def bufreg(j, i):
        n = 4 * cst.index(j) + i
        if OLOOP: return 4 * n
        return 4 * n if n < 16 else 96 + 4 * (n - 16)
    def loads(j):
        ops = []
        for i in range(4):
            ops.append(salu("s_add_u32 %s, %s, %d" % (S(sOFF), S(sT2), j * STG + 4 * i * PART)))
            ops.append(vmem("buffer_load_dwordx4 %s, %s, %s, %s offen sc1" % (R(bufreg(j, i), 4), R(vld), S(sP, 4), S(sOFF)), wr=rr(bufreg(j, i), 4), rd=[vld]))
        return ops
    if not NORED:
        assert 5 not in PUBS
        o2 += tstamp() + tailc + publish(6, 0) + tstamp()
        for bi, bt in enumerate(CBATCH):
            o2 += poll(vpa, vpd, bt[-1] + 1, pre=(bi == 0 and len(CBATCH) > 1)) + tstamp()
            if bi == 0:
                A(vop("v_mov_b32", 221, S(sTAG))); A(salu("s_lshl_b32 %s, %s, 6" % (S(sT0), S(sT2))))
                A(vmem("buffer_store_dword v221, off, %s, %s offset:896" % (S(sF, 4), S(sT0)), rd=[221], store=True))
            for j in bt: o2 += loads(j)
            if bi == 0: o2 += tstamp()
        left = 4 * len(CBATCH[-1]); nst = 0
        for p in range(4):
            js = [j for j in (2 * p, 2 * p + 1) if j in cst]
            if not js: continue
            assert js[0] == 2 * p and (len(js) == 2 or p == 3)
            acc = 144 + 8 * p
            n = 0
            for k, j in enumerate(js):
                for i in range(4):
                    if j in CBATCH[-1]:
                        left -= 1; A(wait(vm=left + nst))
                    A(mfma16(acc, a2 if k else a1, bufreg(j, i), acc if n else None)); n += 1
            A(v_cvtpk(acc + 4, acc, acc + 1)); A(v_cvtpk(acc + 5, acc + 2, acc + 3))
            if p == 3: A(salu("s_mov_b32 exec_hi, 0"))
            A(vmem("buffer_store_dwordx2 %s, %s, %s, %s offen offset:%d" % (R(acc + 4, 2), R(vout), S(sOUT, 4), S(sT3), 256 * p), rd=[acc + 4, acc + 5, vout], store=True)); nst += 1
    if PROF:
        o2 += tstamp(); A(wait(vm=0)); o2 += tstamp(); A(wait(lgkm=0))
        A(salu("s_mov_b64 exec, -1")); A(v_mov(0, "0"))
        for i in range(tsn[0]): A(valu("v_writelane_b32 v0, s%d, %d" % (6 + 2 * i, i), wr=[0]))
        A(vop("v_lshlrev_b32", 1, "2", 220)); A(salu("s_lshl_b32 s80, s2, 3")); A(salu("s_add_u32 s80, s80, %s" % S(sWID))); A(salu("s_lshl_b32 s80, s80, 5"))
        A(salu("s_add_u32 s80, s80, 65536")); A(salu("s_mov_b32 s78, 0x30000")); A(salu("s_mov_b64 exec, 0xff"))
        A(vmem("buffer_store_dword v0, v1, s[76:79], s80 offen", rd=[0, 1], store=True))
        A(wait(vm=0)); A(barrier())
    A(salu("s_endpgm"))
    rp = [label("L_rare"), nop(15)]
    rp += lane_id(TMP0) + [vop("v_lshrrev_b32", TMP1, "4", TMP0), vop("v_lshlrev_b32", TMP1, "1", TMP1), v_mov(T(0), "0x9c"),
           vop("v_lshrrev_b32", TMP1, TMP1, T(0)), vop("v_and_b32", TMP1, "3", TMP1), vop("v_lshlrev_b32", TMP1, "4", TMP1),
           vop("v_and_b32", TMP0, "15", TMP0), vop("v_lshl_add_u32", TMP0, TMP0, "9", TMP1),
           salu("s_add_u32 %s, %s, 8192" % (S(sT0), S(sKT)))]
    for u in range(8):
        for z in range(2):
            rp.append(vmem("buffer_load_dwordx4 %s, %s, %s, %s offen offset:%d" % (R(PR(z), 4), R(TMP0), S(sKd, 4), S(sT0 if z else sKT), 64 * u), wr=rr(PR(z), 4), rd=[TMP0]))
        rp.append(wait(vm=0))
        for z in range(2):
            for qt in range(2): rp.append(mfma16(SR(qt, z), PR(z), QF(qt, u), NM(qt) if u == 0 else SR(qt, z)))
        rp.append(nop(7))
    rp.append(nop(15))
    for qt in range(2):
        s0 = SR(qt, 0); d = T(qt)
        rp += [v_max3(d, s0, s0 + 1, s0 + 2), v_max3(d, d, s0 + 3, s0 + 4), v_max3(d, d, s0 + 5, s0 + 6), v_max(d, d, s0 + 7)]
        rp += rowreduce(d, TMP0, v_max)
        rp.append(vop("v_max_f32", d, "0", d))
        for j in range(8): rp.append(v_sub(s0 + j, s0 + j, d))
        for j in range(4): rp.append(v_sub(NM(qt) + j, NM(qt) + j, d))
        rp.append(trans("v_exp_f32 %s, -%s" % (R(TMP1), R(d)), wr=[TMP1], rd=[d]))
        rp.append(v_mul(L(qt), L(qt), TMP1))
        for t in range(16):
            for r in range(4): rp.append(v_mul(ACC(qt, t) + r, ACC(qt, t) + r, TMP1))
    rp += sm_ops()
    rp += [nop(7), salu("s_cmp_eq_u32 %s, 0" % S(sRET)), salu("s_cbranch_scc1 L_loop"),
           salu("s_cmp_eq_u32 %s, 1" % S(sRET)), salu("s_cbranch_scc1 L_ret1"), salu("s_branch L_ret2")]
    pre_loop = pad_hazards(pre_loop)
    fb = pad_hazards(fb, prefix=pre_loop)
    lb = pad_hazards(lb, prefix=fb)
    lb = pad_hazards(lb, prefix=lb)
    assert not check_hazards(pre_loop + fb + lb + lb)
    if OLOOP:
        o2a = pad_hazards(o2a, prefix=lb)
        olb = pad_hazards(olb, prefix=o2a); olb = pad_hazards(olb, prefix=olb)
        assert not check_hazards(o2a + olb + olb)
        o2 = o2a + [directive(".p2align 6"), label("L_oloop")] + olb + pad_hazards(o2, prefix=olb)
    else: o2 = pad_hazards(o2, prefix=lb)
    rp = pad_hazards(rp)
    return pre_loop + fb + [directive(".p2align 6"), label("L_loop")] + lb + [label("L_post")] + o2 + [label("L_postend")] + rp

def loader_wave(late):
    o = []; A = o.append
    lane, vKV, vW, vO, vSTAMP, vG, vD = 240, 241, 242, 243, 244, 245, 246
    A(label("L_loader"))
    A(salu("s_setprio 3"))
    A(vop("v_mov_b32", lane, 1))
    issued = [1, 1, 1, 1]
    nstamp = [0]
    def stamp():
        if not PROF: return
        A(salu("s_memtime s[80:81]")); A(wait(lgkm=0))
        A(valu("v_writelane_b32 %s, s80, %d" % (R(vSTAMP), nstamp[0]), wr=[vSTAMP])); nstamp[0] += 1
    def room(n):
        nonlocal issued
        if len(issued) > 63 - n:
            A(wait(vm=63 - n)); issued = issued[-(63 - n):]
    cont = [None]
    def off_of(typ, idx, i):
        if typ == "W": return (idx * 32 + 8 * (i >> 2) + (i & 3)) * 8192
        if typ in "KV": return idx * 16384 + 512 * i
        return ((idx & 1) * 128 + i) * 896 + (idx >> 1) * 128
    def issue1(n, i, ahead):
        if len(issued) >= 63: room(min(8, ahead))
        typ, idx = halves[n]
        srd_, vo = {"W": (sW, vW), "K": (sKd, vKV), "V": (sVd, vKV), "O": (sO, vO)}[typ]
        if cont[0] == (n, i):
            A(salu("s_addk_i32 m0, %d" % ISTR))
            step = off_of(typ, idx, i) - off_of(typ, idx, i - 1)
            if step < 32768: A(salu("s_addk_i32 %s, %d" % (S(sOFF), step)))
            else: A(salu("s_add_u32 %s, %s, %d" % (S(sOFF), S(sOFF), step)))
        else:
            A(salu("s_mov_b32 m0, %d" % (slot_addr(n) + ISTR * i)))
            A(salu("s_mov_b32 %s, %d" % (S(sOFF), off_of(typ, idx, i))))
        cont[0] = (n, i + 1)
        A(vmem("buffer_load_dwordx4 %s, %s, %s offen%s lds" % (R(vo), S(srd_, 4), S(sOFF), KVFLAG if typ in "KV" else ""), rd=[vo]))
        issued.append(n)
    def landed(n):
        nonlocal issued
        idx = [i for i, k in enumerate(issued) if k <= n]
        if idx:
            cnt = len(issued) - 1 - max(idx)
            A(wait(vm=cnt)); issued = issued[max(idx) + 1:]
    def extra(ins):
        room(1); A(ins); issued.append(1000)
    def codepf(lo, neg, n):
        A(salu("s_getpc_b64 s[82:83]" if not PROF else "s_getpc_b64 s[4:5]"))
        p = 82 if not PROF else 4
        lbl = "L_pc%d" % len(o); A(label(lbl))
        A(salu("s_sub_u32 s%d, s%d, %s-L_compute" % (p, p, lbl))); A(salu("s_subb_u32 s%d, s%d, 0" % (p + 1, p + 1)))
        A(salu("s_add_u32 s%d, s%d, %s-L_compute" % (p, p, lo))); A(salu("s_addc_u32 s%d, s%d, 0" % (p + 1, p + 1)))
        for i in range(n):
            extra(vmem("global_load_dword %s, %s, s[%d:%d]" % (R(vD), R(vG), p, p + 1), wr=[vD], rd=[vG]))
            if i + 1 < n:
                A(salu("s_add_u32 s%d, s%d, 8192" % (p, p))); A(salu("s_addc_u32 s%d, s%d, 0" % (p + 1, p + 1)))
    if PROF: A(v_mov(vSTAMP, "0"))
    stamp()
    bars = [(0, 1), (0, 2)] if FAST0 else [(0, 2)]
    bars += [(k, 13 if k == 5 else (59 if k == LASTBAR else min(2 * k + 2, 59))) for k in range(1, LASTBAR + 1)]
    pos = 32
    pfq = [(n, p) for n in L2PF for p in range(2)]
    vXG = 247
    log = []
    for bi, (k, needn) in enumerate(bars):
        consumed = 2 * max(k - 1, 0)
        def free(n):
            if n < 6: return True
            if n < 8: return bi >= 1
            if n < 24: return n - 8 < consumed
            if n == 24: return k >= 7
            return n - 9 < consumed
        nextneed = bars[bi + 1][1] if bi + 1 < len(bars) else 59
        if bi + 1 < len(bars) and bars[bi + 1][0] == LASTBAR: nextneed = min(59, 2 * LASTBAR + 2)
        bud = BUDO.get(k, BUD)
        npf = min(len(pfq), PFW.get(k, 0)) if bi >= 1 else 0
        bud -= 8 * npf
        wcap = 16 * (W0CAP if bi == 0 else (2 if (FAST0 and bi in (1, 2)) else RAMP))
        todo = []
        p = pos
        while p < 960:
            n = p // 16
            if not free(n): break
            if E24 and n == 24:
                p += 1; continue
            must = n <= needn or (n <= (nextneed if k < 9 else min(nextneed, needn + MUSTA)) and bi > 0)
            kv = halves[n][0] in "KV" and n not in L2PF
            if not must:
                if len(todo) >= wcap: break
                if kv and bud <= 0: break
            if kv: bud -= 1
            todo.append(p); p += 1
        if E24 and k == E24: todo += [24 * 16 + i for i in range(16)]
        for t, q in enumerate(todo): issue1(q // 16, q % 16, len(todo) - t)
        log.append("%d:%d/%d" % (k, sum(1 for q in todo if halves[q // 16][0] in "KV" and q // 16 not in L2PF) + 8 * npf, p // 16))
        pos = p
        assert pos >= 16 * (needn + 1), (k, pos, needn)
        if bi == 0:
            A(vop("v_and_b32", 5, "7", lane)); A(vop("v_lshlrev_b32", 5, "4", 5)); A(vop("v_lshrrev_b32", 6, "3", lane))
            A(vop("v_mul_u32_u24", 6, "14336", 6)); A(vop("v_add_u32", vO, 5, 6))
            A(vop("v_lshlrev_b32", vG, "7", lane))
            A(vop("v_mul_u32_u24", vXG, "896", lane))
            A(salu("s_lshr_b32 %s, s2, 6" % S(sT2))); A(salu("s_mul_i32 %s, %s, %d" % (S(sT2), S(sT2), 56 * 896)))
            o += late
            if CODEPF and not CPF2: codepf("L_compute", True, 2)
            if CODEPF and CPF2:
                A(salu("s_getpc_b64 s[4:5]")); A(label("L_pcl"))
                A(salu("s_sub_u32 s4, s4, L_pcl-L_compute")); A(salu("s_subb_u32 s5, s5, 0"))
                A(salu("s_mov_b32 s6, L_exit1-L_compute")); A(salu("s_mov_b32 s7, 0x20000"))
                A(salu("s_lshr_b32 s8, s2, 3")); A(salu("s_lshl_b32 s8, s8, 7"))
                A(vop("v_lshlrev_b32", 248, "12", lane))
                extra(vmem("buffer_load_dword %s, v248, s[4:7], s8 offen" % R(vD), wr=[vD], rd=[248]))
            if LPAIRS:
                A(salu("s_buffer_load_dword %s, %s, 0x380" % (S(sTAG), S(sF, 4)))); A(wait(lgkm=0)); o += mktag()
        if CODEPF and CPF2 and k == 20:
            extra(vmem("buffer_load_dword %s, v248, s[4:7], s8 offen" % R(vD), wr=[vD], rd=[248]))
        if XPF:
            for r in XPFW.get(bi, []):
                extra(vmem("buffer_load_dword %s, %s, %s, %s offen offset:%d" % (R(vD), R(vXG), S(sX, 4), S(sT2), 128 * r), wr=[vD], rd=[vXG]))
        for _ in range(npf):
            n, part = pfq.pop(0); typ, idx = halves[n]
            A(salu("s_mov_b32 %s, %d" % (S(sT0), idx * 16384 + 8192 * part)))
            extra(vmem("buffer_load_dword %s, %s, %s, %s offen" % (R(vD), R(vG), S(sKd if typ == "K" else sVd, 4), S(sT0)), wr=[vD], rd=[vG]))
        landed(needn)
        A(barrier())
        stamp()
    assert pos == 960 and not pfq
    print("loader windows k:kvunits/nexthalf", " ".join(log))
    return o, stamp, nstamp

def loader_full(late):
    o, stamp, nstamp = loader_wave(late)
    A = o.append
    lane, vSTAMP = 240, 244
    assert not (ENDBAR and LPAIRS)
    if ENDBAR and PROF:
        for _ in range(29 - LASTBAR): A(barrier()); stamp()
    a1, a2, vld, vout, vpa, vpd = 224, 228, 241, 242, 243, 245
    accs = [232, 236]; pk = [246, 248]
    o += red_consts(lane, a1, a2, vld, vout, 250, 251)
    A(salu("s_mul_i32 %s, %s, 7" % (S(sT2), S(sH))))
    A(salu("s_lshr_b32 %s, %s, 4" % (S(sT0), S(sT2)))); A(salu("s_add_u32 %s, %s, 6" % (S(sT1), S(sT2)))); A(salu("s_lshr_b32 %s, %s, 4" % (S(sT1), S(sT1))))
    A(salu("s_sub_u32 %s, %s, %s" % (S(sT1), S(sT1), S(sT0)))); A(salu("s_lshl_b32 %s, %s, 3" % (S(sT1), S(sT1)))); A(salu("s_lshl_b32 %s, %s, 7" % (S(sT0), S(sT0))))
    A(vop("v_and_b32", 250, "16", lane)); A(vop("v_mul_lo_u32", 250, 250, S(sT1)))
    A(vop("v_and_b32", vpa, "15", lane)); A(vop("v_lshl_add_u32", vpa, vpa, "10", 250)); A(vadd_s(vpa, sT0))
    ob = [4 + 2, 7, 8, 9, 10, 11, 12]
    for c in range(7):
        A(salu("s_add_u32 %s, %s, %d" % (S(sT3), S(sT2), c))); o += out_base(ob[c], sT3, sT0)
    A(salu("s_lshl_b32 %s, %s, 8" % (S(sT2), S(sT2))))
    for grp in ([] if NORED else LPAIRS):
        o += poll(vpa, vpd, grp[-1] + 1)
        stamp()
        offs = [13, 14, 15, 16, 17, 18, 19, 20]
        for k, j in enumerate(grp):
            for i in range(4): A(salu("s_add_u32 %s, %s, %d" % (S(offs[4 * k + i]), S(sT2), j * STG + 4 * i * PART)))
        per = 4 * len(grp)
        for c in range(7):
            for t in range(per):
                b = (c * per + t) * 4
                A(vmem("buffer_load_dwordx4 %s, %s, %s, %s offen offset:%d sc1" % (R(b, 4), R(vld), S(sP, 4), S(offs[t]), 256 * c), wr=rr(b, 4), rd=[vld]))
        for c in range(7):
            acc = accs[c & 1]; p = pk[c & 1]
            A(wait(vm=(6 - c) * per + c))
            for t in range(per): A(mfma16(acc, a2 if t >= 4 else a1, (c * per + t) * 4, acc if t else None))
            A(v_cvtpk(p, acc, acc + 1)); A(v_cvtpk(p + 1, acc + 2, acc + 3))
            A(salu("s_add_u32 %s, %s, %d" % (S(sOFF), S(ob[c]), 128 * grp[0])))
            if len(grp) == 1: A(salu("s_mov_b32 exec_hi, 0"))
            A(vmem("buffer_store_dwordx2 %s, %s, %s, %s offen" % (R(p, 2), R(vout), S(sOUT, 4), S(sOFF)), rd=[p, p + 1, vout], store=True))
            if len(grp) == 1: A(salu("s_mov_b64 exec, -1")); A(nop(4))
        stamp()
    if PROF:
        A(barrier()); stamp()
        A(salu("s_memrealtime s[80:81]")); A(wait(lgkm=0))
        A(salu("s_sub_u32 s80, s80, s82"))
        A(valu("v_writelane_b32 %s, s80, 62" % R(vSTAMP), wr=[vSTAMP]))
        A(valu("v_writelane_b32 %s, s84, 63" % R(vSTAMP), wr=[vSTAMP]))
        A(valu("v_writelane_b32 %s, s82, 60" % R(vSTAMP), wr=[vSTAMP]))
        A(vop("v_lshlrev_b32", 4, "2", lane))
        A(salu("s_lshl_b32 s80, s2, 8"))
        A(vmem("buffer_store_dword %s, v4, s[76:79], s80 offen" % R(vSTAMP), rd=[vSTAMP, 4], store=True))
        A(wait(vm=0))
    A(salu("s_endpgm"))
    return pad_hazards(o)

def srd(d, lo, hi, off_s, size):
    o = [salu("s_add_u32 %s, %s, %s" % (S(d), S(lo), S(off_s))), salu("s_addc_u32 %s, %s, 0" % (S(d + 1), S(hi)))]
    if size is None: return o
    o.append(salu("s_mov_b32 %s, %s" % (S(d + 2), size if isinstance(size, str) else "0x%x" % size)))
    o.append(salu("s_mov_b32 %s, 0x20000" % S(d + 3)))
    return o

def k1():
    o = []; A = o.append
    A(salu("s_load_dwordx16 s[4:19], s[0:1], 0"))
    A(salu("s_load_dwordx8 s[60:67], s[0:1], 64"))
    A(salu("s_load_dwordx2 s[24:25], s[0:1], 96"))
    A(salu("s_cmp_ge_u32 s2, 256")); A(salu("s_cbranch_scc1 L_exit1"))
    if PROF:
        A(salu("s_memrealtime s[82:83]")); A(salu("s_memtime s[84:85]"))
    A(vop("v_lshrrev_b32", 2, "6", 0)); A(vop("v_and_b32", 1, "63", 0))
    A(salu("s_and_b32 s26, s2, 3")); A(salu("s_lshl_b32 s26, s26, 2")); A(salu("s_lshr_b32 s27, s2, 6")); A(salu("s_add_u32 s26, s26, s27"))
    A(valu("v_readfirstlane_b32 %s, v2" % S(sWID), rd=[2], swr=[sWID]))
    A(salu("s_lshr_b32 s27, s2, 3")); A(salu("s_and_b32 s27, s27, 7"))
    A(salu("s_lshr_b32 s28, s2, 2")); A(salu("s_and_b32 s28, s28, 1"))
    A(salu("s_mul_i32 s30, s27, 200704"))
    A(salu("s_lshl_b32 s32, s26, 9"))
    A(salu("s_sub_u32 %s, %d, s32" % (S(sW + 2), 448 * 8192))); A(salu("s_mov_b32 %s, 0x20000" % S(sW + 3)))
    A(salu("s_mov_b32 %s, 200704" % S(sX + 2))); A(salu("s_mov_b32 %s, 0x20000" % S(sX + 3)))
    A(vop("v_and_b32", 3, "31", 1)); A(vop("v_lshlrev_b32", 3, "4", 3)); A(vop("v_lshrrev_b32", 4, "5", 1))
    A(vop("v_lshl_add_u32", 242, 4, "15", 3)); A(vop("v_lshl_add_u32", 241, 4, "13", 3))
    A(vop("v_lshrrev_b32", 5, "2", 1)); A(vop("v_and_b32", 6, "3", 1))
    A(salu("s_lshl_b32 %s, %s, 5" % (S(sT0), S(sWID))))
    A(vop("v_add_u32", 4, S(sT0), 5)); A(vop("v_mul_u32_u24", 4, "896", 4))
    A(vop("v_lshrrev_b32", 7, "4", 1)); A(vop("v_sub_u32", 7, "0", 7)); A(vop("v_xor_b32", 7, 7, 6)); A(vop("v_and_b32", 7, "3", 7))
    A(vop("v_lshl_add_u32", vXO, 7, "4", 4))
    A(salu("s_movk_i32 %s, 14336" % S(sT1)))
    A(salu("s_lshl_b32 %s, %s, 12" % (S(sXB), S(sWID))))
    A(salu("s_lshl_b32 %s, %s, 16" % (S(sOFF), S(sWID))))
    A(salu("s_mul_i32 m0, %s, %d" % (S(sWID), 4 * ISTR)))
    A(salu("s_lshl_b32 s29, s27, 4")); A(salu("s_add_u32 s29, s29, s26"))
    A(salu("s_lshl_b32 s31, s29, 18"))
    A(salu("s_mul_i32 s33, s26, 229376"))
    A(salu("s_lshl_b32 s34, s28, 3")); A(salu("s_add_u32 s34, s34, s27"))
    A(salu("s_lshl_b32 s20, s34, 14")); A(salu("s_add_u32 s20, s20, 0x%x" % FLAG_OFF))
    A(salu("s_mul_i32 s34, s34, %d" % (16 * PART)))
    A(salu("s_mul_i32 %s, s26, %d" % (S(sPB), PART)))
    A(salu("s_mul_i32 s21, s27, %d" % (224 * 1792))); A(salu("s_mul_i32 s22, s28, 896")); A(salu("s_add_u32 s21, s21, s22"))
    A(salu("s_sub_u32 s22, %d, s21" % (8 * 224 * 1792)))
    A(salu("s_cmp_eq_u32 s28, 0"))
    A(wait(lgkm=0))
    for d, b in ((10, 60), (4, 14), (6, 16), (8, 18), (12, 62)): A(salu("s_cselect_b64 %s, %s, %s" % (S(d, 2), S(d, 2), S(b, 2))))
    o += srd(sW, 10, 11, 32, None)
    o += srd(sX, 4, 5, 30, None)
    for i in range(4):
        if i: A(salu("s_addk_i32 m0, %d" % ISTR)); A(salu("s_addk_i32 %s, 8192" % S(sOFF)))
        A(vmem("buffer_load_dwordx4 v242, %s, %s offen lds" % (S(sW, 4), S(sOFF)), rd=[242]))
    late = srd(sKd, 6, 7, 31, 262144) + srd(sVd, 8, 9, 31, 262144) + srd(sO, 12, 13, 33, 229376)
    late += srd(sP, 24, 25, 34, 16 * PART) + srd(sF, 24, 25, 20, 16384) + srd(sOUT, 64, 65, 21, "s22")
    if PROF: late += [salu("s_mov_b32 s80, 0x%x" % PROF_OFF)] + srd(76, 24, 25, 80, 65536)
    A(salu("s_cmp_eq_u32 %s, 7" % S(sWID))); A(salu("s_cbranch_scc1 L_loader"))
    o = pad_hazards(o)
    o += compute_wave(late) + loader_full(late)
    o += [label("L_exit1"), salu("s_endpgm")]
    return o

def kd(name, vg, sg):
    return """.amdhsa_kernel %s
  .amdhsa_next_free_vgpr %d
  .amdhsa_next_free_sgpr %d
  .amdhsa_accum_offset %d
  .amdhsa_group_segment_fixed_size 0
  .amdhsa_kernarg_size 104
  .amdhsa_user_sgpr_count 2
  .amdhsa_user_sgpr_kernarg_segment_ptr 1
  .amdhsa_system_sgpr_workgroup_id_x 1
.end_amdhsa_kernel""" % (name, vg, sg, (vg + 3) // 4 * 4)

K1 = NAME + "_kernel"
src = []
src.append("; @launch grid=(256,1,1) block=(512,1,1) lds=%d" % LDS_BYTES)
src.append('.amdgcn_target "amdgcn-amd-amdhsa--gfx950"\n.text')
src.append(".globl %s\n.p2align 8\n.type %s,@function\n%s:" % (K1, K1, K1))
src.append(text(k1()))
src.append('.section .rodata,"a"\n.p2align 6')
src.append(kd(K1, 256, 100))
open(OUT, "w").write("\n".join(src) + "\n")
print("wrote", OUT)
```

```python
import sys, math, struct
from asmlib import *

NAME = "concat_heads__mha_block_cached__gqa_block_cached__near_ridge"
def opt(name, default):
    for a in sys.argv:
        if a.startswith("--%s=" % name): return a.split("=", 1)[1]
    return default
DBG = "--dbg" in sys.argv
PROF = "--prof" in sys.argv or DBG
KVFLAG = opt("kv", "_nt").replace("_", " ")
RAMP = int(opt("ramp", "3"))
XSLOT = int(opt("xslot", "2")); XSLOT0 = int(opt("xslot0", "8"))
STGAP = int(opt("stgap", "1"))
PUB = opt("pub", "late")
PUBSLOT = int(opt("pubslot", "8"))
LPAIRS = [tuple(int(c) for c in p) for p in opt("lpairs", "").split(",") if p]
CBATCH = [tuple(int(c) for c in p) for p in opt("cbatch", "0123,456").split(",")]
PUBS = sorted(set([p[-1] for p in LPAIRS] + [p[-1] for p in CBATCH]) - {6})
THROT = int(opt("throt", "0"))
ENDBAR = int(opt("endbar", "1"))
WOPF = int(opt("wopf", "15"))
CODEPF = int(opt("codepf", "1"))
FAST0 = int(opt("fast0", "1"))
KLATE = int(opt("klate", "1"))
SLEEP = int(opt("sleep", "4"))
NORED = "--nored" in sys.argv
PUB1 = int(opt("pub1", "3"))
WARMX = int(opt("warmx", "0")); WARMW = int(opt("warmw", "0"))
STOCK = [int(x) for x in opt("stock", "").split(",") if x]
STOCKW = [int(x) for x in opt("stockw", "2,3,4").split(",") if x]
def dct(name, default): return {int(x.split(":")[0]): int(x.split(":")[1]) for x in opt(name, default).split(",") if x}
BUD = int(opt("bud", "28")); BUDO = dct("budo", "5:28,6:28,7:30,8:42")
L2PF = [int(x) for x in opt("l2pf", "").split(",") if x]
PFW = dct("pfw", "1:2,2:2,3:2,4:2")
XPF = int(opt("xpf", "0"))
OLOOP = int(opt("oloop", "1"))
CPF2 = int(opt("cpf2", "1"))
ST0 = "--st0" in sys.argv
def st0(i): return [salu("s_memrealtime s[%d:%d]" % (100 - 100 + 6 + 2 * i, 7 + 2 * i))] if ST0 else []
W0CAP = int(opt("w0cap", "1"))
X128 = int(opt("x128", "1"))
vBP1 = 255
MUSTE = int(opt("muste", "0")); MUSTK = int(opt("mustk", "3"))
XBI = int(opt("xbi", "1"))
BBS = int(opt("bbs", "20"))
LPRIO = int(opt("lprio", "3")); LPRIO0 = int(opt("lprio0", "0"))
WCAPS = [int(x) for x in opt("wcaps", "16,16,16,16,36,40").split(",")]
OCV = int(opt("ocv", "4"))
MUSTA = int(opt("musta", "1"))
E24 = int(opt("e24", "8"))
XPFW = {0: [2], 1: [3], 2: [4], 3: [5], 4: [6]}
TAILV = int(opt("tailv", "2"))
STFLAG = opt("st", "_sc1").replace("_", " ")
OUT = [a for a in sys.argv[1:] if not a.startswith("--")]
OUT = OUT[0] if OUT else "cdna_kernels/%s.s" % NAME

SLOT = 16896; NSLOT = 9; ISTR = 1056
LDS_BYTES = 163840
PART = 200704; STG = 28672
FLAG_OFF = 56 << 20
PROF_OFF = 64 << 20
CSCALE = math.log2(math.e) / 16.0
THR = 65536.0
SPIN = 400000
def f2u(x): return struct.unpack("<I", struct.pack("<f", x))[0]

def ACC(qt, t): return 8 * t + 4 * qt
def OACC(s, qt, tau): return 32 * s + 8 * tau + 4 * qt
def QF(qt, u): return 128 + 32 * qt + 4 * u
def SR(qt, z): return 192 + 8 * qt + 4 * z
def SR0(qt, z): return 8 * qt + 4 * z
def PR(qt): return 208 + 4 * qt
def NM(qt): return 216 + 4 * qt
FB0 = 224
BUFSEQ = [0,1,2,3,4,5, 0,1,2,3,4, 0,1,2,3,4]; DEPTH = 5
vK, vT = 248, 249
def L(qt): return 250 + qt
def T(qt): return 252 + qt
TMP0, TMP1 = 254, 255
vT1, vXO, vBP = 252, 253, 254
vST, vFO, vFV = 248, 252, 253
def XF(qt, s):
    if s < 10: return 128 + 8 * (s % 8) + 4 * qt
    return 192 + 8 * (s - 10) + 4 * qt

sWID = 3
sH, sB, sBLK = 26, 27, 28
sX, sW, sKd, sVd, sO, sP, sF, sOUT = 36, 40, 44, 48, 52, 56, 92, 96
sC, sKT, sTHR, sKpos, sVpos, sDK, sDV, sPOS, sNEG, sCNT, sRET, sT0, sT1, sOFF, sXB = 60, 61, 62, 63, 64, 65, 66, 67, 68, 69, 70, 71, 72, 73, 74
sPB = 75
sFL, sOR = 86, 88
sTAG = 90
sT2, sT3 = 29, 30

halves = [("W", i) for i in range(14)] + [("K", 0), ("K", 1)]
for i in range(1, 15): halves += [("V", i - 1), ("K", i + 1)]
halves += [("V", 14), ("V", 15)] + [("O", i) for i in range(14)]
assert len(halves) == 60
def slot_idx(n): return n % 8 if n < 16 else (n - 16) % NSLOT
def slot_addr(n): return slot_idx(n) * SLOT
XPRIV = 8 * SLOT; X0ADDR = 6 * SLOT
LASTBAR = int(opt("lastbar", "28"))

class Half:
    def __init__(self, n, reads, mf, pre): self.n = n; self.reads = reads; self.mf = mf; self.pre = pre
def vadd_lit(reg, delta): return valu("v_add_u32 %s, 0x%x, %s" % (R(reg), delta & 0xffffffff, R(reg)), wr=[reg], rd=[reg])
def vadd_s(reg, s): return valu("v_add_u32 %s, %s, %s" % (R(reg), S(s), R(reg)), wr=[reg], rd=[reg])
def vop(op, d, *src):
    t = "%s %s, %s" % (op, R(d), ", ".join(R(x) if isinstance(x, int) else x for x in src))
    return valu(t, wr=[d], rd=[x for x in src if isinstance(x, int)])
def lane_id(d): return [vop("v_mbcnt_lo_u32_b32", d, "-1", "0"), vop("v_mbcnt_hi_u32_b32", d, "-1", d)]

def half_W(s, pre):
    def reads(f, b):
        a = vT1 if f & 1 else vT
        return [dsrtr(b, a, 32 * f), dsrtr(b + 2, a, 32 * f + 512)]
    def mf(f, b): return [mfma16(ACC(qt, f), b, XF(qt, s), None if s == 0 else ACC(qt, f)) for qt in range(2)]
    return Half(16, reads, mf, pre)
def half_W2(s, pre):
    assert slot_addr(s + 1) == slot_addr(s) + SLOT
    def reads(f, b):
        t, e = f >> 1, f & 1
        a = vT1 if t & 1 else vT
        return [dsrtr(b, a, e * SLOT + 32 * t), dsrtr(b + 2, a, e * SLOT + 32 * t + 512)]
    def mf(f, b):
        t, e = f >> 1, f & 1
        return [mfma16(ACC(qt, t), b, XF(qt, s + e), ACC(qt, t)) for qt in range(2)]
    return Half(32, reads, mf, pre)
def half_K(pre, first=False):
    sr = SR0 if first else SR
    def reads(f, b): return [dsr128(b, vK, 512 * (f & 1) + 64 * (f >> 1))]
    def mf(f, b):
        u, z = f >> 1, f & 1
        return [mfma16(sr(qt, z), b, QF(qt, u), (None if first else NM(qt)) if u == 0 else sr(qt, z)) for qt in range(2)]
    return Half(16, reads, mf, pre)
def half_V(pre, first=False):
    def reads(f, b): return [dsrtr(b, vT, 32 * f), dsrtr(b + 2, vT, 32 * f + 512)]
    def mf(f, b): return [mfma16(ACC(qt, f), b, PR(qt), None if first else ACC(qt, f)) for qt in range(2)]
    return Half(16, reads, mf, pre)
def half_O(hh, aset, pre):
    def reads(f, b):
        ks, tau = f >> 2, f & 3
        return [dsrtr(b, vT, 256 * ks + 32 * tau), dsrtr(b + 2, vT, 256 * ks + 128 + 32 * tau)]
    def mf(f, b):
        ks, tau = f >> 2, f & 3
        u = 4 * hh + ks
        return [mfma16(OACC(aset, qt, tau), b, QF(qt, u), None if u == 0 else OACC(aset, qt, tau)) for qt in range(2)]
    return Half(16, reads, mf, pre)

class Stream:
    def __init__(self): self.o = []; self.q = []; self.pend = []
    def buf(self, f): return FB0 + 4 * BUFSEQ[f % 16]
    def lds(self, ins, key): self.o.append(ins); self.q.append(key)
    def first_read(self, h, f):
        rs = h.reads(f, self.buf(f)); key = (id(h), f)
        if KLATE and len(rs) == 1:
            self.pend = [(rs[0], key)]
            return (h.pre if f == 0 else []), []
        self.pend = [(r, key) for r in rs[1:]]
        return (h.pre if f == 0 else []), [(rs[0], key)]
    def preload(self, h):
        for f in range(DEPTH):
            for r, k in self.pend: self.lds(r, k)
            pre, rs = self.first_read(h, f)
            self.o += pre
            for r, k in rs: self.lds(r, k)
    def rekey(self, hold, hnew):
        f = lambda k: (id(hnew), k[1]) if k[0] == id(hold) else k
        self.q = [f(k) for k in self.q]; self.pend = [(r, f(k)) for r, k in self.pend]
    def waitfor(self, keys):
        idx = [i for i, k in enumerate(self.q) if k in keys]
        if idx:
            last = max(idx); n = len(self.q) - 1 - last
            assert n <= 15
            self.o.append(wait(lgkm=n)); self.q = self.q[last + 1:]
    def run(self, h, nxt, fill=None, head=None, post=None, ldsx=None, needs=None):
        fill = fill or {}; head = head or {}; post = post or {}; ldsx = ldsx or {}; needs = needs or {}
        for d in (fill, head, post, ldsx): assert all(0 <= k < 2 * h.n for k in d), d.keys()
        for f in range(h.n):
            ms = h.mf(f, self.buf(f))
            for k, m in enumerate(ms):
                sl = 2 * f + k
                self.o += head.get(sl, [])
                if k == 0:
                    assert not any(kk == (id(h), f) for _, kk in self.pend)
                    self.waitfor([(id(h), f)] + needs.get(f, []))
                self.o.append(m)
                pre, rs = [], []
                if k == 0:
                    rs = self.pend; self.pend = []
                else:
                    g = f + DEPTH
                    if g < h.n: pre, rs = self.first_read(h, g)
                    elif nxt is not None: pre, rs = self.first_read(nxt, g - h.n)
                self.o += fill.get(sl, []) + pre
                for r, kk in rs: self.lds(r, kk)
                for r, kk in ldsx.get(sl, []): self.lds(r, kk)
                self.o += post.get(sl, [])

def cost(op):
    if op.kind == "vst": return 2 if STGAP else 0
    return 2 if op.kind in ("trans", "perm") else (1 if op.kind == "valu" else 0)
def pack(ops, lo, d=None, cap=2):
    d = d if d is not None else {}
    s = lo
    for op in ops:
        while sum(cost(x) for x in d.get(s, [])) + cost(op) > cap: s += 1
        d.setdefault(s, []).append(op)
    return d, s
def split(d, n): return {k: v for k, v in d.items() if k < n}, {k - n: v for k, v in d.items() if k >= n}
def flat(d):
    o = []
    for k in sorted(d): o += d[k]
    return o

def sm_ops(sr=SR):
    ops = []
    def s(qt, j): return sr(qt, 0) + j
    for j in range(0, 9):
        if j < 8:
            for qt in range(2): ops.append(v_exp(s(qt, j), s(qt, j)))
        if j >= 2:
            for qt in range(2):
                ops.append(v_add(T(qt), s(qt, 0), s(qt, 1)) if j == 2 else v_add(T(qt), T(qt), s(qt, j - 1)))
    return ops
def check_ops():
    return [v_max(TMP0, T(0), T(1)), valu("v_cmp_nge_f32 vcc, %s, %s" % (S(sTHR), R(TMP0)), rd=[TMP0], swr=["vcc"])]
def pcvt(qt, z, sr=SR): return [v_cvtpk(PR(qt) + 2 * z, sr(qt, z), sr(qt, z) + 1), v_cvtpk(PR(qt) + 2 * z + 1, sr(qt, z) + 2, sr(qt, z) + 3)]
def ladd(): return [v_add(L(qt), L(qt), T(qt)) for qt in range(2)]
def rowreduce(reg, tmp, op):
    return [v_mov(tmp, R(reg), [reg]), v_swap16(reg, tmp), op(reg, reg, tmp),
            v_mov(tmp, R(reg), [reg]), v_swap32(reg, tmp), op(reg, reg, tmp)]
def qk_head():
    head = {0: pcvt(0, 0)}
    fill = {0: pcvt(1, 0), 1: pcvt(0, 1), 2: pcvt(1, 1), 3: ladd()}
    return head, fill

def red_consts(lane, a1, a2, vld, vout, t0, t1):
    o = []
    o.append(vop("v_and_b32", t0, "15", lane))
    for base, sh in ((a1, 0), (a2, 8)):
        for r in range(4):
            o.append(vop("v_mov_b32", base + r, "0"))
            o.append(valu("v_cmp_eq_u32 vcc, %d, %s" % (2 * r + sh, R(t0)), rd=[t0], swr=["vcc"]))
            o.append(vop("v_mov_b32", t1, "0x3f80"))
            o.append(valu("v_cndmask_b32 %s, %s, %s, vcc" % (R(base + r), R(base + r), R(t1)), wr=[base + r], rd=[base + r, t1], srd=["vcc"]))
            o.append(valu("v_cmp_eq_u32 vcc, %d, %s" % (2 * r + 1 + sh, R(t0)), rd=[t0], swr=["vcc"]))
            o.append(vop("v_mov_b32", t1, "0x3f800000"))
            o.append(valu("v_cndmask_b32 %s, %s, %s, vcc" % (R(base + r), R(base + r), R(t1)), wr=[base + r], rd=[base + r, t1], srd=["vcc"]))
    o.append(vop("v_lshrrev_b32", t1, "4", lane))
    o.append(vop("v_mul_u32_u24", vld, "0x%x" % PART, t1))
    o.append(vop("v_lshl_add_u32", vld, t0, "4", vld))
    o.append(vop("v_mul_u32_u24", vout, "1792", t0))
    o.append(vop("v_and_b32", t0, "1", t1))
    o.append(vop("v_lshl_add_u32", vout, t0, "5", vout))
    o.append(vop("v_lshrrev_b32", t0, "1", t1))
    o.append(vop("v_lshl_add_u32", vout, t0, "7", vout))
    return o
def out_base(dst, ci, tmp):
    return [salu("s_lshr_b32 %s, %s, 3" % (S(dst), S(ci))), salu("s_mul_i32 %s, %s, %d" % (S(dst), S(dst), 16 * 1792)),
            salu("s_and_b32 %s, %s, 3" % (S(tmp), S(ci))), salu("s_lshl_b32 %s, %s, 3" % (S(tmp), S(tmp))),
            salu("s_add_u32 %s, %s, %s" % (S(dst), S(dst), S(tmp))),
            salu("s_and_b32 %s, %s, 4" % (S(tmp), S(ci))), salu("s_lshl_b32 %s, %s, 4" % (S(tmp), S(tmp))),
            salu("s_add_u32 %s, %s, %s" % (S(dst), S(dst), S(tmp)))]
def mktag(): return [salu("s_mul_i32 %s, %s, 0x9e3779b1" % (S(sTAG), S(sTAG))), salu("s_add_u32 %s, %s, 0x7f4a7c15" % (S(sTAG), S(sTAG)))]
_pl = [0]
def pollload(vaddr, vdat):
    return vmem("buffer_load_dword %s, %s, %s, 0 offen sc1" % (R(vdat), R(vaddr), S(sF, 4)), wr=[vdat], rd=[vaddr])
def poll(vaddr, vdat, need, pre=False):
    _pl[0] += 1; lb = "L_poll%d" % _pl[0]
    first = [salu("s_add_u32 %s, %s, %d" % (S(sT1), S(sTAG), need)), wait(vm=4), salu("s_branch %sc" % lb)] if pre else []
    return [salu("s_mov_b32 %s, %d" % (S(sCNT), SPIN))] + first + [label(lb),
            vmem("buffer_load_dword %s, %s, %s, 0 offen sc1" % (R(vdat), R(vaddr), S(sF, 4)), wr=[vdat], rd=[vaddr]),
            salu("s_sub_u32 %s, %s, 1" % (S(sCNT), S(sCNT))), salu("s_cbranch_scc1 L_exit1"),
            salu("s_add_u32 %s, %s, %d" % (S(sT1), S(sTAG), need)),
            wait(vm=0), label(lb + "c"),
            vop("v_subrev_u32", vdat, S(sT1), vdat),
            valu("v_cmp_lt_u32 vcc, %d, %s" % (7 - need, R(vdat)), rd=[vdat], swr=["vcc"]),
            nop(0), salu("s_cbranch_vccz %sx" % lb), salu("s_sleep %d" % SLEEP), salu("s_branch %s" % lb), label(lb + "x")]

def w1share():
    return [salu("s_add_u32 m0, s23, %d" % SLOT), salu("s_add_u32 %s, %s, %d" % (S(sOFF), S(sOFF), 31 * 8192)),
            vmem("buffer_load_dwordx4 v242, %s, %s offen lds" % (S(sW, 4), S(sOFF)), rd=[242]),
            salu("s_addk_i32 m0, %d" % ISTR), salu("s_addk_i32 %s, 8192" % S(sOFF)),
            vmem("buffer_load_dwordx4 v242, %s, %s offen lds" % (S(sW, 4), S(sOFF)), rd=[242])]
def compute_wave(late):
    st = Stream(); o = st.o; A = o.append
    o += [label("L_compute")]
    def xdma(r, base):
        ops = []
        if X128:
            for qt in range(2):
                for rh in range(2):
                    a = 251 if rh else vXO
                    ops.append([salu("s_add_u32 m0, %s, %d" % (S(sXB), base + (2 * qt + rh) * 1024 - 128 * r)),
                                vmem("buffer_load_dwordx4 %s, %s, %s offen offset:%d lds" % (R(a), S(sX, 4), S(sT1) if qt else "0", 128 * r), rd=[a])])
            return ops
        for e in range(2):
            for qt in range(2):
                sidx = 2 * r + e
                ops.append([salu("s_add_u32 m0, %s, %d" % (S(sXB), base + (2 * e + qt) * 1024 - 64 * sidx)),
                            vmem("buffer_load_dwordx4 %s, %s, %s offen offset:%d lds" % (R(vXO), S(sX, 4), S(sT1) if qt else "0", 64 * sidx), rd=[vXO])])
        return ops
    def xread(r, base):
        if X128: return [(dsr128(XF(qt, 2 * r + e), vBP1 if e else vBP, base - X0ADDR + qt * 2048), ("x", r)) for e in range(2) for qt in range(2)]
        return [(dsr128(XF(qt, 2 * r + e), vBP, base - X0ADDR + (2 * e + qt) * 1024), ("x", r)) for e in range(2) for qt in range(2)]
    x0 = xdma(0, X0ADDR)
    if X128: o += x0[0] + x0[1] + x0[2] + x0[3] + w1share()
    else: o += x0[0] + x0[1] + w1share() + x0[2] + x0[3]
    o += late + st0(0)
    NG = WARMX + WARMW
    if WARMX:
        A(salu("s_lshr_b32 %s, s2, 6" % S(sT0))); A(salu("s_mul_i32 %s, %s, 7" % (S(sT0), S(sT0)))); A(salu("s_add_u32 %s, %s, %s" % (S(sT0), S(sT0), S(sWID))))
        A(salu("s_mul_i32 %s, %s, %d" % (S(sT0), S(sT0), 56 * 128))); A(vop("v_lshlrev_b32", 8, "7", 1))
        A(vmem("buffer_load_dword v251, v8, %s, %s offen" % (S(sX, 4), S(sT0)), wr=[251], rd=[8]))
    if WARMW:
        A(salu("s_mul_i32 %s, %s, 44" % (S(sT0), S(sB)))); A(salu("s_lshl_b32 %s, %s, 4" % (S(sOFF), S(sWID)))); A(salu("s_add_u32 %s, %s, %s" % (S(sT0), S(sT0), S(sOFF))))
        A(salu("s_add_u32 %s, %s, 96" % (S(sT0), S(sT0)))); A(salu("s_cmp_lt_u32 %s, 3" % S(sWID))); A(salu("s_cselect_b32 %s, %s, 4096" % (S(sT0), S(sT0))))
        A(salu("s_lshl_b32 %s, %s, 13" % (S(sT0), S(sT0))))
        A(vop("v_lshlrev_b32", 10, "13", 5)); A(vop("v_lshl_add_u32", 10, 6, "7", 10))
        A(vmem("buffer_load_dword v255, v10, %s, %s offen" % (S(sW, 4), S(sT0)), wr=[255], rd=[10]))
    A(vop("v_mul_u32_u24", 5, str(ISTR), 5)); A(vop("v_lshl_add_u32", vT, 6, "3", 5)); A(vop("v_xor_b32", vT1, "16", vT))
    A(vop("v_and_b32", 2, "15", 1)); A(vop("v_lshrrev_b32", 3, "4", 1))
    if X128:
        A(vop("v_lshrrev_b32", 6, "1", 2)); A(vop("v_xor_b32", 6, 6, 3))
        A(vop("v_lshl_add_u32", 6, 2, "3", 6))
    else:
        A(vop("v_lshrrev_b32", 6, "2", 2)); A(vop("v_sub_u32", 6, "0", 6)); A(vop("v_xor_b32", 6, 6, 3)); A(vop("v_and_b32", 6, "3", 6))
        A(vop("v_lshl_add_u32", 6, 2, "2", 6))
    A(vop("v_lshlrev_b32", 6, "4", 6)); A(vop("v_add_u32", 6, S(sXB), 6))
    A(vop("v_add_u32", vBP, "0x%x" % X0ADDR, 6))
    if X128: A(vop("v_xor_b32", vBP1, "64", vBP))
    A(vop("v_lshlrev_b32", 6, "1", 3)); A(vop("v_mov_b32", 7, "0x9c")); A(vop("v_lshrrev_b32", 6, 6, 7)); A(vop("v_and_b32", 6, "3", 6))
    A(vop("v_mul_u32_u24", 5, str(ISTR), 2)); A(vop("v_lshl_add_u32", vK, 6, "4", 5)); A(vadd_lit(vK, slot_addr(14)))
    A(vop("v_mov_b32", L(0), "0x%x" % f2u(CSCALE)))
    A(salu("s_mov_b32 %s, 0x%x" % (S(sTHR), f2u(THR))))
    A(salu("s_mov_b32 %s, %d" % (S(sPOS), 2 * SLOT)))
    A(salu("s_mov_b32 %s, %d" % (S(sNEG), -7 * SLOT)))
    o += st0(1)
    A(wait(vm=2 if X128 else 4))
    o += st0(2)
    xr0 = xread(0, X0ADDR)
    for r, k in xr0[:2]: st.lds(r, ("x", -1))
    def wpre(n):
        if n == 0: return []
        d = slot_addr(n) - slot_addr(n - 1)
        return [vadd_lit(vT, d), vadd_lit(vT1, d)]
    HW = [half_W(s, wpre(s)) for s in range(12)] + [half_W2(12, wpre(12))]
    HK0 = half_K([], first=True)
    o += st0(3)
    A(barrier())
    o += st0(4)
    st.preload(HW[0])
    A(salu("s_buffer_load_dword %s, %s, 0x380" % (S(sTAG), S(sF, 4))))
    def qconv(u):
        grp = [(qt, e) for e in range(2) for qt in range(2)]
        mul = lambda qt, e: [vop("v_mul_f32", ACC(qt, 2 * u + e) + r, L(0), ACC(qt, 2 * u + e) + r) for r in range(4)]
        cvt = lambda qt, e: [v_cvtpk(QF(qt, u) + 2 * e + h, ACC(qt, 2 * u + e) + 2 * h, ACC(qt, 2 * u + e) + 2 * h + 1) for h in range(2)]
        swp = lambda qt: [v_swap16(QF(qt, u) + h, QF(qt, u) + 2 + h) for h in range(2)]
        return mul(0, 0) + mul(1, 0) + cvt(0, 0) + mul(0, 1) + cvt(1, 0) + mul(1, 1) + cvt(0, 1) + cvt(1, 1) + swp(0) + swp(1)
    for s in range(12):
        post = {}; ldsx = {}; head = {}; needs = {}
        if s == 0:
            needs[0] = [("x", -1)]
            for i, g in enumerate(xdma(1, XPRIV)):
                head.setdefault(2 * i + 1, []).append(g[0]); post.setdefault(2 * i + 1, []).append(g[1])
            head[BBS] = [wait(vm=4), barrier()]
            for i, e in enumerate(xr0[2:]): ldsx.setdefault(BBS + 2 * i, []).append(e)
            needs[15] = [("x", 0)]
        if s & 1:
            r = s // 2 + 1
            st0_ = XSLOT0 if s == 1 else XSLOT
            head[st0_] = (st0(5) if s == 3 else []) + [wait(vm=0)] + (st0(6) if s == 3 else [])
            for i, e in enumerate(xread(r, XPRIV)): ldsx.setdefault(st0_ + 2 * i, []).append(e)
            fd = (st0_ + 6) // 2 + 4
            assert fd + 4 <= 16
            needs[fd] = [("x", r)]
            if r + 1 < 7:
                for i, g in enumerate(xdma(r + 1, XPRIV)):
                    head.setdefault(2 * fd + 2 * i + 1, []).append(g[0]); post.setdefault(2 * fd + 2 * i + 1, []).append(g[1])
        st.run(HW[s], HW[s + 1], None, head, post, ldsx, needs)
        if s == 3: o += st0(7)
        if (s & 1) or (s == 0 and FAST0): A(barrier())
    allc = [(u, op) for u in range(8) for op in qconv(u)]
    fill = {}; i = 0
    for sl in range(64):
        while i < len(allc) and sl >= 8 * allc[i][0] + 11 and sum(cost(x) for x in fill.get(sl, [])) + cost(allc[i][1]) <= 2:
            fill.setdefault(sl, []).append(allc[i][1]); i += 1
    st.run(HW[12], HK0, fill)
    rest = allc[i:]
    def try_take(n):
        d = {}; sl = 0
        for u, op in rest[len(rest) - n:]:
            while sum(cost(x) for x in d.get(sl, [])) + cost(op) > 2: sl += 1
            if sl >= 4 * u - 2: return None
            d.setdefault(sl, []).append(op)
        return d
    take = max(n for n in range(len(rest) + 1) if try_take(n) is not None)
    fillK = try_take(take)
    blk = [op for _, op in rest[:len(rest) - take]]
    A(barrier())
    o += blk
    A(wait(lgkm=0)); st.q = []
    HK1 = half_K([vadd_lit(vK, slot_addr(15) - slot_addr(14))])
    post = {27: [salu("s_mov_b32 %s, %d" % (S(sKpos), slot_addr(17))), salu("s_mov_b32 %s, %d" % (S(sVpos), slot_addr(16)))],
            28: [salu("s_mov_b32 %s, 13" % S(sCNT)), salu("s_mov_b32 %s, 0" % S(sRET))], 29: [salu("s_mov_b32 %s, 16384" % S(sKT))], 30: mktag()}
    st.run(HK0, HK1, fillK, None, post)
    ma = []; mb = []
    for qt, lst in ((0, ma), (1, mb)):
        s0 = SR0(qt, 0); m = NM(qt)
        lst += [v_max3(m, s0, s0 + 1, s0 + 2), v_max3(m, m, s0 + 3, s0 + 4), v_max3(m, m, s0 + 5, s0 + 6), v_max(m, m, s0 + 7)]
        lst += rowreduce(m, TMP0 + qt, v_max)
        lst += [vop("v_sub_f32", m, "0", m)] + [v_mov(m + j, R(m), [m]) for j in range(1, 4)]
    for a, b in zip(ma, mb): o += [a, b]
    adds = [v_add(SR0(qt, 0) + j, SR0(qt, 0) + j, NM(qt)) for j in range(8) for qt in range(2)]
    sm0 = sm_ops(SR0)
    ops = adds[:4]; ai = 4
    for op in sm0:
        ops.append(op)
        if op.kind == "trans" and (len([x for x in ops if x.kind == "trans"]) % 2 == 0) and ai < 16:
            ops += adds[ai:ai + 2]; ai += 2
    ops += pcvt(0, 0, SR0) + pcvt(1, 0, SR0) + pcvt(0, 1, SR0) + pcvt(1, 1, SR0) + [v_mov(L(qt), R(T(qt)), [T(qt)]) for qt in range(2)]
    fill, nx = pack(ops, 0)
    fill, over = split(fill, 32)
    HVn = half_V([vadd_lit(vT, slot_addr(16) - slot_addr(12))])
    st.run(HK1, HVn, fill)
    o += flat(over)
    print("conv: woven W", i, "block", len(blk), "woven K", take, "sm0 overflow", len(flat(over)))
    pre_loop = list(o)

    def pv_fill():
        d, n = pack(sm_ops() + check_ops(), 0)
        assert n < 31
        return d
    def slotcalc():
        return [salu("s_cmp_gt_u32 %s, %d" % (S(sKpos), 6 * SLOT)), salu("s_cselect_b32 %s, %s, %s" % (S(sDK), S(sNEG), S(sPOS))),
                salu("s_add_u32 %s, %s, %s" % (S(sKpos), S(sKpos), S(sDK))),
                salu("s_cmp_gt_u32 %s, %d" % (S(sVpos), 6 * SLOT)), salu("s_cselect_b32 %s, %s, %s" % (S(sDV), S(sNEG), S(sPOS))),
                salu("s_add_u32 %s, %s, %s" % (S(sVpos), S(sVpos), S(sDV)))]
    HKn = half_K([])
    def pv_part(first, nxt, extra):
        HV = half_V([], first=first); st.rekey(HVn, HV)
        st.o.append(barrier())
        post = {}
        for i, x in enumerate(extra): post.setdefault(2 * i, []).append(x)
        st.run(HV, nxt, pv_fill(), None, post)
    def qk_part(extra):
        HK = half_K([]); st.rekey(HKn, HK)
        nxt = half_V([vadd_s(vT, sDV)])
        head, fill = qk_head()
        post = {}
        for i, x in enumerate(extra): post.setdefault(4 + 2 * i, []).append(x)
        st.run(HK, nxt, fill, head, post)
        st.rekey(nxt, HVn)
    ktadd = salu("s_add_u32 %s, %s, 16384" % (S(sKT), S(sKT)))
    st.o = []; fb = st.o
    nk = half_K([vadd_s(vK, sDK)])
    pv_part(True, nk, [salu("s_mov_b32 %s, %d" % (S(sDK), slot_addr(17) - slot_addr(15)))] + slotcalc()[3:] + [salu("s_mov_b64 %s, 0" % S(sFL, 2))]); st.rekey(nk, HKn)
    fb.append(salu("s_cbranch_vccnz L_rare"))
    q0 = (list(st.q), [k for _, k in st.pend])
    st.o = []; lb = st.o
    qk_part([ktadd])
    nk = half_K([vadd_s(vK, sDK)])
    pv_part(False, nk, slotcalc() + [salu("s_sub_u32 %s, %s, 1" % (S(sCNT), S(sCNT))), salu("s_cmp_eq_u32 %s, 0" % S(sCNT)),
                                     salu("s_cselect_b32 %s, 1, 0" % S(sFL)), salu("s_mov_b32 %s, %s" % (S(sRET), S(sFL)))]); st.rekey(nk, HKn)
    lb.append(salu("s_or_b64 %s, vcc, %s" % (S(sOR, 2), S(sFL, 2))))
    lb.append(salu("s_cbranch_scc0 L_loop"))
    assert (st.q, [k for _, k in st.pend]) == q0
    st.o = []; o2 = st.o; A = o2.append
    A(salu("s_cbranch_vccnz L_rare")); A(label("L_ret1"))
    pfo = []
    if WOPF:
        pfo += lane_id(TMP1) + [salu("s_mul_i32 %s, %s, 28672" % (S(sT0), S(sB))), salu("s_add_u32 %s, %s, %s" % (S(sT0), S(sT0), S(sXB))),
                vop("v_and_b32", TMP0, "32", TMP1), vop("v_lshlrev_b32", TMP0, "16", TMP0), vop("v_lshl_add_u32", TMP0, TMP1, "7", TMP0),
                vmem("buffer_load_dword %s, %s, %s, %s offen" % (R(vK), R(TMP0), S(sO, 4), S(sT0)), wr=[vK], rd=[TMP0])]
    if CODEPF and not CPF2:
        pfo += [salu("s_getpc_b64 s[4:5]"), label("L_pcc"), salu("s_mul_i32 %s, %s, 6144" % (S(sT0), S(sWID))),
                salu("s_mov_b32 s6, L_exit1-L_pcc"), salu("s_mov_b32 s7, 0x20000")] + lane_id(TMP1) + [vop("v_mul_u32_u24", TMP1, "96", TMP1),
                vmem("buffer_load_dword %s, %s, s[4:7], %s offen" % (R(vK), R(TMP1), S(sT0)), wr=[vK], rd=[TMP1])]
    qk_part([ktadd, salu("s_mov_b32 %s, 2" % S(sRET))])
    o2 += pfo
    def opre(n): return [vadd_lit(vT, slot_addr(n) - slot_addr(n - 1))]
    NSET = 2 if OLOOP else 4
    HO = [half_O(i & 1, (i >> 1) % NSET, opre(46 + i)) for i in range(14)]
    HV15 = half_V(opre(45))
    pv_part(False, HV15, [])
    A(salu("s_cbranch_vccnz L_rare")); A(label("L_ret2"))
    def oconv(u):
        ops = []
        for qt in range(2):
            for e in range(2):
                a = ACC(qt, 2 * u + e)
                for h in range(2): ops.append(v_cvtpk(QF(qt, u) + 2 * e + h, a + 2 * h, a + 2 * h + 1))
        return ops
    o2 += pcvt(0, 0) + pcvt(0, 1) + pcvt(1, 0) + pcvt(1, 1)
    r0 = rowreduce(L(0), TMP0, v_add); r1 = rowreduce(L(1), TMP1, v_add)
    lops = ladd() + [x for ab in zip(r0, r1) for x in ab]
    fill, nx = pack(lops, 0)
    for u in range(8): fill, nx = pack(oconv(u), max(nx, 4 * u + 7 if u < OCV else 32), fill)
    lop2 = [trans("v_rcp_f32 %s, %s" % (R(L(qt)), R(L(qt))), wr=[L(qt)], rd=[L(qt)]) for qt in range(2)]
    lop2 += lane_id(TMP0) + [wait(vm=0), vop("v_lshlrev_b32", vST, "4", TMP0),
             salu("s_add_u32 %s, %s, %s" % (S(sT0), S(sXB), S(sPB))), vadd_s(vST, sT0),
             salu("s_lshl_b32 %s, %s, 7" % (S(sT0), S(sWID))), salu("s_lshl_b32 %s, %s, 10" % (S(sT1), S(sH))), salu("s_add_u32 %s, %s, %s" % (S(sT0), S(sT0), S(sT1))),
             vop("v_and_b32", TMP1, "32", TMP0), vop("v_lshlrev_b32", TMP1, "12", TMP1), vop("v_lshl_add_u32", vFO, TMP0, "2", TMP1), vadd_s(vFO, sT0)]
    fill, nx = pack(lop2, nx, fill)
    fill, carry = split(fill, 32)
    st.run(HV15, HO[0], fill)
    def epi(j):
        ops = []; aset = j % NSET
        for qt in range(2):
            for hf in range(2):
                dst = SR(qt, hf)
                for e in range(2):
                    a = OACC(aset, qt, 2 * hf + e)
                    for r in range(4): ops.append(v_mul(a + r, a + r, L(qt)))
                    for h in range(2): ops.append(v_cvtpk(dst + 2 * e + h, a + 2 * h, a + 2 * h + 1))
                if qt == 0 and hf == 0: ops.append(salu("s_add_u32 %s, %s, %d" % (S(sOFF), S(sOFF), STG)) if OLOOP else salu("s_mov_b32 %s, %d" % (S(sOFF), j * STG)))
                ops.append(vmem("buffer_store_dwordx4 %s, %s, %s, %s offen offset:%d%s" % (R(dst, 4), R(vST), S(sP, 4), S(sOFF), 2048 * qt + 1024 * hf, STFLAG),
                                rd=list(rr(dst, 4)) + [vST], store=True))
        return ops
    def publish(j, vm):
        if "--noflag" in sys.argv: return [wait(vm=vm)]
        if "--nopub" in sys.argv: return []
        return [salu("s_add_u32 %s, %s, %d" % (S(sT1), S(sTAG), j + 1)), vop("v_mov_b32", vFV, S(sT1)), wait(vm=vm if "--nowait" not in sys.argv else 63),
                vmem("buffer_store_dword %s, %s, %s, 0 offen sc1" % (R(vFV), R(vFO), S(sF, 4)), rd=[vFV, vFO], store=True)]
    a1, a2, vld, vout, vpa, vpd, lane = 208, 212, 216, 217, 218, 219, 220
    tailc = lane_id(lane) + red_consts(lane, a1, a2, vld, vout, 221, 222)
    tailc += [salu("s_mul_i32 %s, %s, 7" % (S(sT2), S(sH))), salu("s_add_u32 %s, %s, %s" % (S(sT2), S(sT2), S(sWID))),
              salu("s_lshr_b32 %s, %s, 4" % (S(sT0), S(sT2))), salu("s_lshl_b32 %s, %s, 7" % (S(sT0), S(sT0))),
              vop("v_and_b32", vpa, "15", lane), vop("v_lshlrev_b32", vpa, "10", vpa), vadd_s(vpa, sT0)]
    tailc += out_base(sT3, sT2, sT0) + [salu("s_lshl_b32 %s, %s, 8" % (S(sT2), S(sT2)))]
    tc = {}
    npre = 9
    pa = lane_id(lane) + tailc[-16:-9]
    if len(CBATCH) > 1: tc, _ = pack(pa, 0, None, 1)
    olb = None
    if not OLOOP:
        for i in range(14):
            j = i >> 1
            if not (i & 1) and (23 + j <= LASTBAR or ENDBAR): A(barrier())
            fill = {}; post = {}
            if i == 0: fill = carry
            elif j >= 1 and not (i & 1): fill, _ = pack(epi(j - 1), 1)
            if i & 1:
                post, tc = split(tc, 32)
                if j >= 2:
                    extra_ = 1 if (j - 3) in PUBS else 0
                    if j - 2 in PUBS: post.setdefault(PUBSLOT, []).extend(publish(j - 2, 4 + extra_))
                    elif THROT: post.setdefault(PUBSLOT, []).append(wait(vm=4 + extra_))
            st.run(HO[i], HO[i + 1] if i < 13 else None, fill, None, post)
    else:
        assert ENDBAR and set(PUBS) <= {1, 3}
        A(barrier())
        st.run(HO[0], HO[1], carry)
        post, tc = split(tc, 32)
        init = [salu("s_mov_b32 %s, %d" % (S(sVpos), slot_addr(48))), salu("s_mov_b32 %s, %d" % (S(sPOS), SLOT)), salu("s_mov_b32 %s, %d" % (S(sNEG), -8 * SLOT)),
                salu("s_mov_b32 %s, %d" % (S(sOFF), -STG)), salu("s_mov_b32 %s, 3" % S(sCNT)), salu("s_sub_u32 %s, %s, 2" % (S(sT1), S(sTAG))), vop("v_mov_b32", vFV, S(sT1))]
        for i, x in enumerate(init): post.setdefault(14 + 2 * i, []).append(x)
        st.run(HO[1], HO[2], None, None, post)
        o2a = st.o; st.o = []; olb = st.o
        q1 = (list(st.q), [k for _, k in st.pend])
        dyn = lambda: [vadd_s(vT, sDV)]
        LH = [half_O(0, 1, []), half_O(1, 1, dyn()), half_O(0, 0, dyn()), half_O(1, 0, dyn()), half_O(0, 1, dyn())]
        st.rekey(HO[2], LH[0])
        for i in range(4):
            if not (i & 1): olb.append(barrier())
            post = {0: [salu("s_cmp_eq_u32 %s, %d" % (S(sVpos), 8 * SLOT))], 2: [salu("s_cselect_b32 %s, %s, %s" % (S(sDV), S(sNEG), S(sPOS)))],
                    4: [salu("s_add_u32 %s, %s, %s" % (S(sVpos), S(sVpos), S(sDV)))]}
            fill = {}
            if not (i & 1):
                e = epi(i >> 1)
                sa = [x for x in e if x.kind == "salu"]; e = [x for x in e if x.kind != "salu"]
                post[5] = sa
                fill, _ = pack(e, 1)
            if i == 1 and PUBS:
                post.setdefault(PUBSLOT, []).extend([vop("v_add_u32", vFV, "2", vFV), wait(vm=4),
                    vmem("buffer_store_dword %s, %s, %s, 0 offen sc1" % (R(vFV), R(vFO), S(sF, 4)), rd=[vFV, vFO], store=True)])
            if i == 3:
                post[10] = [salu("s_sub_u32 %s, %s, 1" % (S(sCNT), S(sCNT)))]; post[12] = [salu("s_cmp_lg_u32 %s, 0" % S(sCNT))]
            st.run(LH[i], LH[i + 1], fill, None, post)
        olb.append(salu("s_cbranch_scc1 L_oloop"))
        st.rekey(LH[4], HO[2])
        assert (st.q, [k for _, k in st.pend]) == q1
        st.o = []; o2 = st.o; A = o2.append
    assert not tc
    tsn = [0]
    if ST0: tsn[0] = 8
    def tstamp():
        if not PROF or ST0: return []
        r = 6 + 2 * tsn[0]; tsn[0] += 1
        return [salu("s_memrealtime s[%d:%d]" % (r, r + 1))]
    o2 += tstamp()
    if len(CBATCH) > 1 and not NORED: A(pollload(vpa, vpd))
    o2 += epi(6)
    cst = [j for bt in CBATCH for j in bt]
    def bufreg(j, i):
        n = 4 * cst.index(j) + i
        if OLOOP: return 4 * n
        return 4 * n if n < 16 else 96 + 4 * (n - 16)
    def loads(j):
        ops = []
        for i in range(4):
            ops.append(salu("s_add_u32 %s, %s, %d" % (S(sOFF), S(sT2), j * STG + 4 * i * PART)))
            ops.append(vmem("buffer_load_dwordx4 %s, %s, %s, %s offen sc1" % (R(bufreg(j, i), 4), R(vld), S(sP, 4), S(sOFF)), wr=rr(bufreg(j, i), 4), rd=[vld]))
        return ops
    if not NORED:
        assert 5 not in PUBS
        o2 += tstamp() + tailc + publish(6, 0) + tstamp()
        for bi, bt in enumerate(CBATCH):
            o2 += poll(vpa, vpd, bt[-1] + 1, pre=(bi == 0 and len(CBATCH) > 1)) + tstamp()
            if bi == 0:
                A(vop("v_mov_b32", 221, S(sTAG))); A(salu("s_lshl_b32 %s, %s, 6" % (S(sT0), S(sT2))))
                A(vmem("buffer_store_dword v221, off, %s, %s offset:896" % (S(sF, 4), S(sT0)), rd=[221], store=True))
            for j in bt: o2 += loads(j)
            if bi == 0: o2 += tstamp()
        left = 4 * len(CBATCH[-1]); nst = 0
        for p in range(4):
            js = [j for j in (2 * p, 2 * p + 1) if j in cst]
            if not js: continue
            assert js[0] == 2 * p and (len(js) == 2 or p == 3)
            acc = 144 + 8 * p
            n = 0
            for k, j in enumerate(js):
                for i in range(4):
                    if j in CBATCH[-1]:
                        left -= 1; A(wait(vm=left + nst))
                    A(mfma16(acc, a2 if k else a1, bufreg(j, i), acc if n else None)); n += 1
            A(v_cvtpk(acc + 4, acc, acc + 1)); A(v_cvtpk(acc + 5, acc + 2, acc + 3))
            if p == 3: A(salu("s_mov_b32 exec_hi, 0"))
            A(vmem("buffer_store_dwordx2 %s, %s, %s, %s offen offset:%d" % (R(acc + 4, 2), R(vout), S(sOUT, 4), S(sT3), 256 * p), rd=[acc + 4, acc + 5, vout], store=True)); nst += 1
    if PROF:
        o2 += tstamp(); A(wait(vm=0)); o2 += tstamp(); A(wait(lgkm=0))
        A(salu("s_mov_b64 exec, -1")); A(v_mov(0, "0"))
        for i in range(tsn[0]): A(valu("v_writelane_b32 v0, s%d, %d" % (6 + 2 * i, i), wr=[0]))
        A(vop("v_lshlrev_b32", 1, "2", 220)); A(salu("s_lshl_b32 s80, s2, 3")); A(salu("s_add_u32 s80, s80, %s" % S(sWID))); A(salu("s_lshl_b32 s80, s80, 5"))
        A(salu("s_add_u32 s80, s80, 65536")); A(salu("s_mov_b32 s78, 0x30000")); A(salu("s_mov_b64 exec, 0xff"))
        A(vmem("buffer_store_dword v0, v1, s[76:79], s80 offen", rd=[0, 1], store=True))
        A(wait(vm=0)); A(barrier())
    A(salu("s_endpgm"))
    rp = [label("L_rare"), nop(15)]
    rp += lane_id(TMP0) + [vop("v_lshrrev_b32", TMP1, "4", TMP0), vop("v_lshlrev_b32", TMP1, "1", TMP1), v_mov(T(0), "0x9c"),
           vop("v_lshrrev_b32", TMP1, TMP1, T(0)), vop("v_and_b32", TMP1, "3", TMP1), vop("v_lshlrev_b32", TMP1, "4", TMP1),
           vop("v_and_b32", TMP0, "15", TMP0), vop("v_lshl_add_u32", TMP0, TMP0, "9", TMP1),
           salu("s_add_u32 %s, %s, 8192" % (S(sT0), S(sKT)))]
    for u in range(8):
        for z in range(2):
            rp.append(vmem("buffer_load_dwordx4 %s, %s, %s, %s offen offset:%d" % (R(PR(z), 4), R(TMP0), S(sKd, 4), S(sT0 if z else sKT), 64 * u), wr=rr(PR(z), 4), rd=[TMP0]))
        rp.append(wait(vm=0))
        for z in range(2):
            for qt in range(2): rp.append(mfma16(SR(qt, z), PR(z), QF(qt, u), NM(qt) if u == 0 else SR(qt, z)))
        rp.append(nop(7))
    rp.append(nop(15))
    for qt in range(2):
        s0 = SR(qt, 0); d = T(qt)
        rp += [v_max3(d, s0, s0 + 1, s0 + 2), v_max3(d, d, s0 + 3, s0 + 4), v_max3(d, d, s0 + 5, s0 + 6), v_max(d, d, s0 + 7)]
        rp += rowreduce(d, TMP0, v_max)
        rp.append(vop("v_max_f32", d, "0", d))
        for j in range(8): rp.append(v_sub(s0 + j, s0 + j, d))
        for j in range(4): rp.append(v_sub(NM(qt) + j, NM(qt) + j, d))
        rp.append(trans("v_exp_f32 %s, -%s" % (R(TMP1), R(d)), wr=[TMP1], rd=[d]))
        rp.append(v_mul(L(qt), L(qt), TMP1))
        for t in range(16):
            for r in range(4): rp.append(v_mul(ACC(qt, t) + r, ACC(qt, t) + r, TMP1))
    rp += sm_ops()
    rp += [nop(7), salu("s_cmp_eq_u32 %s, 0" % S(sRET)), salu("s_cbranch_scc1 L_loop"),
           salu("s_cmp_eq_u32 %s, 1" % S(sRET)), salu("s_cbranch_scc1 L_ret1"), salu("s_branch L_ret2")]
    pre_loop = pad_hazards(pre_loop)
    fb = pad_hazards(fb, prefix=pre_loop)
    lb = pad_hazards(lb, prefix=fb)
    lb = pad_hazards(lb, prefix=lb)
    assert not check_hazards(pre_loop + fb + lb + lb)
    if OLOOP:
        o2a = pad_hazards(o2a, prefix=lb)
        olb = pad_hazards(olb, prefix=o2a); olb = pad_hazards(olb, prefix=olb)
        assert not check_hazards(o2a + olb + olb)
        o2 = o2a + [directive(".p2align 6"), label("L_oloop")] + olb + pad_hazards(o2, prefix=olb)
    else: o2 = pad_hazards(o2, prefix=lb)
    rp = pad_hazards(rp)
    return pre_loop + fb + [directive(".p2align 6"), label("L_loop")] + lb + [label("L_post")] + o2 + [label("L_postend")] + rp

def loader_wave(late):
    o = []; A = o.append
    lane, vKV, vW, vO, vSTAMP, vG, vD = 240, 241, 242, 243, 244, 245, 246
    A(label("L_loader"))
    o += w1share()
    if LPRIO0: A(salu("s_setprio %d" % LPRIO0))
    A(vop("v_mov_b32", lane, 1))
    issued = [0, 0, 1, 1]
    nstamp = [0]
    def stamp():
        if not PROF: return
        A(salu("s_memtime s[80:81]")); A(wait(lgkm=0))
        A(valu("v_writelane_b32 %s, s80, %d" % (R(vSTAMP), nstamp[0]), wr=[vSTAMP])); nstamp[0] += 1
    def room(n):
        nonlocal issued
        if len(issued) > 63 - n:
            A(wait(vm=63 - n)); issued = issued[-(63 - n):]
    cont = [None]
    def off_of(typ, idx, i):
        if typ == "W": return (idx * 32 + 8 * (i >> 2) + (i & 3)) * 8192
        if typ in "KV": return idx * 16384 + 512 * i
        return ((idx & 1) * 128 + i) * 896 + (idx >> 1) * 128
    def issue1(n, i, ahead):
        if len(issued) >= 63: room(min(8, ahead))
        typ, idx = halves[n]
        srd_, vo = {"W": (sW, vW), "K": (sKd, vKV), "V": (sVd, vKV), "O": (sO, vO)}[typ]
        if cont[0] == (n, i):
            A(salu("s_addk_i32 m0, %d" % ISTR))
            step = off_of(typ, idx, i) - off_of(typ, idx, i - 1)
            if step < 32768: A(salu("s_addk_i32 %s, %d" % (S(sOFF), step)))
            else: A(salu("s_add_u32 %s, %s, %d" % (S(sOFF), S(sOFF), step)))
        else:
            A(salu("s_mov_b32 m0, %d" % (slot_addr(n) + ISTR * i)))
            A(salu("s_mov_b32 %s, %d" % (S(sOFF), off_of(typ, idx, i))))
        cont[0] = (n, i + 1)
        A(vmem("buffer_load_dwordx4 %s, %s, %s offen%s lds" % (R(vo), S(srd_, 4), S(sOFF), KVFLAG if typ in "KV" else ""), rd=[vo]))
        issued.append(n)
    def landed(n):
        nonlocal issued
        idx = [i for i, k in enumerate(issued) if k <= n]
        if idx:
            cnt = len(issued) - 1 - max(idx)
            A(wait(vm=cnt)); issued = issued[max(idx) + 1:]
    def extra(ins):
        room(1); A(ins); issued.append(1000)
    def codepf(lo, neg, n):
        A(salu("s_getpc_b64 s[82:83]" if not PROF else "s_getpc_b64 s[4:5]"))
        p = 82 if not PROF else 4
        lbl = "L_pc%d" % len(o); A(label(lbl))
        A(salu("s_sub_u32 s%d, s%d, %s-L_compute" % (p, p, lbl))); A(salu("s_subb_u32 s%d, s%d, 0" % (p + 1, p + 1)))
        A(salu("s_add_u32 s%d, s%d, %s-L_compute" % (p, p, lo))); A(salu("s_addc_u32 s%d, s%d, 0" % (p + 1, p + 1)))
        for i in range(n):
            extra(vmem("global_load_dword %s, %s, s[%d:%d]" % (R(vD), R(vG), p, p + 1), wr=[vD], rd=[vG]))
            if i + 1 < n:
                A(salu("s_add_u32 s%d, s%d, 8192" % (p, p))); A(salu("s_addc_u32 s%d, s%d, 0" % (p + 1, p + 1)))
    if PROF: A(v_mov(vSTAMP, "0"))
    stamp()
    bars = [(0, 0), (0, 1), (0, 2)]
    bars += [(k, 13 if k == 5 else (59 if k == LASTBAR else min(2 * k + 2, 59))) for k in range(1, LASTBAR + 1)]
    pos = 32
    pfq = [(n, p) for n in L2PF for p in range(2)]
    vXG = 247
    log = []
    for bi, (k, needn) in enumerate(bars):
        consumed = 2 * max(k - 1, 0)
        def free(n):
            if n < 6: return True
            if n < 8: return bi >= 3
            if n < 24: return n - 8 < consumed
            if n == 24: return k >= 7
            return n - 9 < consumed
        nextneed = bars[bi + 1][1] if bi + 1 < len(bars) else 59
        if bi + 1 < len(bars) and bars[bi + 1][0] == LASTBAR: nextneed = min(59, 2 * LASTBAR + 2)
        bud = BUDO.get(k, BUD)
        npf = min(len(pfq), PFW.get(k, 0)) if bi >= 1 else 0
        bud -= 8 * npf
        wcap = WCAPS[bi] if bi < len(WCAPS) else 16 * RAMP
        if k == 3 and LPRIO != LPRIO0: A(salu("s_setprio %d" % LPRIO))
        todo = []
        p = pos
        while p < 960:
            n = p // 16
            if not free(n): break
            if E24 and n == 24:
                p += 1; continue
            ma = MUSTE if k < MUSTK else (99 if k < 9 else MUSTA)
            must = n <= needn or (n <= min(nextneed, needn + ma) and bi > 0)
            kv = halves[n][0] in "KV" and n not in L2PF
            if not must:
                if len(todo) >= wcap: break
                if kv and bud <= 0: break
            if kv: bud -= 1
            todo.append(p); p += 1
        if E24 and k == E24: todo += [24 * 16 + i for i in range(16)]
        for t, q in enumerate(todo): issue1(q // 16, q % 16, len(todo) - t)
        log.append("%d:%d/%d" % (k, sum(1 for q in todo if halves[q // 16][0] in "KV" and q // 16 not in L2PF) + 8 * npf, p // 16))
        pos = p
        assert pos >= 16 * (needn + 1), (k, pos, needn)
        if bi == XBI:
            A(vop("v_and_b32", 5, "7", lane)); A(vop("v_lshlrev_b32", 5, "4", 5)); A(vop("v_lshrrev_b32", 6, "3", lane))
            A(vop("v_mul_u32_u24", 6, "14336", 6)); A(vop("v_add_u32", vO, 5, 6))
            A(vop("v_lshlrev_b32", vG, "7", lane))
            A(vop("v_mul_u32_u24", vXG, "896", lane))
            A(salu("s_lshr_b32 %s, s2, 6" % S(sT2))); A(salu("s_mul_i32 %s, %s, %d" % (S(sT2), S(sT2), 56 * 896)))
            o += late
            if CODEPF and not CPF2: codepf("L_compute", True, 2)
            if CODEPF and CPF2:
                A(salu("s_getpc_b64 s[4:5]")); A(label("L_pcl"))
                A(salu("s_sub_u32 s4, s4, L_pcl-L_compute")); A(salu("s_subb_u32 s5, s5, 0"))
                A(salu("s_mov_b32 s6, L_exit1-L_compute")); A(salu("s_mov_b32 s7, 0x20000"))
                A(salu("s_lshr_b32 s8, s2, 3")); A(salu("s_lshl_b32 s8, s8, 7"))
                A(vop("v_lshlrev_b32", 248, "12", lane))
                extra(vmem("buffer_load_dword %s, v248, s[4:7], s8 offen" % R(vD), wr=[vD], rd=[248]))
            if LPAIRS:
                A(salu("s_buffer_load_dword %s, %s, 0x380" % (S(sTAG), S(sF, 4)))); A(wait(lgkm=0)); o += mktag()
        if CODEPF and CPF2 and k == 20:
            extra(vmem("buffer_load_dword %s, v248, s[4:7], s8 offen" % R(vD), wr=[vD], rd=[248]))
        if XPF:
            for r in XPFW.get(bi, []):
                extra(vmem("buffer_load_dword %s, %s, %s, %s offen offset:%d" % (R(vD), R(vXG), S(sX, 4), S(sT2), 128 * r), wr=[vD], rd=[vXG]))
        for _ in range(npf):
            n, part = pfq.pop(0); typ, idx = halves[n]
            A(salu("s_mov_b32 %s, %d" % (S(sT0), idx * 16384 + 8192 * part)))
            extra(vmem("buffer_load_dword %s, %s, %s, %s offen" % (R(vD), R(vG), S(sKd if typ == "K" else sVd, 4), S(sT0)), wr=[vD], rd=[vG]))
        landed(needn)
        A(barrier())
        stamp()
    assert pos == 960 and not pfq
    print("loader windows k:kvunits/nexthalf", " ".join(log))
    return o, stamp, nstamp

def loader_full(late):
    o, stamp, nstamp = loader_wave(late)
    A = o.append
    lane, vSTAMP = 240, 244
    assert not (ENDBAR and LPAIRS)
    if ENDBAR and PROF:
        for _ in range(29 - LASTBAR): A(barrier()); stamp()
    a1, a2, vld, vout, vpa, vpd = 224, 228, 241, 242, 243, 245
    accs = [232, 236]; pk = [246, 248]
    o += red_consts(lane, a1, a2, vld, vout, 250, 251)
    A(salu("s_mul_i32 %s, %s, 7" % (S(sT2), S(sH))))
    A(salu("s_lshr_b32 %s, %s, 4" % (S(sT0), S(sT2)))); A(salu("s_add_u32 %s, %s, 6" % (S(sT1), S(sT2)))); A(salu("s_lshr_b32 %s, %s, 4" % (S(sT1), S(sT1))))
    A(salu("s_sub_u32 %s, %s, %s" % (S(sT1), S(sT1), S(sT0)))); A(salu("s_lshl_b32 %s, %s, 3" % (S(sT1), S(sT1)))); A(salu("s_lshl_b32 %s, %s, 7" % (S(sT0), S(sT0))))
    A(vop("v_and_b32", 250, "16", lane)); A(vop("v_mul_lo_u32", 250, 250, S(sT1)))
    A(vop("v_and_b32", vpa, "15", lane)); A(vop("v_lshl_add_u32", vpa, vpa, "10", 250)); A(vadd_s(vpa, sT0))
    ob = [4 + 2, 7, 8, 9, 10, 11, 12]
    for c in range(7):
        A(salu("s_add_u32 %s, %s, %d" % (S(sT3), S(sT2), c))); o += out_base(ob[c], sT3, sT0)
    A(salu("s_lshl_b32 %s, %s, 8" % (S(sT2), S(sT2))))
    for grp in ([] if NORED else LPAIRS):
        o += poll(vpa, vpd, grp[-1] + 1)
        stamp()
        offs = [13, 14, 15, 16, 17, 18, 19, 20]
        for k, j in enumerate(grp):
            for i in range(4): A(salu("s_add_u32 %s, %s, %d" % (S(offs[4 * k + i]), S(sT2), j * STG + 4 * i * PART)))
        per = 4 * len(grp)
        for c in range(7):
            for t in range(per):
                b = (c * per + t) * 4
                A(vmem("buffer_load_dwordx4 %s, %s, %s, %s offen offset:%d sc1" % (R(b, 4), R(vld), S(sP, 4), S(offs[t]), 256 * c), wr=rr(b, 4), rd=[vld]))
        for c in range(7):
            acc = accs[c & 1]; p = pk[c & 1]
            A(wait(vm=(6 - c) * per + c))
            for t in range(per): A(mfma16(acc, a2 if t >= 4 else a1, (c * per + t) * 4, acc if t else None))
            A(v_cvtpk(p, acc, acc + 1)); A(v_cvtpk(p + 1, acc + 2, acc + 3))
            A(salu("s_add_u32 %s, %s, %d" % (S(sOFF), S(ob[c]), 128 * grp[0])))
            if len(grp) == 1: A(salu("s_mov_b32 exec_hi, 0"))
            A(vmem("buffer_store_dwordx2 %s, %s, %s, %s offen" % (R(p, 2), R(vout), S(sOUT, 4), S(sOFF)), rd=[p, p + 1, vout], store=True))
            if len(grp) == 1: A(salu("s_mov_b64 exec, -1")); A(nop(4))
        stamp()
    if PROF:
        A(barrier()); stamp()
        A(salu("s_memrealtime s[80:81]")); A(wait(lgkm=0))
        A(salu("s_sub_u32 s80, s80, s82"))
        A(valu("v_writelane_b32 %s, s80, 62" % R(vSTAMP), wr=[vSTAMP]))
        A(valu("v_writelane_b32 %s, s84, 63" % R(vSTAMP), wr=[vSTAMP]))
        A(valu("v_writelane_b32 %s, s82, 60" % R(vSTAMP), wr=[vSTAMP]))
        A(vop("v_lshlrev_b32", 4, "2", lane))
        A(salu("s_lshl_b32 s80, s2, 8"))
        A(vmem("buffer_store_dword %s, v4, s[76:79], s80 offen" % R(vSTAMP), rd=[vSTAMP, 4], store=True))
        A(wait(vm=0))
    A(salu("s_endpgm"))
    return pad_hazards(o)

def srd(d, lo, hi, off_s, size):
    o = [salu("s_add_u32 %s, %s, %s" % (S(d), S(lo), S(off_s))), salu("s_addc_u32 %s, %s, 0" % (S(d + 1), S(hi)))]
    if size is None: return o
    o.append(salu("s_mov_b32 %s, %s" % (S(d + 2), size if isinstance(size, str) else "0x%x" % size)))
    o.append(salu("s_mov_b32 %s, 0x20000" % S(d + 3)))
    return o

def k1():
    o = []; A = o.append
    A(salu("s_load_dwordx16 s[4:19], s[0:1], 0"))
    A(salu("s_load_dwordx8 s[60:67], s[0:1], 64"))
    A(salu("s_load_dwordx2 s[24:25], s[0:1], 96"))
    A(salu("s_cmp_ge_u32 s2, 256")); A(salu("s_cbranch_scc1 L_exit1"))
    if PROF:
        A(salu("s_memrealtime s[82:83]")); A(salu("s_memtime s[84:85]"))
    A(vop("v_lshrrev_b32", 2, "6", 0)); A(vop("v_and_b32", 1, "63", 0))
    A(salu("s_and_b32 s26, s2, 3")); A(salu("s_lshl_b32 s26, s26, 2")); A(salu("s_lshr_b32 s27, s2, 6")); A(salu("s_add_u32 s26, s26, s27"))
    A(valu("v_readfirstlane_b32 %s, v2" % S(sWID), rd=[2], swr=[sWID]))
    A(salu("s_lshr_b32 s27, s2, 3")); A(salu("s_and_b32 s27, s27, 7"))
    A(salu("s_lshr_b32 s28, s2, 2")); A(salu("s_and_b32 s28, s28, 1"))
    A(salu("s_mul_i32 s30, s27, 200704"))
    A(salu("s_lshl_b32 s32, s26, 9"))
    A(salu("s_sub_u32 %s, %d, s32" % (S(sW + 2), 448 * 8192))); A(salu("s_mov_b32 %s, 0x20000" % S(sW + 3)))
    A(salu("s_mov_b32 %s, 200704" % S(sX + 2))); A(salu("s_mov_b32 %s, 0x20000" % S(sX + 3)))
    A(vop("v_and_b32", 3, "31", 1)); A(vop("v_lshlrev_b32", 3, "4", 3)); A(vop("v_lshrrev_b32", 4, "5", 1))
    A(vop("v_lshl_add_u32", 242, 4, "15", 3)); A(vop("v_lshl_add_u32", 241, 4, "13", 3))
    A(vop("v_lshrrev_b32", 5, "2", 1)); A(vop("v_and_b32", 6, "3", 1))
    A(salu("s_lshl_b32 %s, %s, 5" % (S(sT0), S(sWID))))
    if X128:
        A(vop("v_lshrrev_b32", 8, "3", 1)); A(vop("v_add_u32", 4, S(sT0), 8)); A(vop("v_mul_u32_u24", 4, "896", 4))
        A(vop("v_lshrrev_b32", 7, "4", 1)); A(vop("v_xor_b32", 7, 7, 1)); A(vop("v_and_b32", 7, "7", 7))
        A(vop("v_lshl_add_u32", vXO, 7, "4", 4))
        A(vop("v_xor_b32", 251, "64", vXO)); A(vop("v_add_u32", 251, "7168", 251))
    else:
        A(vop("v_add_u32", 4, S(sT0), 5)); A(vop("v_mul_u32_u24", 4, "896", 4))
        A(vop("v_lshrrev_b32", 7, "4", 1)); A(vop("v_sub_u32", 7, "0", 7)); A(vop("v_xor_b32", 7, 7, 6)); A(vop("v_and_b32", 7, "3", 7))
        A(vop("v_lshl_add_u32", vXO, 7, "4", 4))
    A(salu("s_movk_i32 %s, 14336" % S(sT1)))
    A(salu("s_lshl_b32 %s, %s, 12" % (S(sXB), S(sWID))))
    A(salu("s_lshr_b32 %s, %s, 1" % (S(sOFF), S(sWID)))); A(salu("s_lshl_b32 %s, %s, 16" % (S(sOFF), S(sOFF))))
    A(salu("s_and_b32 s23, %s, 1" % S(sWID))); A(salu("s_lshl_b32 s23, s23, 14")); A(salu("s_add_u32 %s, %s, s23" % (S(sOFF), S(sOFF))))
    A(salu("s_mul_i32 s23, %s, %d" % (S(sWID), 2 * ISTR))); A(salu("s_mov_b32 m0, s23"))
    A(salu("s_lshl_b32 s29, s27, 4")); A(salu("s_add_u32 s29, s29, s26"))
    A(salu("s_lshl_b32 s31, s29, 18"))
    A(salu("s_mul_i32 s33, s26, 229376"))
    A(salu("s_lshl_b32 s34, s28, 3")); A(salu("s_add_u32 s34, s34, s27"))
    A(salu("s_lshl_b32 s20, s34, 14")); A(salu("s_add_u32 s20, s20, 0x%x" % FLAG_OFF))
    A(salu("s_mul_i32 s34, s34, %d" % (16 * PART)))
    A(salu("s_mul_i32 %s, s26, %d" % (S(sPB), PART)))
    A(salu("s_mul_i32 s21, s27, %d" % (224 * 1792))); A(salu("s_mul_i32 s22, s28, 896")); A(salu("s_add_u32 s21, s21, s22"))
    A(salu("s_sub_u32 s22, %d, s21" % (8 * 224 * 1792)))
    A(salu("s_cmp_eq_u32 s28, 0"))
    A(wait(lgkm=0))
    for d, b in ((10, 60), (4, 14), (6, 16), (8, 18), (12, 62)): A(salu("s_cselect_b64 %s, %s, %s" % (S(d, 2), S(d, 2), S(b, 2))))
    o += srd(sW, 10, 11, 32, None)
    o += srd(sX, 4, 5, 30, None)
    for i in range(2):
        if i: A(salu("s_addk_i32 m0, %d" % ISTR)); A(salu("s_addk_i32 %s, 8192" % S(sOFF)))
        A(vmem("buffer_load_dwordx4 v242, %s, %s offen lds" % (S(sW, 4), S(sOFF)), rd=[242]))
    late = srd(sKd, 6, 7, 31, 262144) + srd(sVd, 8, 9, 31, 262144) + srd(sO, 12, 13, 33, 229376)
    late += srd(sP, 24, 25, 34, 16 * PART) + srd(sF, 24, 25, 20, 16384) + srd(sOUT, 64, 65, 21, "s22")
    if PROF: late += [salu("s_mov_b32 s80, 0x%x" % PROF_OFF)] + srd(76, 24, 25, 80, 65536)
    A(salu("s_cmp_eq_u32 %s, 7" % S(sWID))); A(salu("s_cbranch_scc1 L_loader"))
    o = pad_hazards(o)
    o += compute_wave(late) + loader_full(late)
    o += [label("L_exit1"), salu("s_endpgm")]
    return o

def kd(name, vg, sg):
    return """.amdhsa_kernel %s
  .amdhsa_next_free_vgpr %d
  .amdhsa_next_free_sgpr %d
  .amdhsa_accum_offset %d
  .amdhsa_group_segment_fixed_size 0
  .amdhsa_kernarg_size 104
  .amdhsa_user_sgpr_count 2
  .amdhsa_user_sgpr_kernarg_segment_ptr 1
  .amdhsa_system_sgpr_workgroup_id_x 1
.end_amdhsa_kernel""" % (name, vg, sg, (vg + 3) // 4 * 4)

K1 = NAME + "_kernel"
src = []
src.append("; @launch grid=(256,1,1) block=(512,1,1) lds=%d" % LDS_BYTES)
src.append('.amdgcn_target "amdgcn-amd-amdhsa--gfx950"\n.text')
src.append(".globl %s\n.p2align 8\n.type %s,@function\n%s:" % (K1, K1, K1))
src.append(text(k1()))
src.append('.section .rodata,"a"\n.p2align 6')
src.append(kd(K1, 256, 100))
open(OUT, "w").write("\n".join(src) + "\n")
print("wrote", OUT)
```

```python
import sys, math, struct
from asmlib import *

NAME = "concat_heads__mha_block_cached__gqa_block_cached__near_ridge"
def opt(name, default):
    for a in sys.argv:
        if a.startswith("--%s=" % name): return a.split("=", 1)[1]
    return default
DBG = "--dbg" in sys.argv
PROF = "--prof" in sys.argv or DBG
KVFLAG = opt("kv", "_nt").replace("_", " ")
RAMP = int(opt("ramp", "3"))
XSLOT = int(opt("xslot", "2")); XSLOT0 = int(opt("xslot0", "8"))
STGAP = int(opt("stgap", "1"))
PUB = opt("pub", "late")
PUBSLOT = int(opt("pubslot", "8"))
LPAIRS = [tuple(int(c) for c in p) for p in opt("lpairs", "").split(",") if p]
CBATCH = [tuple(int(c) for c in p) for p in opt("cbatch", "0123,456").split(",")]
PUBS = sorted(set([p[-1] for p in LPAIRS] + [p[-1] for p in CBATCH]) - {6})
THROT = int(opt("throt", "0"))
ENDBAR = int(opt("endbar", "1"))
WOPF = int(opt("wopf", "0"))
CODEPF = int(opt("codepf", "1"))
FAST0 = int(opt("fast0", "1"))
KLATE = int(opt("klate", "1"))
SLEEP = int(opt("sleep", "1"))
NORED = "--nored" in sys.argv
PUB1 = int(opt("pub1", "3"))
WARMX = int(opt("warmx", "0")); WARMW = int(opt("warmw", "0"))
STOCK = [int(x) for x in opt("stock", "").split(",") if x]
STOCKW = [int(x) for x in opt("stockw", "2,3,4").split(",") if x]
def dct(name, default): return {int(x.split(":")[0]): int(x.split(":")[1]) for x in opt(name, default).split(",") if x}
BUD = int(opt("bud", "28")); BUDO = dct("budo", "5:28,6:28,7:30,8:42")
L2PF = [int(x) for x in opt("l2pf", "").split(",") if x]
PFW = dct("pfw", "1:2,2:2,3:2,4:2")
XPF = int(opt("xpf", "0"))
OLOOP = int(opt("oloop", "1"))
CPF2 = int(opt("cpf2", "1"))
ST0 = "--st0" in sys.argv
def st0(i): return [salu("s_memrealtime s[%d:%d]" % (100 - 100 + 6 + 2 * i, 7 + 2 * i))] if ST0 else []
W0CAP = int(opt("w0cap", "1"))
X128 = int(opt("x128", "1"))
vBP1 = 255
MUSTE = int(opt("muste", "0")); MUSTK = int(opt("mustk", "3"))
WFLAG = opt("wf", "").replace("_", " "); OFLAG = opt("of", "").replace("_", " "); PFLAG = opt("pff", "").replace("_", " ")
PFSTR = int(opt("pfstr", "128"))
SKIPWO = int(opt("skipwo", "99"))
TCW = int(opt("tcw", "1"))
NH = int(opt("nh", "16"))
RING = int(opt("ring", "3"))
PFL = dct("pfl", "22:2,23:3,24:2,25:2,26:2")
WOCAP = dct("wocap", "22:40,23:40,24:48")
FORCE = opt("force", "")
MODEADDR = 160000
sMODE = 91
XBI = int(opt("xbi", "1"))
BBS = int(opt("bbs", "20"))
LPRIO = int(opt("lprio", "3")); LPRIO0 = int(opt("lprio0", "0"))
WCAPS = [int(x) for x in opt("wcaps", "16,16,16,16,36,40").split(",")]
OCV = int(opt("ocv", "4"))
MUSTA = int(opt("musta", "1"))
E24 = int(opt("e24", "8"))
XPFW = {0: [2], 1: [3], 2: [4], 3: [5], 4: [6]}
TAILV = int(opt("tailv", "2"))
STFLAG = opt("st", "_sc1").replace("_", " ")
OUT = [a for a in sys.argv[1:] if not a.startswith("--")]
OUT = OUT[0] if OUT else "cdna_kernels/%s.s" % NAME

SLOT = 16896; NSLOT = 9; ISTR = 1056
LDS_BYTES = 163840
PART = 200704; STG = 28672
FLAG_OFF = 56 << 20
PROF_OFF = 64 << 20
CSCALE = math.log2(math.e) / 16.0
THR = 65536.0
SPIN = 400000
def f2u(x): return struct.unpack("<I", struct.pack("<f", x))[0]

def ACC(qt, t): return 8 * t + 4 * qt
def OACC(s, qt, tau): return 32 * s + 8 * tau + 4 * qt
def QF(qt, u): return 128 + 32 * qt + 4 * u
def SR(qt, z): return 192 + 8 * qt + 4 * z
def SR0(qt, z): return 8 * qt + 4 * z
def PR(qt): return 208 + 4 * qt
def NM(qt): return 216 + 4 * qt
FB0 = 224
BUFSEQ = [0,1,2,3,4,5, 0,1,2,3,4, 0,1,2,3,4]; DEPTH = 5
vK, vT = 248, 249
def L(qt): return 250 + qt
def T(qt): return 252 + qt
TMP0, TMP1 = 254, 255
vT1, vXO, vBP = 252, 253, 254
vST, vFO, vFV = 248, 252, 253
def XF(qt, s):
    if s < 10: return 128 + 8 * (s % 8) + 4 * qt
    return 192 + 8 * (s - 10) + 4 * qt

sWID = 3
sH, sB, sBLK = 26, 27, 28
sX, sW, sKd, sVd, sO, sP, sF, sOUT = 36, 40, 44, 48, 52, 56, 92, 96
sC, sKT, sTHR, sKpos, sVpos, sDK, sDV, sPOS, sNEG, sCNT, sRET, sT0, sT1, sOFF, sXB = 60, 61, 62, 63, 64, 65, 66, 67, 68, 69, 70, 71, 72, 73, 74
sPB = 75
sFL, sOR = 86, 88
sTAG = 90
sT2, sT3 = 29, 30

halves = [("W", i) for i in range(14)] + [("K", 0), ("K", 1)]
for i in range(1, 15): halves += [("V", i - 1), ("K", i + 1)]
halves += [("V", 14), ("V", 15)] + [("O", i) for i in range(14)]
assert len(halves) == 60
def slot_idx(n): return n % 8 if n < 16 else (n - 16) % NSLOT
def slot_addr(n): return slot_idx(n) * SLOT
XPRIV = 8 * SLOT; X0ADDR = 6 * SLOT
LASTBAR = int(opt("lastbar", "28"))

class Half:
    def __init__(self, n, reads, mf, pre): self.n = n; self.reads = reads; self.mf = mf; self.pre = pre
def vadd_lit(reg, delta): return valu("v_add_u32 %s, 0x%x, %s" % (R(reg), delta & 0xffffffff, R(reg)), wr=[reg], rd=[reg])
def vadd_s(reg, s): return valu("v_add_u32 %s, %s, %s" % (R(reg), S(s), R(reg)), wr=[reg], rd=[reg])
def vop(op, d, *src):
    t = "%s %s, %s" % (op, R(d), ", ".join(R(x) if isinstance(x, int) else x for x in src))
    return valu(t, wr=[d], rd=[x for x in src if isinstance(x, int)])
def lane_id(d): return [vop("v_mbcnt_lo_u32_b32", d, "-1", "0"), vop("v_mbcnt_hi_u32_b32", d, "-1", d)]

def half_W(s, pre):
    def reads(f, b):
        a = vT1 if f & 1 else vT
        return [dsrtr(b, a, 32 * f), dsrtr(b + 2, a, 32 * f + 512)]
    def mf(f, b): return [mfma16(ACC(qt, f), b, XF(qt, s), None if s == 0 else ACC(qt, f)) for qt in range(2)]
    return Half(16, reads, mf, pre)
def half_W2(s, pre):
    assert slot_addr(s + 1) == slot_addr(s) + SLOT
    def reads(f, b):
        t, e = f >> 1, f & 1
        a = vT1 if t & 1 else vT
        return [dsrtr(b, a, e * SLOT + 32 * t), dsrtr(b + 2, a, e * SLOT + 32 * t + 512)]
    def mf(f, b):
        t, e = f >> 1, f & 1
        return [mfma16(ACC(qt, t), b, XF(qt, s + e), ACC(qt, t)) for qt in range(2)]
    return Half(32, reads, mf, pre)
def half_K(pre, first=False):
    sr = SR0 if first else SR
    def reads(f, b): return [dsr128(b, vK, 512 * (f & 1) + 64 * (f >> 1))]
    def mf(f, b):
        u, z = f >> 1, f & 1
        return [mfma16(sr(qt, z), b, QF(qt, u), (None if first else NM(qt)) if u == 0 else sr(qt, z)) for qt in range(2)]
    return Half(16, reads, mf, pre)
def half_V(pre, first=False):
    def reads(f, b): return [dsrtr(b, vT, 32 * f), dsrtr(b + 2, vT, 32 * f + 512)]
    def mf(f, b): return [mfma16(ACC(qt, f), b, PR(qt), None if first else ACC(qt, f)) for qt in range(2)]
    return Half(16, reads, mf, pre)
def half_O(hh, aset, pre):
    def reads(f, b):
        ks, tau = f >> 2, f & 3
        return [dsrtr(b, vT, 256 * ks + 32 * tau), dsrtr(b + 2, vT, 256 * ks + 128 + 32 * tau)]
    def mf(f, b):
        ks, tau = f >> 2, f & 3
        u = 4 * hh + ks
        return [mfma16(OACC(aset, qt, tau), b, QF(qt, u), None if u == 0 else OACC(aset, qt, tau)) for qt in range(2)]
    return Half(16, reads, mf, pre)

class Stream:
    def __init__(self): self.o = []; self.q = []; self.pend = []
    def buf(self, f): return FB0 + 4 * BUFSEQ[f % 16]
    def lds(self, ins, key): self.o.append(ins); self.q.append(key)
    def first_read(self, h, f):
        rs = h.reads(f, self.buf(f)); key = (id(h), f)
        if KLATE and len(rs) == 1:
            self.pend = [(rs[0], key)]
            return (h.pre if f == 0 else []), []
        self.pend = [(r, key) for r in rs[1:]]
        return (h.pre if f == 0 else []), [(rs[0], key)]
    def preload(self, h):
        for f in range(DEPTH):
            for r, k in self.pend: self.lds(r, k)
            pre, rs = self.first_read(h, f)
            self.o += pre
            for r, k in rs: self.lds(r, k)
    def rekey(self, hold, hnew):
        f = lambda k: (id(hnew), k[1]) if k[0] == id(hold) else k
        self.q = [f(k) for k in self.q]; self.pend = [(r, f(k)) for r, k in self.pend]
    def waitfor(self, keys):
        idx = [i for i, k in enumerate(self.q) if k in keys]
        if idx:
            last = max(idx); n = len(self.q) - 1 - last
            assert n <= 15
            self.o.append(wait(lgkm=n)); self.q = self.q[last + 1:]
    def run(self, h, nxt, fill=None, head=None, post=None, ldsx=None, needs=None):
        fill = fill or {}; head = head or {}; post = post or {}; ldsx = ldsx or {}; needs = needs or {}
        for d in (fill, head, post, ldsx): assert all(0 <= k < 2 * h.n for k in d), d.keys()
        for f in range(h.n):
            ms = h.mf(f, self.buf(f))
            for k, m in enumerate(ms):
                sl = 2 * f + k
                self.o += head.get(sl, [])
                if k == 0:
                    assert not any(kk == (id(h), f) for _, kk in self.pend)
                    self.waitfor([(id(h), f)] + needs.get(f, []))
                self.o.append(m)
                pre, rs = [], []
                if k == 0:
                    rs = self.pend; self.pend = []
                else:
                    g = f + DEPTH
                    if g < h.n: pre, rs = self.first_read(h, g)
                    elif nxt is not None: pre, rs = self.first_read(nxt, g - h.n)
                self.o += fill.get(sl, []) + pre
                for r, kk in rs: self.lds(r, kk)
                for r, kk in ldsx.get(sl, []): self.lds(r, kk)
                self.o += post.get(sl, [])

def cost(op):
    if op.kind == "vst": return 2 if STGAP else 0
    return 2 if op.kind in ("trans", "perm") else (1 if op.kind == "valu" else 0)
def pack(ops, lo, d=None, cap=2):
    d = d if d is not None else {}
    s = lo
    for op in ops:
        while sum(cost(x) for x in d.get(s, [])) + cost(op) > cap: s += 1
        d.setdefault(s, []).append(op)
    return d, s
def split(d, n): return {k: v for k, v in d.items() if k < n}, {k - n: v for k, v in d.items() if k >= n}
def flat(d):
    o = []
    for k in sorted(d): o += d[k]
    return o

def sm_ops(sr=SR):
    ops = []
    def s(qt, j): return sr(qt, 0) + j
    for j in range(0, 9):
        if j < 8:
            for qt in range(2): ops.append(v_exp(s(qt, j), s(qt, j)))
        if j >= 2:
            for qt in range(2):
                ops.append(v_add(T(qt), s(qt, 0), s(qt, 1)) if j == 2 else v_add(T(qt), T(qt), s(qt, j - 1)))
    return ops
def check_ops():
    return [v_max(TMP0, T(0), T(1)), valu("v_cmp_nge_f32 vcc, %s, %s" % (S(sTHR), R(TMP0)), rd=[TMP0], swr=["vcc"])]
def pcvt(qt, z, sr=SR): return [v_cvtpk(PR(qt) + 2 * z, sr(qt, z), sr(qt, z) + 1), v_cvtpk(PR(qt) + 2 * z + 1, sr(qt, z) + 2, sr(qt, z) + 3)]
def ladd(): return [v_add(L(qt), L(qt), T(qt)) for qt in range(2)]
def rowreduce(reg, tmp, op):
    return [v_mov(tmp, R(reg), [reg]), v_swap16(reg, tmp), op(reg, reg, tmp),
            v_mov(tmp, R(reg), [reg]), v_swap32(reg, tmp), op(reg, reg, tmp)]
def qk_head():
    head = {0: pcvt(0, 0)}
    fill = {0: pcvt(1, 0), 1: pcvt(0, 1), 2: pcvt(1, 1), 3: ladd()}
    return head, fill

def red_consts(lane, a1, a2, vld, vout, t0, t1):
    o = []
    o.append(vop("v_and_b32", t0, "15", lane))
    for base, sh in ((a1, 0), (a2, 8)):
        if base is None: continue
        for r in range(4):
            o.append(vop("v_mov_b32", base + r, "0"))
            o.append(valu("v_cmp_eq_u32 vcc, %d, %s" % (2 * r + sh, R(t0)), rd=[t0], swr=["vcc"]))
            o.append(vop("v_mov_b32", t1, "0x3f80"))
            o.append(valu("v_cndmask_b32 %s, %s, %s, vcc" % (R(base + r), R(base + r), R(t1)), wr=[base + r], rd=[base + r, t1], srd=["vcc"]))
            o.append(valu("v_cmp_eq_u32 vcc, %d, %s" % (2 * r + 1 + sh, R(t0)), rd=[t0], swr=["vcc"]))
            o.append(vop("v_mov_b32", t1, "0x3f800000"))
            o.append(valu("v_cndmask_b32 %s, %s, %s, vcc" % (R(base + r), R(base + r), R(t1)), wr=[base + r], rd=[base + r, t1], srd=["vcc"]))
    o.append(vop("v_lshrrev_b32", t1, "4", lane))
    o.append(vop("v_mul_u32_u24", vld, "0x%x" % PART, t1))
    o.append(vop("v_lshl_add_u32", vld, t0, "4", vld))
    o.append(vop("v_mul_u32_u24", vout, "1792", t0))
    o.append(vop("v_and_b32", t0, "1", t1))
    o.append(vop("v_lshl_add_u32", vout, t0, "5", vout))
    o.append(vop("v_lshrrev_b32", t0, "1", t1))
    o.append(vop("v_lshl_add_u32", vout, t0, "7", vout))
    return o
def out_base(dst, ci, tmp):
    return [salu("s_lshr_b32 %s, %s, 3" % (S(dst), S(ci))), salu("s_mul_i32 %s, %s, %d" % (S(dst), S(dst), 16 * 1792)),
            salu("s_and_b32 %s, %s, 3" % (S(tmp), S(ci))), salu("s_lshl_b32 %s, %s, 3" % (S(tmp), S(tmp))),
            salu("s_add_u32 %s, %s, %s" % (S(dst), S(dst), S(tmp))),
            salu("s_and_b32 %s, %s, 4" % (S(tmp), S(ci))), salu("s_lshl_b32 %s, %s, 4" % (S(tmp), S(tmp))),
            salu("s_add_u32 %s, %s, %s" % (S(dst), S(dst), S(tmp)))]
def mktag(): return [salu("s_mul_i32 %s, %s, 0x9e3779b1" % (S(sTAG), S(sTAG))), salu("s_add_u32 %s, %s, 0x7f4a7c15" % (S(sTAG), S(sTAG)))]
_pl = [0]
def pollload(vaddr, vdat):
    return vmem("buffer_load_dword %s, %s, %s, 0 offen sc1" % (R(vdat), R(vaddr), S(sF, 4)), wr=[vdat], rd=[vaddr])
def poll(vaddr, vdat, need, pre=False):
    _pl[0] += 1; lb = "L_poll%d" % _pl[0]
    first = [salu("s_add_u32 %s, %s, %d" % (S(sT1), S(sTAG), need)), wait(vm=4), salu("s_branch %sc" % lb)] if pre else []
    return [salu("s_mov_b32 %s, %d" % (S(sCNT), SPIN))] + first + [label(lb),
            vmem("buffer_load_dword %s, %s, %s, 0 offen sc1" % (R(vdat), R(vaddr), S(sF, 4)), wr=[vdat], rd=[vaddr]),
            salu("s_sub_u32 %s, %s, 1" % (S(sCNT), S(sCNT))), salu("s_cbranch_scc1 L_exit1"),
            salu("s_add_u32 %s, %s, %d" % (S(sT1), S(sTAG), need)),
            wait(vm=0), label(lb + "c"),
            vop("v_subrev_u32", vdat, S(sT1), vdat),
            valu("v_cmp_lt_u32 vcc, %d, %s" % (7 - need, R(vdat)), rd=[vdat], swr=["vcc"]),
            nop(0), salu("s_cbranch_vccz %sx" % lb), salu("s_sleep %d" % SLEEP), salu("s_branch %s" % lb), label(lb + "x")]

def w1share():
    return [salu("s_add_u32 m0, s23, %d" % SLOT), salu("s_add_u32 %s, %s, %d" % (S(sOFF), S(sOFF), 31 * 8192)),
            vmem("buffer_load_dwordx4 v242, %s, %s offen lds" % (S(sW, 4), S(sOFF)), rd=[242]),
            salu("s_addk_i32 m0, %d" % ISTR), salu("s_addk_i32 %s, 8192" % S(sOFF)),
            vmem("buffer_load_dwordx4 v242, %s, %s offen lds" % (S(sW, 4), S(sOFF)), rd=[242])]
def compute_wave(late):
    st = Stream(); o = st.o; A = o.append
    o += [label("L_compute")]
    def xdma(r, base):
        ops = []
        if X128:
            for qt in range(2):
                for rh in range(2):
                    a = 251 if rh else vXO
                    ops.append([salu("s_add_u32 m0, %s, %d" % (S(sXB), base + (2 * qt + rh) * 1024 - 128 * r)),
                                vmem("buffer_load_dwordx4 %s, %s, %s offen offset:%d lds" % (R(a), S(sX, 4), S(sT1) if qt else "0", 128 * r), rd=[a])])
            return ops
        for e in range(2):
            for qt in range(2):
                sidx = 2 * r + e
                ops.append([salu("s_add_u32 m0, %s, %d" % (S(sXB), base + (2 * e + qt) * 1024 - 64 * sidx)),
                            vmem("buffer_load_dwordx4 %s, %s, %s offen offset:%d lds" % (R(vXO), S(sX, 4), S(sT1) if qt else "0", 64 * sidx), rd=[vXO])])
        return ops
    def xread(r, base):
        if X128: return [(dsr128(XF(qt, 2 * r + e), vBP1 if e else vBP, base - X0ADDR + qt * 2048), ("x", r)) for e in range(2) for qt in range(2)]
        return [(dsr128(XF(qt, 2 * r + e), vBP, base - X0ADDR + (2 * e + qt) * 1024), ("x", r)) for e in range(2) for qt in range(2)]
    x0 = xdma(0, X0ADDR)
    if X128: o += x0[0] + x0[1] + x0[2] + x0[3] + w1share()
    else: o += x0[0] + x0[1] + w1share() + x0[2] + x0[3]
    o += late + st0(0)
    NG = WARMX + WARMW
    if WARMX:
        A(salu("s_lshr_b32 %s, s2, 6" % S(sT0))); A(salu("s_mul_i32 %s, %s, 7" % (S(sT0), S(sT0)))); A(salu("s_add_u32 %s, %s, %s" % (S(sT0), S(sT0), S(sWID))))
        A(salu("s_mul_i32 %s, %s, %d" % (S(sT0), S(sT0), 56 * 128))); A(vop("v_lshlrev_b32", 8, "7", 1))
        A(vmem("buffer_load_dword v251, v8, %s, %s offen" % (S(sX, 4), S(sT0)), wr=[251], rd=[8]))
    if WARMW:
        A(salu("s_mul_i32 %s, %s, 44" % (S(sT0), S(sB)))); A(salu("s_lshl_b32 %s, %s, 4" % (S(sOFF), S(sWID)))); A(salu("s_add_u32 %s, %s, %s" % (S(sT0), S(sT0), S(sOFF))))
        A(salu("s_add_u32 %s, %s, 96" % (S(sT0), S(sT0)))); A(salu("s_cmp_lt_u32 %s, 3" % S(sWID))); A(salu("s_cselect_b32 %s, %s, 4096" % (S(sT0), S(sT0))))
        A(salu("s_lshl_b32 %s, %s, 13" % (S(sT0), S(sT0))))
        A(vop("v_lshlrev_b32", 10, "13", 5)); A(vop("v_lshl_add_u32", 10, 6, "7", 10))
        A(vmem("buffer_load_dword v255, v10, %s, %s offen" % (S(sW, 4), S(sT0)), wr=[255], rd=[10]))
    A(vop("v_mul_u32_u24", 5, str(ISTR), 5)); A(vop("v_lshl_add_u32", vT, 6, "3", 5)); A(vop("v_xor_b32", vT1, "16", vT))
    A(vop("v_and_b32", 2, "15", 1)); A(vop("v_lshrrev_b32", 3, "4", 1))
    if X128:
        A(vop("v_lshrrev_b32", 6, "1", 2)); A(vop("v_xor_b32", 6, 6, 3))
        A(vop("v_lshl_add_u32", 6, 2, "3", 6))
    else:
        A(vop("v_lshrrev_b32", 6, "2", 2)); A(vop("v_sub_u32", 6, "0", 6)); A(vop("v_xor_b32", 6, 6, 3)); A(vop("v_and_b32", 6, "3", 6))
        A(vop("v_lshl_add_u32", 6, 2, "2", 6))
    A(vop("v_lshlrev_b32", 6, "4", 6)); A(vop("v_add_u32", 6, S(sXB), 6))
    A(vop("v_add_u32", vBP, "0x%x" % X0ADDR, 6))
    if X128: A(vop("v_xor_b32", vBP1, "64", vBP))
    A(vop("v_lshlrev_b32", 6, "1", 3)); A(vop("v_mov_b32", 7, "0x9c")); A(vop("v_lshrrev_b32", 6, 6, 7)); A(vop("v_and_b32", 6, "3", 6))
    A(vop("v_mul_u32_u24", 5, str(ISTR), 2)); A(vop("v_lshl_add_u32", vK, 6, "4", 5)); A(vadd_lit(vK, slot_addr(14)))
    A(vop("v_mov_b32", L(0), "0x%x" % f2u(CSCALE)))
    A(salu("s_mov_b32 %s, 0x%x" % (S(sTHR), f2u(THR))))
    A(salu("s_mov_b32 %s, %d" % (S(sPOS), 2 * SLOT)))
    A(salu("s_mov_b32 %s, %d" % (S(sNEG), -7 * SLOT)))
    o += st0(1)
    A(wait(vm=2 if X128 else 4))
    o += st0(2)
    xr0 = xread(0, X0ADDR)
    for r, k in xr0[:2]: st.lds(r, ("x", -1))
    def wpre(n):
        if n == 0: return []
        d = slot_addr(n) - slot_addr(n - 1)
        return [vadd_lit(vT, d), vadd_lit(vT1, d)]
    HW = [half_W(s, wpre(s)) for s in range(12)] + [half_W2(12, wpre(12))]
    HK0 = half_K([], first=True)
    o += st0(3)
    A(barrier())
    o += st0(4)
    st.preload(HW[0])
    A(salu("s_buffer_load_dword %s, %s, 0x380" % (S(sTAG), S(sF, 4))))
    def qconv(u):
        grp = [(qt, e) for e in range(2) for qt in range(2)]
        mul = lambda qt, e: [vop("v_mul_f32", ACC(qt, 2 * u + e) + r, L(0), ACC(qt, 2 * u + e) + r) for r in range(4)]
        cvt = lambda qt, e: [v_cvtpk(QF(qt, u) + 2 * e + h, ACC(qt, 2 * u + e) + 2 * h, ACC(qt, 2 * u + e) + 2 * h + 1) for h in range(2)]
        swp = lambda qt: [v_swap16(QF(qt, u) + h, QF(qt, u) + 2 + h) for h in range(2)]
        return mul(0, 0) + mul(1, 0) + cvt(0, 0) + mul(0, 1) + cvt(1, 0) + mul(1, 1) + cvt(0, 1) + cvt(1, 1) + swp(0) + swp(1)
    for s in range(12):
        post = {}; ldsx = {}; head = {}; needs = {}
        if s == 0:
            needs[0] = [("x", -1)]
            for i, g in enumerate(xdma(1, XPRIV)):
                head.setdefault(2 * i + 1, []).append(g[0]); post.setdefault(2 * i + 1, []).append(g[1])
            head[BBS] = [wait(vm=4), barrier()]
            for i, e in enumerate(xr0[2:]): ldsx.setdefault(BBS + 2 * i, []).append(e)
            needs[15] = [("x", 0)]
        if s & 1:
            r = s // 2 + 1
            st0_ = XSLOT0 if s == 1 else XSLOT
            head[st0_] = (st0(5) if s == 3 else []) + [wait(vm=0)] + (st0(6) if s == 3 else [])
            for i, e in enumerate(xread(r, XPRIV)): ldsx.setdefault(st0_ + 2 * i, []).append(e)
            fd = (st0_ + 6) // 2 + 4
            assert fd + 4 <= 16
            needs[fd] = [("x", r)]
            if r + 1 < 7:
                for i, g in enumerate(xdma(r + 1, XPRIV)):
                    head.setdefault(2 * fd + 2 * i + 1, []).append(g[0]); post.setdefault(2 * fd + 2 * i + 1, []).append(g[1])
        st.run(HW[s], HW[s + 1], None, head, post, ldsx, needs)
        if s == 3: o += st0(7)
        if (s & 1) or (s == 0 and FAST0): A(barrier())
    allc = [(u, op) for u in range(8) for op in qconv(u)]
    fill = {}; i = 0
    for sl in range(64):
        while i < len(allc) and sl >= 8 * allc[i][0] + 11 and sum(cost(x) for x in fill.get(sl, [])) + cost(allc[i][1]) <= 2:
            fill.setdefault(sl, []).append(allc[i][1]); i += 1
    st.run(HW[12], HK0, fill)
    rest = allc[i:]
    def try_take(n):
        d = {}; sl = 0
        for u, op in rest[len(rest) - n:]:
            while sum(cost(x) for x in d.get(sl, [])) + cost(op) > 2: sl += 1
            if sl >= 4 * u - 2: return None
            d.setdefault(sl, []).append(op)
        return d
    take = max(n for n in range(len(rest) + 1) if try_take(n) is not None)
    fillK = try_take(take)
    blk = [op for _, op in rest[:len(rest) - take]]
    A(barrier())
    o += blk
    A(wait(lgkm=0)); st.q = []
    HK1 = half_K([vadd_lit(vK, slot_addr(15) - slot_addr(14))])
    post = {27: [salu("s_mov_b32 %s, %d" % (S(sKpos), slot_addr(17))), salu("s_mov_b32 %s, %d" % (S(sVpos), slot_addr(16)))],
            28: [salu("s_mov_b32 %s, 13" % S(sCNT)), salu("s_mov_b32 %s, 0" % S(sRET))], 29: [salu("s_mov_b32 %s, 16384" % S(sKT))], 30: mktag()}
    st.run(HK0, HK1, fillK, None, post)
    ma = []; mb = []
    for qt, lst in ((0, ma), (1, mb)):
        s0 = SR0(qt, 0); m = NM(qt)
        lst += [v_max3(m, s0, s0 + 1, s0 + 2), v_max3(m, m, s0 + 3, s0 + 4), v_max3(m, m, s0 + 5, s0 + 6), v_max(m, m, s0 + 7)]
        lst += rowreduce(m, TMP0 + qt, v_max)
        lst += [vop("v_sub_f32", m, "0", m)] + [v_mov(m + j, R(m), [m]) for j in range(1, 4)]
    for a, b in zip(ma, mb): o += [a, b]
    adds = [v_add(SR0(qt, 0) + j, SR0(qt, 0) + j, NM(qt)) for j in range(8) for qt in range(2)]
    sm0 = sm_ops(SR0)
    ops = adds[:4]; ai = 4
    for op in sm0:
        ops.append(op)
        if op.kind == "trans" and (len([x for x in ops if x.kind == "trans"]) % 2 == 0) and ai < 16:
            ops += adds[ai:ai + 2]; ai += 2
    ops += pcvt(0, 0, SR0) + pcvt(1, 0, SR0) + pcvt(0, 1, SR0) + pcvt(1, 1, SR0) + [v_mov(L(qt), R(T(qt)), [T(qt)]) for qt in range(2)]
    fill, nx = pack(ops, 0)
    fill, over = split(fill, 32)
    HVn = half_V([vadd_lit(vT, slot_addr(16) - slot_addr(12))])
    st.run(HK1, HVn, fill)
    o += flat(over)
    print("conv: woven W", i, "block", len(blk), "woven K", take, "sm0 overflow", len(flat(over)))
    pre_loop = list(o)

    def pv_fill():
        d, n = pack(sm_ops() + check_ops(), 0)
        assert n < 31
        return d
    def slotcalc():
        return [salu("s_cmp_gt_u32 %s, %d" % (S(sKpos), 6 * SLOT)), salu("s_cselect_b32 %s, %s, %s" % (S(sDK), S(sNEG), S(sPOS))),
                salu("s_add_u32 %s, %s, %s" % (S(sKpos), S(sKpos), S(sDK))),
                salu("s_cmp_gt_u32 %s, %d" % (S(sVpos), 6 * SLOT)), salu("s_cselect_b32 %s, %s, %s" % (S(sDV), S(sNEG), S(sPOS))),
                salu("s_add_u32 %s, %s, %s" % (S(sVpos), S(sVpos), S(sDV)))]
    HKn = half_K([])
    def pv_part(first, nxt, extra):
        HV = half_V([], first=first); st.rekey(HVn, HV)
        st.o.append(barrier())
        post = {}
        for i, x in enumerate(extra): post.setdefault(2 * i, []).append(x)
        st.run(HV, nxt, pv_fill(), None, post)
    def qk_part(extra):
        HK = half_K([]); st.rekey(HKn, HK)
        nxt = half_V([vadd_s(vT, sDV)])
        head, fill = qk_head()
        post = {}
        for i, x in enumerate(extra): post.setdefault(4 + 2 * i, []).append(x)
        st.run(HK, nxt, fill, head, post)
        st.rekey(nxt, HVn)
    ktadd = salu("s_add_u32 %s, %s, 16384" % (S(sKT), S(sKT)))
    st.o = []; fb = st.o
    nk = half_K([vadd_s(vK, sDK)])
    pv_part(True, nk, [salu("s_mov_b32 %s, %d" % (S(sDK), slot_addr(17) - slot_addr(15)))] + slotcalc()[3:] + [salu("s_mov_b64 %s, 0" % S(sFL, 2))]); st.rekey(nk, HKn)
    fb.append(salu("s_cbranch_vccnz L_rare"))
    q0 = (list(st.q), [k for _, k in st.pend])
    st.o = []; lb = st.o
    qk_part([ktadd])
    nk = half_K([vadd_s(vK, sDK)])
    pv_part(False, nk, slotcalc() + [salu("s_sub_u32 %s, %s, 1" % (S(sCNT), S(sCNT))), salu("s_cmp_eq_u32 %s, 0" % S(sCNT)),
                                     salu("s_cselect_b32 %s, 1, 0" % S(sFL)), salu("s_mov_b32 %s, %s" % (S(sRET), S(sFL)))]); st.rekey(nk, HKn)
    lb.append(salu("s_or_b64 %s, vcc, %s" % (S(sOR, 2), S(sFL, 2))))
    lb.append(salu("s_cbranch_scc0 L_loop"))
    assert (st.q, [k for _, k in st.pend]) == q0
    st.o = []; o2 = st.o; A = o2.append
    A(salu("s_cbranch_vccnz L_rare")); A(label("L_ret1"))
    pfo = []
    if WOPF:
        pfo += lane_id(TMP1) + [salu("s_mul_i32 %s, %s, 28672" % (S(sT0), S(sB))), salu("s_add_u32 %s, %s, %s" % (S(sT0), S(sT0), S(sXB))),
                vop("v_and_b32", TMP0, "32", TMP1), vop("v_lshlrev_b32", TMP0, "16", TMP0), vop("v_lshl_add_u32", TMP0, TMP1, "7", TMP0),
                vmem("buffer_load_dword %s, %s, %s, %s offen" % (R(vK), R(TMP0), S(sO, 4), S(sT0)), wr=[vK], rd=[TMP0])]
    if CODEPF and not CPF2:
        pfo += [salu("s_getpc_b64 s[4:5]"), label("L_pcc"), salu("s_mul_i32 %s, %s, 6144" % (S(sT0), S(sWID))),
                salu("s_mov_b32 s6, L_exit1-L_pcc"), salu("s_mov_b32 s7, 0x20000")] + lane_id(TMP1) + [vop("v_mul_u32_u24", TMP1, "96", TMP1),
                vmem("buffer_load_dword %s, %s, s[4:7], %s offen" % (R(vK), R(TMP1), S(sT0)), wr=[vK], rd=[TMP1])]
    qk_part([ktadd, salu("s_mov_b32 %s, 2" % S(sRET))])
    o2 += pfo
    def opre(n): return [vadd_lit(vT, slot_addr(n) - slot_addr(n - 1))]
    NSET = 2 if OLOOP else 4
    HO = [half_O(i & 1, (i >> 1) % NSET, opre(46 + i)) for i in range(14)]
    HV15 = half_V(opre(45))
    pv_part(False, HV15, [])
    A(salu("s_cbranch_vccnz L_rare")); A(label("L_ret2"))
    def oconv(u):
        ops = []
        for qt in range(2):
            for e in range(2):
                a = ACC(qt, 2 * u + e)
                for h in range(2): ops.append(v_cvtpk(QF(qt, u) + 2 * e + h, a + 2 * h, a + 2 * h + 1))
        return ops
    o2 += pcvt(0, 0) + pcvt(0, 1) + pcvt(1, 0) + pcvt(1, 1)
    r0 = rowreduce(L(0), TMP0, v_add); r1 = rowreduce(L(1), TMP1, v_add)
    lops = ladd() + [x for ab in zip(r0, r1) for x in ab]
    fill, nx = pack(lops, 0)
    for u in range(8): fill, nx = pack(oconv(u), max(nx, 4 * u + 7 if u < OCV else 32), fill)
    lop2 = [trans("v_rcp_f32 %s, %s" % (R(L(qt)), R(L(qt))), wr=[L(qt)], rd=[L(qt)]) for qt in range(2)]
    lop2 += lane_id(TMP0) + [wait(vm=0), vop("v_lshlrev_b32", vST, "4", TMP0),
             salu("s_add_u32 %s, %s, %s" % (S(sT0), S(sXB), S(sPB))), vadd_s(vST, sT0),
             salu("s_lshl_b32 %s, %s, 7" % (S(sT0), S(sWID))), salu("s_lshl_b32 %s, %s, 11" % (S(sT1), S(sH))), salu("s_add_u32 %s, %s, %s" % (S(sT0), S(sT0), S(sT1))),
             vop("v_and_b32", TMP1, "32", TMP0), vop("v_lshlrev_b32", TMP1, "12", TMP1), vop("v_lshl_add_u32", vFO, TMP0, "2", TMP1), vadd_s(vFO, sT0)]
    fill, nx = pack(lop2, nx, fill)
    fill, carry = split(fill, 32)
    st.run(HV15, HO[0], fill)
    def epi(aset, flag):
        ops = []
        for qt in range(2):
            for hf in range(2):
                dst = SR(qt, hf)
                for e in range(2):
                    a = OACC(aset, qt, 2 * hf + e)
                    for r in range(4): ops.append(v_mul(a + r, a + r, L(qt)))
                    for h in range(2): ops.append(v_cvtpk(dst + 2 * e + h, a + 2 * h, a + 2 * h + 1))
                ops.append(vmem("buffer_store_dwordx4 %s, %s, %s, %s offen offset:%d%s" % (R(dst, 4), R(vST), S(sP, 4), S(sOFF), 2048 * qt + 1024 * hf, flag),
                                rd=list(rr(dst, 4)) + [vST], store=True))
        return ops
    a1, vld, vout, vpa, vpd, lane = 208, 216, 217, 218, 219, 220
    tailc = lane_id(lane) + red_consts(lane, a1, None, vld, vout, 221, 222)
    tailc += [salu("s_mul_i32 %s, %s, 7" % (S(sT2), S(sH))), salu("s_add_u32 %s, %s, %s" % (S(sT2), S(sT2), S(sWID))),
              salu("s_lshr_b32 %s, %s, 4" % (S(sT0), S(sT2))), salu("s_lshl_b32 %s, %s, 7" % (S(sT0), S(sT0))),
              vop("v_and_b32", vpa, "15", lane), vop("v_lshlrev_b32", vpa, "11", vpa), vadd_s(vpa, sT0)]
    tailc += out_base(sT3, sT2, sT0) + [salu("s_lshl_b32 %s, %s, 8" % (S(sT2), S(sT2))),
              salu("s_add_u32 %s, %s, 7" % (S(sT1), S(sTAG))), vop("v_mov_b32", vFV, S(sT1))]
    A(barrier())
    st.run(HO[0], HO[1], carry, {24: [vop("v_mov_b32", 223, str(MODEADDR))]}, None,
           {26: [(I("ds_read_b32 v223, v223", "dsr", wr=[223], rd=[223]), ("mode", 0))]})
    init = [salu("s_mov_b32 %s, %d" % (S(sVpos), slot_addr(48))), salu("s_mov_b32 %s, %d" % (S(sPOS), SLOT)), salu("s_mov_b32 %s, %d" % (S(sNEG), -8 * SLOT)),
            salu("s_mov_b32 %s, 0" % S(sOFF)), salu("s_mov_b32 %s, 3" % S(sCNT)),
            valu("v_readfirstlane_b32 %s, v223" % S(sMODE), rd=[223], swr=[sMODE])]
    fillt, _ = pack(tailc, 0) if TCW else ({}, 0)
    post = {14 + 2 * i: [x] for i, x in enumerate(init)}
    post[30] = [salu("s_cmp_eq_u32 %s, 1" % S(sMODE))]
    st.run(HO[1], HO[2], fillt, None, post, None, {8: [("mode", 0)]})
    A(salu("s_cbranch_scc0 L_oloopR"))
    o2a = st.o
    q1 = (list(st.q), list(st.pend))
    tsn = [0]
    if ST0: tsn[0] = 8
    def tstamp():
        if not PROF or ST0: return []
        r = 6 + 2 * tsn[0]; tsn[0] += 1
        return [salu("s_memrealtime s[%d:%d]" % (r, r + 1))]
    def oloop(tagc, flag):
        st.o = []; olb = st.o; st.q = list(q1[0]); st.pend = list(q1[1])
        dyn = lambda: [vadd_s(vT, sDV)]
        LH = [half_O(0, 1, []), half_O(1, 1, dyn()), half_O(0, 0, dyn()), half_O(1, 0, dyn()), half_O(0, 1, dyn())]
        st.rekey(HO[2], LH[0])
        for i in range(4):
            if not (i & 1): olb.extend([wait(vm=0), barrier()])
            post = {0: [salu("s_cmp_eq_u32 %s, %d" % (S(sVpos), 8 * SLOT))], 2: [salu("s_cselect_b32 %s, %s, %s" % (S(sDV), S(sNEG), S(sPOS)))],
                    4: [salu("s_add_u32 %s, %s, %s" % (S(sVpos), S(sVpos), S(sDV)))]}
            fill = {}
            if not (i & 1): fill, _ = pack(epi(i >> 1, flag), 1)
            else:
                post[6] = [salu("s_add_u32 %s, %s, %d" % (S(sOFF), S(sOFF), STG))]; post[8] = [salu("s_cmp_eq_u32 %s, %d" % (S(sOFF), RING * STG))]
                post[10] = [salu("s_cselect_b32 %s, 0, %s" % (S(sOFF), S(sOFF)))]
            if i == 3:
                post[12] = [salu("s_sub_u32 %s, %s, 1" % (S(sCNT), S(sCNT)))]; post[14] = [salu("s_cmp_lg_u32 %s, 0" % S(sCNT))]
            st.run(LH[i], LH[i + 1], fill, None, post)
        olb.append(salu("s_cbranch_scc1 L_oloop" + tagc))
        st.rekey(LH[4], HO[2])
        assert (st.q, [k for _, k in st.pend]) == (q1[0], [k for _, k in q1[1]])
        n0 = tsn[0]
        fin = tstamp() + [wait(vm=0), barrier()] + tstamp() + epi(0, flag) + ([] if TCW else tailc) + [wait(vm=0)] + tstamp()
        fin += [vmem("buffer_store_dword %s, %s, %s, 0 offen%s" % (R(vFV), R(vFO), S(sF, 4), flag), rd=[vFV, vFO], store=True)]
        if tagc == "R": fin.append(salu("s_branch L_fin"))
        else: tsn[0] = n0
        return olb, fin
    olbL, finL = oloop("L", "")
    olbR, finR = oloop("R", " sc1")
    st.o = []; o2 = st.o; A = o2.append
    A(label("L_fin"))
    o2 += poll(vpa, vpd, 7) + tstamp()
    for i in range(4):
        A(salu("s_add_u32 %s, %s, %d" % (S(sOFF), S(sT2), (6 % RING) * STG + 4 * i * PART)))
        A(vmem("buffer_load_dwordx4 %s, %s, %s, %s offen sc1" % (R(4 * i, 4), R(vld), S(sP, 4), S(sOFF)), wr=rr(4 * i, 4), rd=[vld]))
    A(vop("v_mov_b32", 221, S(sTAG))); A(salu("s_lshl_b32 %s, %s, 7" % (S(sT0), S(sT2))))
    A(vmem("buffer_store_dword v221, off, %s, %s offset:896" % (S(sF, 4), S(sT0)), rd=[221], store=True))
    acc = 144
    for i in range(4):
        A(wait(vm=4 - i)); A(mfma16(acc, a1, 4 * i, acc if i else None))
    A(v_cvtpk(acc + 4, acc, acc + 1)); A(v_cvtpk(acc + 5, acc + 2, acc + 3))
    A(salu("s_mov_b32 exec_hi, 0"))
    A(vmem("buffer_store_dwordx2 %s, %s, %s, %s offen offset:768" % (R(acc + 4, 2), R(vout), S(sOUT, 4), S(sT3)), rd=[acc + 4, acc + 5, vout], store=True))
    if PROF:
        o2 += tstamp(); A(wait(vm=0)); o2 += tstamp(); A(wait(lgkm=0))
        A(salu("s_mov_b64 exec, -1")); A(v_mov(0, "0"))
        for i in range(tsn[0]): A(valu("v_writelane_b32 v0, s%d, %d" % (6 + 2 * i, i), wr=[0]))
        A(vop("v_lshlrev_b32", 1, "2", 220)); A(salu("s_lshl_b32 s80, s2, 3")); A(salu("s_add_u32 s80, s80, %s" % S(sWID))); A(salu("s_lshl_b32 s80, s80, 5"))
        A(salu("s_add_u32 s80, s80, 65536")); A(salu("s_mov_b32 s78, 0x30000")); A(salu("s_mov_b64 exec, 0xff"))
        A(vmem("buffer_store_dword v0, v1, s[76:79], s80 offen", rd=[0, 1], store=True))
        A(wait(vm=0)); A(barrier())
    A(salu("s_endpgm"))
    rp = [label("L_rare"), nop(15)]
    rp += lane_id(TMP0) + [vop("v_lshrrev_b32", TMP1, "4", TMP0), vop("v_lshlrev_b32", TMP1, "1", TMP1), v_mov(T(0), "0x9c"),
           vop("v_lshrrev_b32", TMP1, TMP1, T(0)), vop("v_and_b32", TMP1, "3", TMP1), vop("v_lshlrev_b32", TMP1, "4", TMP1),
           vop("v_and_b32", TMP0, "15", TMP0), vop("v_lshl_add_u32", TMP0, TMP0, "9", TMP1),
           salu("s_add_u32 %s, %s, 8192" % (S(sT0), S(sKT)))]
    for u in range(8):
        for z in range(2):
            rp.append(vmem("buffer_load_dwordx4 %s, %s, %s, %s offen offset:%d" % (R(PR(z), 4), R(TMP0), S(sKd, 4), S(sT0 if z else sKT), 64 * u), wr=rr(PR(z), 4), rd=[TMP0]))
        rp.append(wait(vm=0))
        for z in range(2):
            for qt in range(2): rp.append(mfma16(SR(qt, z), PR(z), QF(qt, u), NM(qt) if u == 0 else SR(qt, z)))
        rp.append(nop(7))
    rp.append(nop(15))
    for qt in range(2):
        s0 = SR(qt, 0); d = T(qt)
        rp += [v_max3(d, s0, s0 + 1, s0 + 2), v_max3(d, d, s0 + 3, s0 + 4), v_max3(d, d, s0 + 5, s0 + 6), v_max(d, d, s0 + 7)]
        rp += rowreduce(d, TMP0, v_max)
        rp.append(vop("v_max_f32", d, "0", d))
        for j in range(8): rp.append(v_sub(s0 + j, s0 + j, d))
        for j in range(4): rp.append(v_sub(NM(qt) + j, NM(qt) + j, d))
        rp.append(trans("v_exp_f32 %s, -%s" % (R(TMP1), R(d)), wr=[TMP1], rd=[d]))
        rp.append(v_mul(L(qt), L(qt), TMP1))
        for t in range(16):
            for r in range(4): rp.append(v_mul(ACC(qt, t) + r, ACC(qt, t) + r, TMP1))
    rp += sm_ops()
    rp += [nop(7), salu("s_cmp_eq_u32 %s, 0" % S(sRET)), salu("s_cbranch_scc1 L_loop"),
           salu("s_cmp_eq_u32 %s, 1" % S(sRET)), salu("s_cbranch_scc1 L_ret1"), salu("s_branch L_ret2")]
    pre_loop = pad_hazards(pre_loop)
    fb = pad_hazards(fb, prefix=pre_loop)
    lb = pad_hazards(lb, prefix=fb)
    lb = pad_hazards(lb, prefix=lb)
    assert not check_hazards(pre_loop + fb + lb + lb)
    o2a = pad_hazards(o2a, prefix=lb)
    def fix(olb, fin):
        olb = pad_hazards(olb, prefix=o2a); olb = pad_hazards(olb, prefix=olb)
        assert not check_hazards(o2a + olb + olb)
        return olb, pad_hazards(fin, prefix=olb)
    olbL, finL = fix(olbL, finL); olbR, finR = fix(olbR, finR)
    o2 = pad_hazards(o2, prefix=finL)
    assert not check_hazards(finR + o2)
    o2 = o2a + [directive(".p2align 6"), label("L_oloopL")] + olbL + finL + o2 + [label("L_oloopR")] + olbR + finR
    rp = pad_hazards(rp)
    return pre_loop + fb + [directive(".p2align 6"), label("L_loop")] + lb + [label("L_post")] + o2 + [label("L_postend")] + rp

def loader_wave(late):
    o = []; A = o.append
    lane, vKV, vW, vO, vSTAMP, vG, vD = 240, 241, 242, 243, 244, 245, 246
    A(label("L_loader"))
    o += w1share()
    if LPRIO0: A(salu("s_setprio %d" % LPRIO0))
    A(vop("v_mov_b32", lane, 1))
    issued = [0, 0, 1, 1]
    nstamp = [0]
    def stamp():
        if not PROF: return
        A(salu("s_memtime s[80:81]")); A(wait(lgkm=0))
        A(valu("v_writelane_b32 %s, s80, %d" % (R(vSTAMP), nstamp[0]), wr=[vSTAMP])); nstamp[0] += 1
    def room(n):
        nonlocal issued
        if len(issued) > 63 - n:
            A(wait(vm=63 - n)); issued = issued[-(63 - n):]
    cont = [None]
    def off_of(typ, idx, i):
        if typ == "W": return (idx * 32 + 8 * (i >> 2) + (i & 3)) * 8192
        if typ in "KV": return idx * 16384 + 512 * i
        return ((idx & 1) * 128 + i) * 896 + (idx >> 1) * 128
    def issue1(n, i, ahead):
        if len(issued) >= 63: room(min(8, ahead))
        typ, idx = halves[n]
        srd_, vo = {"W": (sW, vW), "K": (sKd, vKV), "V": (sVd, vKV), "O": (sO, vO)}[typ]
        if cont[0] == (n, i):
            A(salu("s_addk_i32 m0, %d" % ISTR))
            step = off_of(typ, idx, i) - off_of(typ, idx, i - 1)
            if step < 32768: A(salu("s_addk_i32 %s, %d" % (S(sOFF), step)))
            else: A(salu("s_add_u32 %s, %s, %d" % (S(sOFF), S(sOFF), step)))
        else:
            A(salu("s_mov_b32 m0, %d" % (slot_addr(n) + ISTR * i)))
            A(salu("s_mov_b32 %s, %d" % (S(sOFF), off_of(typ, idx, i))))
        cont[0] = (n, i + 1)
        A(vmem("buffer_load_dwordx4 %s, %s, %s offen%s lds" % (R(vo), S(srd_, 4), S(sOFF), KVFLAG if typ in "KV" else (WFLAG if typ == "W" else OFLAG)), rd=[vo]))
        issued.append(n)
    def landed(n):
        nonlocal issued
        idx = [i for i, k in enumerate(issued) if k <= n]
        if idx:
            cnt = len(issued) - 1 - max(idx)
            A(wait(vm=cnt)); issued = issued[max(idx) + 1:]
    def extra(ins):
        room(1); A(ins); issued.append(1000)
    def codepf(lo, neg, n):
        A(salu("s_getpc_b64 s[82:83]" if not PROF else "s_getpc_b64 s[4:5]"))
        p = 82 if not PROF else 4
        lbl = "L_pc%d" % len(o); A(label(lbl))
        A(salu("s_sub_u32 s%d, s%d, %s-L_compute" % (p, p, lbl))); A(salu("s_subb_u32 s%d, s%d, 0" % (p + 1, p + 1)))
        A(salu("s_add_u32 s%d, s%d, %s-L_compute" % (p, p, lo))); A(salu("s_addc_u32 s%d, s%d, 0" % (p + 1, p + 1)))
        for i in range(n):
            extra(vmem("global_load_dword %s, %s, s[%d:%d]" % (R(vD), R(vG), p, p + 1), wr=[vD], rd=[vG]))
            if i + 1 < n:
                A(salu("s_add_u32 s%d, s%d, 8192" % (p, p))); A(salu("s_addc_u32 s%d, s%d, 0" % (p + 1, p + 1)))
    if PROF: A(v_mov(vSTAMP, "0"))
    stamp()
    bars = [(0, 0), (0, 1), (0, 2)]
    bars += [(k, 13 if k == 5 else min(2 * k + 2, 59)) for k in range(1, 31)]
    a1, a2, vld, vo4, vpa, vpd, vf2o, vf2v, vid = 136, 140, 144, 145, 149, 150, 151, 152, 153
    sLB = 9
    npl = [0]
    def red_setup():
        oo = red_consts(lane, a1, a2, vld, 154, 155, 156)
        oo += [vop("v_and_b32", 155, "32", lane), vop("v_lshlrev_b32", 155, "2", 155), vop("v_sub_u32", 154, 154, 155),
               salu("s_mul_i32 %s, %s, 7" % (S(sT2), S(sH))), valu("v_cmp_le_u32 vcc, 32, %s" % R(lane), rd=[lane], swr=["vcc"])]
        for p in range(4):
            oo += [salu("s_add_u32 %s, %s, %d" % (S(sT3), S(sT2), 2 * p))] + out_base(13, sT3, sT0)
            if p < 3: oo += [salu("s_add_u32 %s, %s, %d" % (S(sT3), S(sT2), 2 * p + 1))] + out_base(14, sT3, sT0)
            else: oo += [salu("s_mov_b32 s14, 0x10000000")]
            oo += [vop("v_mov_b32", 155, "s13"), vop("v_mov_b32", 156, "s14"),
                   valu("v_cndmask_b32 v155, v155, v156, vcc", wr=[155], rd=[155, 156], srd=["vcc"]), vop("v_add_u32", vo4 + p, 154, 155)]
        for i in range(4): oo += [salu("s_mul_i32 %s, %s, 1792" % (S(sLB + i), S(sH))), salu("s_add_u32 %s, %s, %d" % (S(sLB + i), S(sLB + i), 4 * i * PART))]
        oo += [vop("v_add_u32", vpa, "128", vid),
               vop("v_and_b32", 155, "32", lane), vop("v_lshlrev_b32", 155, "12", 155), vop("v_lshl_add_u32", vf2o, lane, "2", 155),
               salu("s_lshl_b32 %s, %s, 11" % (S(sT0), S(sH))), salu("s_add_u32 %s, %s, 1152" % (S(sT0), S(sT0))), vadd_s(vf2o, sT0)]
        return oo
    def reduce_stage(j, progressive):
        A(salu("s_mov_b32 %s, %d" % (S(sT3), 128 * j)))
        for p in range(4):
            acc = 112 + 4 * p; pk = 128 + 2 * p; n = 0
            for c in (2 * p, 2 * p + 1):
                if c > 6: continue
                if progressive: A(wait(vm=4 * (6 - c) + p))
                for i in range(4):
                    A(mfma16(acc, a2 if c & 1 else a1, 16 * c + 4 * i, acc if n else None)); n += 1
            if progressive or p >= 1:
                q = p if progressive else p - 1
                A(v_cvtpk(128 + 2 * q, 112 + 4 * q, 113 + 4 * q)); A(v_cvtpk(129 + 2 * q, 114 + 4 * q, 115 + 4 * q))
                A(vmem("buffer_store_dwordx2 %s, %s, %s, %s offen" % (R(128 + 2 * q, 2), R(vo4 + q), S(sOUT, 4), S(sT3)), rd=[128 + 2 * q, 129 + 2 * q, vo4 + q], store=True))
        if not progressive:
            A(v_cvtpk(134, 124, 125)); A(v_cvtpk(135, 126, 127))
            A(vmem("buffer_store_dwordx2 v[134:135], %s, %s, %s offen" % (R(vo4 + 3), S(sOUT, 4), S(sT3)), rd=[134, 135, vo4 + 3], store=True))
    def handoff(t):
        nonlocal issued
        idx = [i for i, k_ in enumerate(issued) if k_ == 3000]
        if idx:
            A(wait(vm=len(issued) - 1 - max(idx))); issued = issued[max(idx) + 1:]
        room(6)
        A(salu("s_add_u32 %s, %s, %d" % (S(sT1), S(sTAG), t))); A(vop("v_mov_b32", vf2v, S(sT1)))
        A(salu("s_cmp_eq_u32 %s, 1" % S(sMODE))); A(salu("s_cbranch_scc1 L_f2l%d" % t))
        A(vmem("buffer_store_dword %s, %s, %s, 0 offen sc1" % (R(vf2v), R(vf2o), S(sF, 4)), rd=[vf2v, vf2o], store=True))
        A(salu("s_branch L_f2d%d" % t)); A(label("L_f2l%d" % t))
        A(vmem("buffer_store_dword %s, %s, %s, 0 offen" % (R(vf2v), R(vf2o), S(sF, 4)), rd=[vf2v, vf2o], store=True))
        A(label("L_f2d%d" % t))
        if t >= 3: reduce_stage(t - 3, False)
        o.extend(poll(vpa, vpd, t)); issued = []
        for i in range(4): A(salu("s_add_u32 %s, %s, %d" % (S(13 + i), S(sLB + i), ((t - 2) % RING) * STG)))
        for c in range(7):
            for i in range(4):
                A(vmem("buffer_load_dwordx4 %s, %s, %s, %s offen offset:%d sc1" % (R(16 * c + 4 * i, 4), R(vld), S(sP, 4), S(13 + i), 256 * c), wr=rr(16 * c + 4 * i, 4), rd=[vld]))
                issued.append(3000)
        cont[0] = None
    pos = 32
    pfq = [(n, p) for n in L2PF for p in range(2)]
    vXG = 247
    log = []
    for bi, (k, needn) in enumerate(bars):
        consumed = 2 * max(k - 1, 0)
        def free(n):
            if n < 6: return True
            if n < 8: return bi >= 3
            if n < 24: return n - 8 < consumed
            if n == 24: return k >= 7
            return n - 9 < consumed
        nextneed = bars[bi + 1][1] if bi + 1 < len(bars) else 59
        bud = BUDO.get(k, BUD)
        npf = min(len(pfq), PFW.get(k, 0)) if bi >= 1 else 0
        bud -= 8 * npf
        wcap = WCAPS[bi] if bi < len(WCAPS) else 16 * RAMP
        if k in WOCAP: wcap = WOCAP[k]
        if k >= 26: handoff(k - 24)
        if k == 3 and LPRIO != LPRIO0: A(salu("s_setprio %d" % LPRIO))
        todo = []
        p = pos
        while p < 960:
            n = p // 16
            if not free(n): break
            if E24 and n == 24:
                p += 1; continue
            ma = MUSTE if k < MUSTK else (99 if k < 9 else MUSTA)
            must = n <= needn or (n <= min(nextneed, needn + ma) and bi > 0)
            kv = halves[n][0] in "KV" and n not in L2PF
            if not must:
                if len(todo) >= wcap: break
                if kv and bud <= 0: break
            if kv: bud -= 1
            todo.append(p); p += 1
        if E24 and k == E24: todo += [24 * 16 + i for i in range(16)]
        todo = [q for q in todo if q // 16 < SKIPWO]
        for t, q in enumerate(todo): issue1(q // 16, q % 16, len(todo) - t)
        log.append("%d:%d/%d" % (k, sum(1 for q in todo if halves[q // 16][0] in "KV" and q // 16 not in L2PF) + 8 * npf, p // 16))
        pos = p
        assert pos >= 16 * (needn + 1), (k, pos, needn)
        if bi == XBI:
            A(vop("v_and_b32", 5, "7", lane)); A(vop("v_lshlrev_b32", 5, "4", 5)); A(vop("v_lshrrev_b32", 6, "3", lane))
            A(vop("v_mul_u32_u24", 6, "14336", 6)); A(vop("v_add_u32", vO, 5, 6))
            A(vop("v_lshlrev_b32", vG, "7", lane))
            A(vop("v_mul_u32_u24", vXG, "896", lane))
            A(salu("s_lshr_b32 %s, s2, 6" % S(sT2))); A(salu("s_mul_i32 %s, %s, %d" % (S(sT2), S(sT2), 56 * 896)))
            o += late
            if CODEPF and not CPF2: codepf("L_compute", True, 2)
            if CODEPF and CPF2:
                A(salu("s_getpc_b64 s[4:5]")); A(label("L_pcl"))
                A(salu("s_sub_u32 s4, s4, L_pcl-L_compute")); A(salu("s_subb_u32 s5, s5, 0"))
                A(salu("s_mov_b32 s6, L_exit1-L_compute")); A(salu("s_mov_b32 s7, 0x20000"))
                A(salu("s_lshr_b32 s8, s2, 3")); A(salu("s_lshl_b32 s8, s8, 7"))
                A(vop("v_lshlrev_b32", 248, "12", lane))
                extra(vmem("buffer_load_dword %s, v248, s[4:7], s8 offen" % R(vD), wr=[vD], rd=[248]))
            A(salu("s_buffer_load_dword %s, %s, 0x380" % (S(sTAG), S(sF, 4))))
        if k == 4:
            A(wait(lgkm=0)); o += mktag()
            A(salu("s_getreg_b32 %s, hwreg(HW_REG_XCC_ID)" % S(sMODE))); A(salu("s_and_b32 %s, %s, 15" % (S(sMODE), S(sMODE))))
            A(salu("s_add_u32 %s, %s, %s" % (S(sMODE), S(sMODE), S(sTAG)))); A(salu("s_add_u32 %s, %s, 16" % (S(sMODE), S(sMODE))))
            A(vop("v_mov_b32", 157, S(sMODE))); A(salu("s_lshl_b32 %s, %s, 11" % (S(sT0), S(sH))))
            A(vop("v_and_b32", 155, "32", lane)); A(vop("v_lshlrev_b32", 155, "12", 155)); A(vop("v_lshl_add_u32", 158, lane, "2", 155))
            extra(vmem("buffer_store_dword v157, v158, %s, %s offen offset:1024 sc1" % (S(sF, 4), S(sT0)), rd=[157, 158], store=True))
            A(vop("v_and_b32", vid, "15", lane)); A(vop("v_lshlrev_b32", vid, "11", vid)); A(vop("v_add_u32", vid, "1024", vid))
        if k == 12: o += red_setup()
        if k == 16:
            room(1); A(vmem("buffer_load_dword v159, %s, %s, 0 offen sc1" % (R(vid), S(sF, 4)), wr=[159], rd=[vid])); issued.append(4000)
        if k == 20:
            assert 4000 not in issued
            A(valu("v_cmp_eq_u32 vcc, %s, v159" % S(sMODE), rd=[159], swr=["vcc"])); A(nop(1))
            A(salu("s_cmp_eq_u64 vcc, -1")); A(salu("s_cselect_b32 %s, 1, 0" % S(sMODE)))
            if FORCE: A(salu("s_mov_b32 %s, %d" % (S(sMODE), 1 if FORCE == "local" else 0)))
            A(vop("v_mov_b32", 155, S(sMODE))); A(vop("v_mov_b32", 156, str(MODEADDR)))
            A(I("ds_write_b32 v156, v155", "dsw", rd=[155, 156])); A(wait(lgkm=0))
        if k == 21:
            A(salu("s_lshl_b32 %s, %s, 11" % (S(sT0), S(sH)))); A(vop("v_lshlrev_b32", 155, "5", lane))
            extra(vmem("buffer_load_dword %s, v155, %s, %s offen" % (R(vD), S(sF, 4), S(sT0)), wr=[vD], rd=[155]))
        if PFL.get(k, 0) and npl[0] == 0: A(vop("v_mul_u32_u24", 160, str(PFSTR), lane))
        for _ in range(PFL.get(k, 0) * (128 // PFSTR)):
            if npl[0] * 64 * PFSTR >= RING * STG: break
            A(salu("s_add_u32 %s, %s, %d" % (S(sT0), S(sPB), 64 * PFSTR * npl[0]))); npl[0] += 1
            if PFSTR == 16: extra(vmem("buffer_load_dwordx4 v[164:167], v160, %s, %s offen%s" % (S(sP, 4), S(sT0), PFLAG), wr=rr(164, 4), rd=[160]))
            else: extra(vmem("buffer_load_dword %s, v160, %s, %s offen%s" % (R(vD), S(sP, 4), S(sT0), PFLAG), wr=[vD], rd=[160]))
        if CODEPF and CPF2 and k in (6, 20):
            extra(vmem("buffer_load_dword %s, v248, s[4:7], s8 offen" % R(vD), wr=[vD], rd=[248]))
        if XPF:
            for r in XPFW.get(bi, []):
                extra(vmem("buffer_load_dword %s, %s, %s, %s offen offset:%d" % (R(vD), R(vXG), S(sX, 4), S(sT2), 128 * r), wr=[vD], rd=[vXG]))
        for _ in range(npf):
            n, part = pfq.pop(0); typ, idx = halves[n]
            A(salu("s_mov_b32 %s, %d" % (S(sT0), idx * 16384 + 8192 * part)))
            extra(vmem("buffer_load_dword %s, %s, %s, %s offen" % (R(vD), R(vG), S(sKd if typ == "K" else sVd, 4), S(sT0)), wr=[vD], rd=[vG]))
        landed(needn)
        A(barrier())
        stamp()
    handoff(7); stamp()
    reduce_stage(5, True); stamp()
    assert pos == 960 and not pfq
    print("loader windows k:kvunits/nexthalf", " ".join(log))
    return o, stamp, nstamp

def loader_full(late):
    o, stamp, nstamp = loader_wave(late)
    A = o.append
    lane, vSTAMP = 240, 244
    if PROF:
        A(barrier()); stamp()
        A(salu("s_memrealtime s[80:81]")); A(wait(lgkm=0))
        A(salu("s_sub_u32 s80, s80, s82"))
        A(valu("v_writelane_b32 %s, s80, 62" % R(vSTAMP), wr=[vSTAMP]))
        A(valu("v_writelane_b32 %s, s84, 63" % R(vSTAMP), wr=[vSTAMP]))
        A(valu("v_writelane_b32 %s, s82, 60" % R(vSTAMP), wr=[vSTAMP]))
        A(vop("v_lshlrev_b32", 4, "2", lane))
        A(salu("s_lshl_b32 s80, s2, 8"))
        A(vmem("buffer_store_dword %s, v4, s[76:79], s80 offen" % R(vSTAMP), rd=[vSTAMP, 4], store=True))
        A(wait(vm=0))
    A(salu("s_endpgm"))
    return pad_hazards(o)

def srd(d, lo, hi, off_s, size):
    o = [salu("s_add_u32 %s, %s, %s" % (S(d), S(lo), S(off_s))), salu("s_addc_u32 %s, %s, 0" % (S(d + 1), S(hi)))]
    if size is None: return o
    o.append(salu("s_mov_b32 %s, %s" % (S(d + 2), size if isinstance(size, str) else "0x%x" % size)))
    o.append(salu("s_mov_b32 %s, 0x20000" % S(d + 3)))
    return o

def k1():
    o = []; A = o.append
    A(salu("s_load_dwordx16 s[4:19], s[0:1], 0"))
    A(salu("s_load_dwordx8 s[60:67], s[0:1], 64"))
    A(salu("s_load_dwordx2 s[24:25], s[0:1], 96"))
    A(salu("s_cmp_ge_u32 s2, 256")); A(salu("s_cbranch_scc1 L_exit1"))
    if PROF:
        A(salu("s_memrealtime s[82:83]")); A(salu("s_memtime s[84:85]"))
    A(vop("v_lshrrev_b32", 2, "6", 0)); A(vop("v_and_b32", 1, "63", 0))
    if NH == 4:
        A(salu("s_and_b32 s26, s2, 3")); A(salu("s_lshl_b32 s26, s26, 2")); A(salu("s_lshr_b32 s27, s2, 6")); A(salu("s_add_u32 s26, s26, s27"))
        A(valu("v_readfirstlane_b32 %s, v2" % S(sWID), rd=[2], swr=[sWID]))
        A(salu("s_lshr_b32 s27, s2, 3")); A(salu("s_and_b32 s27, s27, 7"))
    else:
        A(salu("s_lshr_b32 s26, s2, 4")); A(salu("s_and_b32 s27, s2, 3")); A(salu("s_lshl_b32 s27, s27, 1"))
        A(valu("v_readfirstlane_b32 %s, v2" % S(sWID), rd=[2], swr=[sWID]))
        A(salu("s_lshr_b32 s28, s2, 3")); A(salu("s_and_b32 s28, s28, 1")); A(salu("s_add_u32 s27, s27, s28"))
    A(salu("s_lshr_b32 s28, s2, 2")); A(salu("s_and_b32 s28, s28, 1"))
    A(salu("s_mul_i32 s30, s27, 200704"))
    A(salu("s_lshl_b32 s32, s26, 9"))
    A(salu("s_sub_u32 %s, %d, s32" % (S(sW + 2), 448 * 8192))); A(salu("s_mov_b32 %s, 0x20000" % S(sW + 3)))
    A(salu("s_mov_b32 %s, 200704" % S(sX + 2))); A(salu("s_mov_b32 %s, 0x20000" % S(sX + 3)))
    A(vop("v_and_b32", 3, "31", 1)); A(vop("v_lshlrev_b32", 3, "4", 3)); A(vop("v_lshrrev_b32", 4, "5", 1))
    A(vop("v_lshl_add_u32", 242, 4, "15", 3)); A(vop("v_lshl_add_u32", 241, 4, "13", 3))
    A(vop("v_lshrrev_b32", 5, "2", 1)); A(vop("v_and_b32", 6, "3", 1))
    A(salu("s_lshl_b32 %s, %s, 5" % (S(sT0), S(sWID))))
    if X128:
        A(vop("v_lshrrev_b32", 8, "3", 1)); A(vop("v_add_u32", 4, S(sT0), 8)); A(vop("v_mul_u32_u24", 4, "896", 4))
        A(vop("v_lshrrev_b32", 7, "4", 1)); A(vop("v_xor_b32", 7, 7, 1)); A(vop("v_and_b32", 7, "7", 7))
        A(vop("v_lshl_add_u32", vXO, 7, "4", 4))
        A(vop("v_xor_b32", 251, "64", vXO)); A(vop("v_add_u32", 251, "7168", 251))
    else:
        A(vop("v_add_u32", 4, S(sT0), 5)); A(vop("v_mul_u32_u24", 4, "896", 4))
        A(vop("v_lshrrev_b32", 7, "4", 1)); A(vop("v_sub_u32", 7, "0", 7)); A(vop("v_xor_b32", 7, 7, 6)); A(vop("v_and_b32", 7, "3", 7))
        A(vop("v_lshl_add_u32", vXO, 7, "4", 4))
    A(salu("s_movk_i32 %s, 14336" % S(sT1)))
    A(salu("s_lshl_b32 %s, %s, 12" % (S(sXB), S(sWID))))
    A(salu("s_lshr_b32 %s, %s, 1" % (S(sOFF), S(sWID)))); A(salu("s_lshl_b32 %s, %s, 16" % (S(sOFF), S(sOFF))))
    A(salu("s_and_b32 s23, %s, 1" % S(sWID))); A(salu("s_lshl_b32 s23, s23, 14")); A(salu("s_add_u32 %s, %s, s23" % (S(sOFF), S(sOFF))))
    A(salu("s_mul_i32 s23, %s, %d" % (S(sWID), 2 * ISTR))); A(salu("s_mov_b32 m0, s23"))
    A(salu("s_lshl_b32 s29, s27, 4")); A(salu("s_add_u32 s29, s29, s26"))
    A(salu("s_lshl_b32 s31, s29, 18"))
    A(salu("s_mul_i32 s33, s26, 229376"))
    A(salu("s_lshl_b32 s34, s28, 3")); A(salu("s_add_u32 s34, s34, s27"))
    A(salu("s_lshl_b32 s20, s34, 15")); A(salu("s_add_u32 s20, s20, 0x%x" % FLAG_OFF))
    A(salu("s_mul_i32 s34, s34, %d" % (16 * PART)))
    A(salu("s_mul_i32 %s, s26, %d" % (S(sPB), PART)))
    A(salu("s_mul_i32 s21, s27, %d" % (224 * 1792))); A(salu("s_mul_i32 s22, s28, 896")); A(salu("s_add_u32 s21, s21, s22"))
    A(salu("s_sub_u32 s22, %d, s21" % (8 * 224 * 1792)))
    A(salu("s_cmp_eq_u32 s28, 0"))
    A(wait(lgkm=0))
    for d, b in ((10, 60), (4, 14), (6, 16), (8, 18), (12, 62)): A(salu("s_cselect_b64 %s, %s, %s" % (S(d, 2), S(d, 2), S(b, 2))))
    o += srd(sW, 10, 11, 32, None)
    o += srd(sX, 4, 5, 30, None)
    for i in range(2):
        if i: A(salu("s_addk_i32 m0, %d" % ISTR)); A(salu("s_addk_i32 %s, 8192" % S(sOFF)))
        A(vmem("buffer_load_dwordx4 v242, %s, %s offen lds" % (S(sW, 4), S(sOFF)), rd=[242]))
    late = srd(sKd, 6, 7, 31, 262144) + srd(sVd, 8, 9, 31, 262144) + srd(sO, 12, 13, 33, 229376)
    late += srd(sP, 24, 25, 34, 16 * PART) + srd(sF, 24, 25, 20, 32768) + srd(sOUT, 64, 65, 21, "s22")
    if PROF: late += [salu("s_mov_b32 s80, 0x%x" % PROF_OFF)] + srd(76, 24, 25, 80, 65536)
    A(salu("s_cmp_eq_u32 %s, 7" % S(sWID))); A(salu("s_cbranch_scc1 L_loader"))
    o = pad_hazards(o)
    o += compute_wave(late) + loader_full(late)
    o += [label("L_exit1"), salu("s_endpgm")]
    return o

def kd(name, vg, sg):
    return """.amdhsa_kernel %s
  .amdhsa_next_free_vgpr %d
  .amdhsa_next_free_sgpr %d
  .amdhsa_accum_offset %d
  .amdhsa_group_segment_fixed_size 0
  .amdhsa_kernarg_size 104
  .amdhsa_user_sgpr_count 2
  .amdhsa_user_sgpr_kernarg_segment_ptr 1
  .amdhsa_system_sgpr_workgroup_id_x 1
.end_amdhsa_kernel""" % (name, vg, sg, (vg + 3) // 4 * 4)

K1 = NAME + "_kernel"
src = []
src.append("; @launch grid=(256,1,1) block=(512,1,1) lds=%d" % LDS_BYTES)
src.append('.amdgcn_target "amdgcn-amd-amdhsa--gfx950"\n.text')
src.append(".globl %s\n.p2align 8\n.type %s,@function\n%s:" % (K1, K1, K1))
src.append(text(k1()))
src.append('.section .rodata,"a"\n.p2align 6')
src.append(kd(K1, 256, 100))
open(OUT, "w").write("\n".join(src) + "\n")
print("wrote", OUT)
```

```python
import sys, math, struct
from asmlib import *

NAME = "concat_heads__mha_block_cached__gqa_block_cached__near_ridge"
def opt(name, default):
    for a in sys.argv:
        if a.startswith("--%s=" % name): return a.split("=", 1)[1]
    return default
DBG = "--dbg" in sys.argv
PROF = "--prof" in sys.argv or DBG
KVFLAG = opt("kv", "_nt").replace("_", " ")
RAMP = int(opt("ramp", "3"))
XSLOT = int(opt("xslot", "2")); XSLOT0 = int(opt("xslot0", "8"))
STGAP = int(opt("stgap", "1"))
PUB = opt("pub", "late")
PUBSLOT = int(opt("pubslot", "8"))
LPAIRS = [tuple(int(c) for c in p) for p in opt("lpairs", "").split(",") if p]
CBATCH = [tuple(int(c) for c in p) for p in opt("cbatch", "0123,456").split(",")]
PUBS = sorted(set([p[-1] for p in LPAIRS] + [p[-1] for p in CBATCH]) - {6})
THROT = int(opt("throt", "0"))
ENDBAR = int(opt("endbar", "1"))
WOPF = int(opt("wopf", "0"))
CODEPF = int(opt("codepf", "1"))
FAST0 = int(opt("fast0", "1"))
KLATE = int(opt("klate", "1"))
SLEEP = int(opt("sleep", "1"))
NORED = "--nored" in sys.argv
PUB1 = int(opt("pub1", "3"))
WARMX = int(opt("warmx", "0")); WARMW = int(opt("warmw", "0"))
STOCK = [int(x) for x in opt("stock", "").split(",") if x]
STOCKW = [int(x) for x in opt("stockw", "2,3,4").split(",") if x]
def dct(name, default): return {int(x.split(":")[0]): int(x.split(":")[1]) for x in opt(name, default).split(",") if x}
BUD = int(opt("bud", "28")); BUDO = dct("budo", "5:16,6:28,7:34,8:50")
L2PF = [int(x) for x in opt("l2pf", "").split(",") if x]
PFW = dct("pfw", "1:2,2:2,3:2,4:2")
XPF = int(opt("xpf", "0"))
OLOOP = int(opt("oloop", "1"))
CPF2 = int(opt("cpf2", "1"))
ST0 = "--st0" in sys.argv
def st0(i): return [salu("s_memrealtime s[%d:%d]" % (100 - 100 + 6 + 2 * i, 7 + 2 * i))] if ST0 else []
W0CAP = int(opt("w0cap", "1"))
X128 = int(opt("x128", "1"))
vBP1 = 255
MUSTE = int(opt("muste", "0")); MUSTK = int(opt("mustk", "5"))
WFLAG = opt("wf", "").replace("_", " "); OFLAG = opt("of", "").replace("_", " "); PFLAG = opt("pff", "").replace("_", " ")
PFSTR = int(opt("pfstr", "128"))
SKIPWO = int(opt("skipwo", "99"))
FINE = "--fine" in sys.argv
POLLE = int(opt("polle", "0")); STLATE = int(opt("stlate", "0")); DMA1 = int(opt("dma1", "0")); TLBW = int(opt("tlbw", "0"))
SOFT = [int(x) for x in opt("soft", "0,0").split(",")]
SOFT2 = int(opt("soft2", "0"))
WOL2 = dct("wol2", "")
PREW = dct("prew", ""); PREW0 = int(opt("prew0", "0")); PWFLAG = opt("pwf", "_sc1").replace("_", " ")
PRER = dct("prer", ""); WOM = dct("wom", "")
TCW = int(opt("tcw", "1"))
NH = int(opt("nh", "16"))
RING = int(opt("ring", "3"))
PFL = dct("pfl", "22:2,23:3,24:2,25:2,26:2")
WOCAP = dct("wocap", "22:40,23:40,24:48")
FORCE = opt("force", "")
MODEADDR = 160000
sMODE = 91
XBI = int(opt("xbi", "1"))
BBS = int(opt("bbs", "20"))
LPRIO = int(opt("lprio", "3")); LPRIO0 = int(opt("lprio0", "0"))
WCAPS = [int(x) for x in opt("wcaps", "16,16,16,32,48,48,16").split(",")]
OCV = int(opt("ocv", "4"))
MUSTA = int(opt("musta", "1"))
E24 = int(opt("e24", "8"))
XPFW = {0: [2], 1: [3], 2: [4], 3: [5], 4: [6]}
TAILV = int(opt("tailv", "2"))
STFLAG = opt("st", "_sc1").replace("_", " ")
OUT = [a for a in sys.argv[1:] if not a.startswith("--")]
OUT = OUT[0] if OUT else "cdna_kernels/%s.s" % NAME

SLOT = 16896; NSLOT = 9; ISTR = 1056
LDS_BYTES = 163840
PART = 200704; STG = 28672
FLAG_OFF = 56 << 20
PROF_OFF = 64 << 20
CSCALE = math.log2(math.e) / 16.0
THR = 65536.0
SPIN = 400000
def f2u(x): return struct.unpack("<I", struct.pack("<f", x))[0]

def ACC(qt, t): return 8 * t + 4 * qt
def OACC(s, qt, tau): return 32 * s + 8 * tau + 4 * qt
def QF(qt, u): return 128 + 32 * qt + 4 * u
def SR(qt, z): return 192 + 8 * qt + 4 * z
def SR0(qt, z): return 8 * qt + 4 * z
def PR(qt): return 208 + 4 * qt
def NM(qt): return 216 + 4 * qt
FB0 = 224
BUFSEQ = [0,1,2,3,4,5, 0,1,2,3,4, 0,1,2,3,4]; DEPTH = 5
vK, vT = 248, 249
def L(qt): return 250 + qt
def T(qt): return 252 + qt
TMP0, TMP1 = 254, 255
vT1, vXO, vBP = 252, 253, 254
vST, vFO, vFV = 248, 252, 253
def XF(qt, s):
    if s < 10: return 128 + 8 * (s % 8) + 4 * qt
    return 192 + 8 * (s - 10) + 4 * qt

sWID = 3
sH, sB, sBLK = 26, 27, 28
sX, sW, sKd, sVd, sO, sP, sF, sOUT = 36, 40, 44, 48, 52, 56, 92, 96
sC, sKT, sTHR, sKpos, sVpos, sDK, sDV, sPOS, sNEG, sCNT, sRET, sT0, sT1, sOFF, sXB = 60, 61, 62, 63, 64, 65, 66, 67, 68, 69, 70, 71, 72, 73, 74
sPB = 75
sFL, sOR = 86, 88
sTAG = 90
sT2, sT3 = 29, 30

halves = [("W", i) for i in range(14)] + [("K", 0), ("K", 1)]
for i in range(1, 15): halves += [("V", i - 1), ("K", i + 1)]
halves += [("V", 14), ("V", 15)] + [("O", i) for i in range(14)]
assert len(halves) == 60
def slot_idx(n): return n % 8 if n < 16 else (n - 16) % NSLOT
def slot_addr(n): return slot_idx(n) * SLOT
XPRIV = 8 * SLOT; X0ADDR = 6 * SLOT
LASTBAR = int(opt("lastbar", "28"))

class Half:
    def __init__(self, n, reads, mf, pre): self.n = n; self.reads = reads; self.mf = mf; self.pre = pre
def vadd_lit(reg, delta): return valu("v_add_u32 %s, 0x%x, %s" % (R(reg), delta & 0xffffffff, R(reg)), wr=[reg], rd=[reg])
def vadd_s(reg, s): return valu("v_add_u32 %s, %s, %s" % (R(reg), S(s), R(reg)), wr=[reg], rd=[reg])
def vop(op, d, *src):
    t = "%s %s, %s" % (op, R(d), ", ".join(R(x) if isinstance(x, int) else x for x in src))
    return valu(t, wr=[d], rd=[x for x in src if isinstance(x, int)])
def lane_id(d): return [vop("v_mbcnt_lo_u32_b32", d, "-1", "0"), vop("v_mbcnt_hi_u32_b32", d, "-1", d)]

def half_W(s, pre):
    def reads(f, b):
        a = vT1 if f & 1 else vT
        return [dsrtr(b, a, 32 * f), dsrtr(b + 2, a, 32 * f + 512)]
    def mf(f, b): return [mfma16(ACC(qt, f), b, XF(qt, s), None if s == 0 else ACC(qt, f)) for qt in range(2)]
    return Half(16, reads, mf, pre)
def half_W2(s, pre):
    assert slot_addr(s + 1) == slot_addr(s) + SLOT
    def reads(f, b):
        t, e = f >> 1, f & 1
        a = vT1 if t & 1 else vT
        return [dsrtr(b, a, e * SLOT + 32 * t), dsrtr(b + 2, a, e * SLOT + 32 * t + 512)]
    def mf(f, b):
        t, e = f >> 1, f & 1
        return [mfma16(ACC(qt, t), b, XF(qt, s + e), ACC(qt, t)) for qt in range(2)]
    return Half(32, reads, mf, pre)
def half_K(pre, first=False):
    sr = SR0 if first else SR
    def reads(f, b): return [dsr128(b, vK, 512 * (f & 1) + 64 * (f >> 1))]
    def mf(f, b):
        u, z = f >> 1, f & 1
        return [mfma16(sr(qt, z), b, QF(qt, u), (None if first else NM(qt)) if u == 0 else sr(qt, z)) for qt in range(2)]
    return Half(16, reads, mf, pre)
def half_V(pre, first=False):
    def reads(f, b): return [dsrtr(b, vT, 32 * f), dsrtr(b + 2, vT, 32 * f + 512)]
    def mf(f, b): return [mfma16(ACC(qt, f), b, PR(qt), None if first else ACC(qt, f)) for qt in range(2)]
    return Half(16, reads, mf, pre)
def half_O(hh, aset, pre):
    def reads(f, b):
        ks, tau = f >> 2, f & 3
        return [dsrtr(b, vT, 256 * ks + 32 * tau), dsrtr(b + 2, vT, 256 * ks + 128 + 32 * tau)]
    def mf(f, b):
        ks, tau = f >> 2, f & 3
        u = 4 * hh + ks
        return [mfma16(OACC(aset, qt, tau), b, QF(qt, u), None if u == 0 else OACC(aset, qt, tau)) for qt in range(2)]
    return Half(16, reads, mf, pre)

class Stream:
    def __init__(self): self.o = []; self.q = []; self.pend = []; self.slow = False
    def buf(self, f): return FB0 + 4 * BUFSEQ[f % 16]
    def lds(self, ins, key): self.o.append(ins); self.q.append(key)
    def first_read(self, h, f):
        rs = h.reads(f, self.buf(f)); key = (id(h), f)
        if KLATE and len(rs) == 1:
            self.pend = [(rs[0], key)]
            return (h.pre if f == 0 else []), []
        if self.slow:
            self.pend = []
            return (h.pre if f == 0 else []), [(r, key) for r in rs]
        self.pend = [(r, key) for r in rs[1:]]
        return (h.pre if f == 0 else []), [(rs[0], key)]
    def preload(self, h):
        for f in range(DEPTH):
            for r, k in self.pend: self.lds(r, k)
            pre, rs = self.first_read(h, f)
            self.o += pre
            for r, k in rs: self.lds(r, k)
    def rekey(self, hold, hnew):
        f = lambda k: (id(hnew), k[1]) if k[0] == id(hold) else k
        self.q = [f(k) for k in self.q]; self.pend = [(r, f(k)) for r, k in self.pend]
    def waitfor(self, keys):
        idx = [i for i, k in enumerate(self.q) if k in keys]
        if idx:
            last = max(idx); n = len(self.q) - 1 - last
            assert n <= 15
            self.o.append(wait(lgkm=n)); self.q = self.q[last + 1:]
    def run(self, h, nxt, fill=None, head=None, post=None, ldsx=None, needs=None):
        fill = fill or {}; head = head or {}; post = post or {}; ldsx = ldsx or {}; needs = needs or {}
        for d in (fill, head, post, ldsx): assert all(0 <= k < 2 * h.n for k in d), d.keys()
        for f in range(h.n):
            ms = h.mf(f, self.buf(f))
            for k, m in enumerate(ms):
                sl = 2 * f + k
                self.o += head.get(sl, [])
                if k == 0:
                    assert not any(kk == (id(h), f) for _, kk in self.pend)
                    self.waitfor([(id(h), f)] + needs.get(f, []))
                self.o.append(m)
                pre, rs = [], []
                if k == 0:
                    rs = self.pend; self.pend = []
                else:
                    g = f + DEPTH
                    if g < h.n: pre, rs = self.first_read(h, g)
                    elif nxt is not None: pre, rs = self.first_read(nxt, g - h.n)
                self.o += fill.get(sl, []) + pre
                for r, kk in rs: self.lds(r, kk)
                for r, kk in ldsx.get(sl, []): self.lds(r, kk)
                self.o += post.get(sl, [])

def cost(op):
    if op.kind == "vst": return 2 if STGAP else 0
    return 2 if op.kind in ("trans", "perm") else (1 if op.kind == "valu" else 0)
def pack(ops, lo, d=None, cap=2):
    d = d if d is not None else {}
    s = lo
    for op in ops:
        while sum(cost(x) for x in d.get(s, [])) + cost(op) > cap: s += 1
        d.setdefault(s, []).append(op)
    return d, s
def split(d, n): return {k: v for k, v in d.items() if k < n}, {k - n: v for k, v in d.items() if k >= n}
def flat(d):
    o = []
    for k in sorted(d): o += d[k]
    return o

def sm_ops(sr=SR):
    ops = []
    def s(qt, j): return sr(qt, 0) + j
    for j in range(0, 9):
        if j < 8:
            for qt in range(2): ops.append(v_exp(s(qt, j), s(qt, j)))
        if j >= 2:
            for qt in range(2):
                ops.append(v_add(T(qt), s(qt, 0), s(qt, 1)) if j == 2 else v_add(T(qt), T(qt), s(qt, j - 1)))
    return ops
def check_ops():
    return [v_max(TMP0, T(0), T(1)), valu("v_cmp_nge_f32 vcc, %s, %s" % (S(sTHR), R(TMP0)), rd=[TMP0], swr=["vcc"])]
def pcvt(qt, z, sr=SR): return [v_cvtpk(PR(qt) + 2 * z, sr(qt, z), sr(qt, z) + 1), v_cvtpk(PR(qt) + 2 * z + 1, sr(qt, z) + 2, sr(qt, z) + 3)]
def ladd(): return [v_add(L(qt), L(qt), T(qt)) for qt in range(2)]
def rowreduce(reg, tmp, op):
    return [v_mov(tmp, R(reg), [reg]), v_swap16(reg, tmp), op(reg, reg, tmp),
            v_mov(tmp, R(reg), [reg]), v_swap32(reg, tmp), op(reg, reg, tmp)]
def qk_head():
    head = {0: pcvt(0, 0)}
    fill = {0: pcvt(1, 0), 1: pcvt(0, 1), 2: pcvt(1, 1), 3: ladd()}
    return head, fill

def red_consts(lane, a1, a2, vld, vout, t0, t1):
    o = []
    o.append(vop("v_and_b32", t0, "15", lane))
    for base, sh in ((a1, 0), (a2, 8)):
        if base is None: continue
        for r in range(4):
            o.append(vop("v_mov_b32", base + r, "0"))
            o.append(valu("v_cmp_eq_u32 vcc, %d, %s" % (2 * r + sh, R(t0)), rd=[t0], swr=["vcc"]))
            o.append(vop("v_mov_b32", t1, "0x3f80"))
            o.append(valu("v_cndmask_b32 %s, %s, %s, vcc" % (R(base + r), R(base + r), R(t1)), wr=[base + r], rd=[base + r, t1], srd=["vcc"]))
            o.append(valu("v_cmp_eq_u32 vcc, %d, %s" % (2 * r + 1 + sh, R(t0)), rd=[t0], swr=["vcc"]))
            o.append(vop("v_mov_b32", t1, "0x3f800000"))
            o.append(valu("v_cndmask_b32 %s, %s, %s, vcc" % (R(base + r), R(base + r), R(t1)), wr=[base + r], rd=[base + r, t1], srd=["vcc"]))
    o.append(vop("v_lshrrev_b32", t1, "4", lane))
    o.append(vop("v_mul_u32_u24", vld, "0x%x" % PART, t1))
    o.append(vop("v_lshl_add_u32", vld, t0, "4", vld))
    o.append(vop("v_mul_u32_u24", vout, "1792", t0))
    o.append(vop("v_and_b32", t0, "1", t1))
    o.append(vop("v_lshl_add_u32", vout, t0, "5", vout))
    o.append(vop("v_lshrrev_b32", t0, "1", t1))
    o.append(vop("v_lshl_add_u32", vout, t0, "7", vout))
    return o
def out_base(dst, ci, tmp):
    return [salu("s_lshr_b32 %s, %s, 3" % (S(dst), S(ci))), salu("s_mul_i32 %s, %s, %d" % (S(dst), S(dst), 16 * 1792)),
            salu("s_and_b32 %s, %s, 3" % (S(tmp), S(ci))), salu("s_lshl_b32 %s, %s, 3" % (S(tmp), S(tmp))),
            salu("s_add_u32 %s, %s, %s" % (S(dst), S(dst), S(tmp))),
            salu("s_and_b32 %s, %s, 4" % (S(tmp), S(ci))), salu("s_lshl_b32 %s, %s, 4" % (S(tmp), S(tmp))),
            salu("s_add_u32 %s, %s, %s" % (S(dst), S(dst), S(tmp)))]
def mktag(): return [salu("s_mul_i32 %s, %s, 0x9e3779b1" % (S(sTAG), S(sTAG))), salu("s_add_u32 %s, %s, 0x7f4a7c15" % (S(sTAG), S(sTAG)))]
_pl = [0]
def pollload(vaddr, vdat):
    return vmem("buffer_load_dword %s, %s, %s, 0 offen sc1" % (R(vdat), R(vaddr), S(sF, 4)), wr=[vdat], rd=[vaddr])
def poll(vaddr, vdat, need, pre=False, prevm=1):
    _pl[0] += 1; lb = "L_poll%d" % _pl[0]
    first = [salu("s_add_u32 %s, %s, %d" % (S(sT1), S(sTAG), need)), wait(vm=prevm), salu("s_branch %sc" % lb)] if pre else []
    return [salu("s_mov_b32 %s, %d" % (S(sCNT), SPIN))] + first + [label(lb),
            vmem("buffer_load_dword %s, %s, %s, 0 offen sc1" % (R(vdat), R(vaddr), S(sF, 4)), wr=[vdat], rd=[vaddr]),
            salu("s_sub_u32 %s, %s, 1" % (S(sCNT), S(sCNT))), salu("s_cbranch_scc1 L_exit1"),
            salu("s_add_u32 %s, %s, %d" % (S(sT1), S(sTAG), need)),
            wait(vm=0), label(lb + "c"),
            vop("v_subrev_u32", vdat, S(sT1), vdat),
            valu("v_cmp_lt_u32 vcc, %d, %s" % (7 - need, R(vdat)), rd=[vdat], swr=["vcc"]),
            nop(0), salu("s_cbranch_vccz %sx" % lb), salu("s_sleep %d" % SLEEP), salu("s_branch %s" % lb), label(lb + "x")]

def w1share():
    return [salu("s_add_u32 m0, s23, %d" % SLOT), salu("s_add_u32 %s, %s, %d" % (S(sOFF), S(sOFF), 31 * 8192)),
            vmem("buffer_load_dwordx4 v242, %s, %s offen lds" % (S(sW, 4), S(sOFF)), rd=[242]),
            salu("s_addk_i32 m0, %d" % ISTR), salu("s_addk_i32 %s, 8192" % S(sOFF)),
            vmem("buffer_load_dwordx4 v242, %s, %s offen lds" % (S(sW, 4), S(sOFF)), rd=[242])]
def compute_wave(late):
    st = Stream(); o = st.o; A = o.append
    o += [label("L_compute")]
    def xdma(r, base):
        ops = []
        if X128:
            for qt in range(2):
                for rh in range(2):
                    a = 251 if rh else vXO
                    ops.append([salu("s_add_u32 m0, %s, %d" % (S(sXB), base + (2 * qt + rh) * 1024 - 128 * r)),
                                vmem("buffer_load_dwordx4 %s, %s, %s offen offset:%d lds" % (R(a), S(sX, 4), S(sT1) if qt else "0", 128 * r), rd=[a])])
            return ops
        for e in range(2):
            for qt in range(2):
                sidx = 2 * r + e
                ops.append([salu("s_add_u32 m0, %s, %d" % (S(sXB), base + (2 * e + qt) * 1024 - 64 * sidx)),
                            vmem("buffer_load_dwordx4 %s, %s, %s offen offset:%d lds" % (R(vXO), S(sX, 4), S(sT1) if qt else "0", 64 * sidx), rd=[vXO])])
        return ops
    def xread(r, base):
        if X128: return [(dsr128(XF(qt, 2 * r + e), vBP1 if e else vBP, base - X0ADDR + qt * 2048), ("x", r)) for e in range(2) for qt in range(2)]
        return [(dsr128(XF(qt, 2 * r + e), vBP, base - X0ADDR + (2 * e + qt) * 1024), ("x", r)) for e in range(2) for qt in range(2)]
    x0 = xdma(0, X0ADDR)
    if X128: o += x0[0] + x0[1] + x0[2] + x0[3] + w1share()
    else: o += x0[0] + x0[1] + w1share() + x0[2] + x0[3]
    o += late + st0(0)
    NG = WARMX + WARMW
    if WARMX:
        A(salu("s_lshr_b32 %s, s2, 6" % S(sT0))); A(salu("s_mul_i32 %s, %s, 7" % (S(sT0), S(sT0)))); A(salu("s_add_u32 %s, %s, %s" % (S(sT0), S(sT0), S(sWID))))
        A(salu("s_mul_i32 %s, %s, %d" % (S(sT0), S(sT0), 56 * 128))); A(vop("v_lshlrev_b32", 8, "7", 1))
        A(vmem("buffer_load_dword v251, v8, %s, %s offen" % (S(sX, 4), S(sT0)), wr=[251], rd=[8]))
    if WARMW:
        A(salu("s_mul_i32 %s, %s, 44" % (S(sT0), S(sB)))); A(salu("s_lshl_b32 %s, %s, 4" % (S(sOFF), S(sWID)))); A(salu("s_add_u32 %s, %s, %s" % (S(sT0), S(sT0), S(sOFF))))
        A(salu("s_add_u32 %s, %s, 96" % (S(sT0), S(sT0)))); A(salu("s_cmp_lt_u32 %s, 3" % S(sWID))); A(salu("s_cselect_b32 %s, %s, 4096" % (S(sT0), S(sT0))))
        A(salu("s_lshl_b32 %s, %s, 13" % (S(sT0), S(sT0))))
        A(vop("v_lshlrev_b32", 10, "13", 5)); A(vop("v_lshl_add_u32", 10, 6, "7", 10))
        A(vmem("buffer_load_dword v255, v10, %s, %s offen" % (S(sW, 4), S(sT0)), wr=[255], rd=[10]))
    A(vop("v_mul_u32_u24", 5, str(ISTR), 5)); A(vop("v_lshl_add_u32", vT, 6, "3", 5)); A(vop("v_xor_b32", vT1, "16", vT))
    A(vop("v_and_b32", 2, "15", 1)); A(vop("v_lshrrev_b32", 3, "4", 1))
    if X128:
        A(vop("v_lshrrev_b32", 6, "1", 2)); A(vop("v_xor_b32", 6, 6, 3))
        A(vop("v_lshl_add_u32", 6, 2, "3", 6))
    else:
        A(vop("v_lshrrev_b32", 6, "2", 2)); A(vop("v_sub_u32", 6, "0", 6)); A(vop("v_xor_b32", 6, 6, 3)); A(vop("v_and_b32", 6, "3", 6))
        A(vop("v_lshl_add_u32", 6, 2, "2", 6))
    A(vop("v_lshlrev_b32", 6, "4", 6)); A(vop("v_add_u32", 6, S(sXB), 6))
    A(vop("v_add_u32", vBP, "0x%x" % X0ADDR, 6))
    if X128: A(vop("v_xor_b32", vBP1, "64", vBP))
    A(vop("v_lshlrev_b32", 6, "1", 3)); A(vop("v_mov_b32", 7, "0x9c")); A(vop("v_lshrrev_b32", 6, 6, 7)); A(vop("v_and_b32", 6, "3", 6))
    A(vop("v_mul_u32_u24", 5, str(ISTR), 2)); A(vop("v_lshl_add_u32", vK, 6, "4", 5)); A(vadd_lit(vK, slot_addr(14)))
    A(vop("v_mov_b32", L(0), "0x%x" % f2u(CSCALE)))
    A(salu("s_mov_b32 %s, 0x%x" % (S(sTHR), f2u(THR))))
    A(salu("s_mov_b32 %s, %d" % (S(sPOS), 2 * SLOT)))
    A(salu("s_mov_b32 %s, %d" % (S(sNEG), -7 * SLOT)))
    o += st0(1)
    A(wait(vm=2 if X128 else 4))
    o += st0(2)
    xr0 = xread(0, X0ADDR)
    for r, k in xr0[:2]: st.lds(r, ("x", -1))
    def wpre(n):
        if n == 0: return []
        d = slot_addr(n) - slot_addr(n - 1)
        return [vadd_lit(vT, d), vadd_lit(vT1, d)]
    HW = [half_W(s, wpre(s)) for s in range(12)] + [half_W2(12, wpre(12))]
    HK0 = half_K([], first=True)
    o += st0(3)
    A(barrier())
    o += st0(4)
    st.preload(HW[0])
    A(salu("s_buffer_load_dword %s, %s, 0x380" % (S(sTAG), S(sF, 4))))
    def qconv(u):
        grp = [(qt, e) for e in range(2) for qt in range(2)]
        mul = lambda qt, e: [vop("v_mul_f32", ACC(qt, 2 * u + e) + r, L(0), ACC(qt, 2 * u + e) + r) for r in range(4)]
        cvt = lambda qt, e: [v_cvtpk(QF(qt, u) + 2 * e + h, ACC(qt, 2 * u + e) + 2 * h, ACC(qt, 2 * u + e) + 2 * h + 1) for h in range(2)]
        swp = lambda qt: [v_swap16(QF(qt, u) + h, QF(qt, u) + 2 + h) for h in range(2)]
        return mul(0, 0) + mul(1, 0) + cvt(0, 0) + mul(0, 1) + cvt(1, 0) + mul(1, 1) + cvt(0, 1) + cvt(1, 1) + swp(0) + swp(1)
    for s in range(12):
        post = {}; ldsx = {}; head = {}; needs = {}
        if s == 0:
            needs[0] = [("x", -1)]
            for i, g in enumerate(xdma(1, XPRIV)):
                head.setdefault(2 * i + 1, []).append(g[0]); post.setdefault(2 * i + 1, []).append(g[1])
            head[BBS] = [wait(vm=4), barrier()]
            for i, e in enumerate(xr0[2:]): ldsx.setdefault(BBS + 2 * i, []).append(e)
            needs[15] = [("x", 0)]
        if s & 1:
            r = s // 2 + 1
            st0_ = XSLOT0 if s == 1 else XSLOT
            head[st0_] = (st0(5) if s == 3 else []) + [wait(vm=0)] + (st0(6) if s == 3 else [])
            for i, e in enumerate(xread(r, XPRIV)): ldsx.setdefault(st0_ + 2 * i, []).append(e)
            fd = (st0_ + 6) // 2 + 4
            assert fd + 4 <= 16
            needs[fd] = [("x", r)]
            if r + 1 < 7:
                for i, g in enumerate(xdma(r + 1, XPRIV)):
                    head.setdefault(2 * fd + 2 * i + 1, []).append(g[0]); post.setdefault(2 * fd + 2 * i + 1, []).append(g[1])
        st.slow = SOFT[0] <= s < SOFT[1]
        st.run(HW[s], HW[s + 1], None, head, post, ldsx, needs)
        st.slow = False
        if s == 3: o += st0(7)
        if (s & 1) or (s == 0 and FAST0): A(barrier())
    allc = [(u, op) for u in range(8) for op in qconv(u)]
    fill = {}; i = 0
    for sl in range(64):
        while i < len(allc) and sl >= 8 * allc[i][0] + 11 and sum(cost(x) for x in fill.get(sl, [])) + cost(allc[i][1]) <= 2:
            fill.setdefault(sl, []).append(allc[i][1]); i += 1
    st.run(HW[12], HK0, fill)
    rest = allc[i:]
    def try_take(n):
        d = {}; sl = 0
        for u, op in rest[len(rest) - n:]:
            while sum(cost(x) for x in d.get(sl, [])) + cost(op) > 2: sl += 1
            if sl >= 4 * u - 2: return None
            d.setdefault(sl, []).append(op)
        return d
    take = max(n for n in range(len(rest) + 1) if try_take(n) is not None)
    fillK = try_take(take)
    blk = [op for _, op in rest[:len(rest) - take]]
    A(barrier())
    o += blk
    A(wait(lgkm=0)); st.q = []
    HK1 = half_K([vadd_lit(vK, slot_addr(15) - slot_addr(14))])
    post = {27: [salu("s_mov_b32 %s, %d" % (S(sKpos), slot_addr(17))), salu("s_mov_b32 %s, %d" % (S(sVpos), slot_addr(16)))],
            28: [salu("s_mov_b32 %s, 13" % S(sCNT)), salu("s_mov_b32 %s, 0" % S(sRET))], 29: [salu("s_mov_b32 %s, 16384" % S(sKT))], 30: mktag()}
    st.run(HK0, HK1, fillK, None, post)
    ma = []; mb = []
    for qt, lst in ((0, ma), (1, mb)):
        s0 = SR0(qt, 0); m = NM(qt)
        lst += [v_max3(m, s0, s0 + 1, s0 + 2), v_max3(m, m, s0 + 3, s0 + 4), v_max3(m, m, s0 + 5, s0 + 6), v_max(m, m, s0 + 7)]
        lst += rowreduce(m, TMP0 + qt, v_max)
        lst += [vop("v_sub_f32", m, "0", m)] + [v_mov(m + j, R(m), [m]) for j in range(1, 4)]
    for a, b in zip(ma, mb): o += [a, b]
    adds = [v_add(SR0(qt, 0) + j, SR0(qt, 0) + j, NM(qt)) for j in range(8) for qt in range(2)]
    sm0 = sm_ops(SR0)
    ops = adds[:4]; ai = 4
    for op in sm0:
        ops.append(op)
        if op.kind == "trans" and (len([x for x in ops if x.kind == "trans"]) % 2 == 0) and ai < 16:
            ops += adds[ai:ai + 2]; ai += 2
    ops += pcvt(0, 0, SR0) + pcvt(1, 0, SR0) + pcvt(0, 1, SR0) + pcvt(1, 1, SR0) + [v_mov(L(qt), R(T(qt)), [T(qt)]) for qt in range(2)]
    fill, nx = pack(ops, 0)
    fill, over = split(fill, 32)
    HVn = half_V([vadd_lit(vT, slot_addr(16) - slot_addr(12))])
    st.run(HK1, HVn, fill)
    o += flat(over)
    print("conv: woven W", i, "block", len(blk), "woven K", take, "sm0 overflow", len(flat(over)))
    pre_loop = list(o)

    def pv_fill():
        d, n = pack(sm_ops() + check_ops(), 0)
        assert n < 31
        return d
    def slotcalc():
        return [salu("s_cmp_gt_u32 %s, %d" % (S(sKpos), 6 * SLOT)), salu("s_cselect_b32 %s, %s, %s" % (S(sDK), S(sNEG), S(sPOS))),
                salu("s_add_u32 %s, %s, %s" % (S(sKpos), S(sKpos), S(sDK))),
                salu("s_cmp_gt_u32 %s, %d" % (S(sVpos), 6 * SLOT)), salu("s_cselect_b32 %s, %s, %s" % (S(sDV), S(sNEG), S(sPOS))),
                salu("s_add_u32 %s, %s, %s" % (S(sVpos), S(sVpos), S(sDV)))]
    HKn = half_K([])
    def pv_part(first, nxt, extra):
        HV = half_V([], first=first); st.rekey(HVn, HV)
        st.o.append(barrier())
        post = {}
        for i, x in enumerate(extra): post.setdefault(2 * i, []).append(x)
        st.run(HV, nxt, pv_fill(), None, post)
    def qk_part(extra):
        HK = half_K([]); st.rekey(HKn, HK)
        nxt = half_V([vadd_s(vT, sDV)])
        head, fill = qk_head()
        post = {}
        for i, x in enumerate(extra): post.setdefault(4 + 2 * i, []).append(x)
        st.run(HK, nxt, fill, head, post)
        st.rekey(nxt, HVn)
    ktadd = salu("s_add_u32 %s, %s, 16384" % (S(sKT), S(sKT)))
    st.o = []; fb = st.o
    nk = half_K([vadd_s(vK, sDK)])
    pv_part(True, nk, [salu("s_mov_b32 %s, %d" % (S(sDK), slot_addr(17) - slot_addr(15)))] + slotcalc()[3:] + [salu("s_mov_b64 %s, 0" % S(sFL, 2))]); st.rekey(nk, HKn)
    fb.append(salu("s_cbranch_vccnz L_rare"))
    q0 = (list(st.q), [k for _, k in st.pend])
    st.o = []; lb = st.o
    qk_part([ktadd])
    nk = half_K([vadd_s(vK, sDK)])
    pv_part(False, nk, slotcalc() + [salu("s_sub_u32 %s, %s, 1" % (S(sCNT), S(sCNT))), salu("s_cmp_eq_u32 %s, 0" % S(sCNT)),
                                     salu("s_cselect_b32 %s, 1, 0" % S(sFL)), salu("s_mov_b32 %s, %s" % (S(sRET), S(sFL)))]); st.rekey(nk, HKn)
    lb.append(salu("s_or_b64 %s, vcc, %s" % (S(sOR, 2), S(sFL, 2))))
    lb.append(salu("s_cbranch_scc0 L_loop"))
    assert (st.q, [k for _, k in st.pend]) == q0
    st.o = []; o2 = st.o; A = o2.append
    A(salu("s_cbranch_vccnz L_rare")); A(label("L_ret1"))
    pfo = []
    if WOPF:
        pfo += lane_id(TMP1) + [salu("s_mul_i32 %s, %s, 28672" % (S(sT0), S(sB))), salu("s_add_u32 %s, %s, %s" % (S(sT0), S(sT0), S(sXB))),
                vop("v_and_b32", TMP0, "32", TMP1), vop("v_lshlrev_b32", TMP0, "16", TMP0), vop("v_lshl_add_u32", TMP0, TMP1, "7", TMP0),
                vmem("buffer_load_dword %s, %s, %s, %s offen" % (R(vK), R(TMP0), S(sO, 4), S(sT0)), wr=[vK], rd=[TMP0])]
    if CODEPF and not CPF2:
        pfo += [salu("s_getpc_b64 s[4:5]"), label("L_pcc"), salu("s_mul_i32 %s, %s, 6144" % (S(sT0), S(sWID))),
                salu("s_mov_b32 s6, L_exit1-L_pcc"), salu("s_mov_b32 s7, 0x20000")] + lane_id(TMP1) + [vop("v_mul_u32_u24", TMP1, "96", TMP1),
                vmem("buffer_load_dword %s, %s, s[4:7], %s offen" % (R(vK), R(TMP1), S(sT0)), wr=[vK], rd=[TMP1])]
    st.slow = SOFT2 >= 3
    qk_part([ktadd, salu("s_mov_b32 %s, 2" % S(sRET))])
    o2 += pfo
    st.slow = SOFT2 >= 1
    def opre(n): return [vadd_lit(vT, slot_addr(n) - slot_addr(n - 1))]
    NSET = 2 if OLOOP else 4
    HO = [half_O(i & 1, (i >> 1) % NSET, opre(46 + i)) for i in range(14)]
    HV15 = half_V(opre(45))
    pv_part(False, HV15, [])
    A(salu("s_cbranch_vccnz L_rare")); A(label("L_ret2"))
    def oconv(u):
        ops = []
        for qt in range(2):
            for e in range(2):
                a = ACC(qt, 2 * u + e)
                for h in range(2): ops.append(v_cvtpk(QF(qt, u) + 2 * e + h, a + 2 * h, a + 2 * h + 1))
        return ops
    o2 += pcvt(0, 0) + pcvt(0, 1) + pcvt(1, 0) + pcvt(1, 1)
    r0 = rowreduce(L(0), TMP0, v_add); r1 = rowreduce(L(1), TMP1, v_add)
    lops = ladd() + [x for ab in zip(r0, r1) for x in ab]
    fill, nx = pack(lops, 0)
    for u in range(8): fill, nx = pack(oconv(u), max(nx, 4 * u + 7 if u < OCV else 32), fill)
    lop2 = [trans("v_rcp_f32 %s, %s" % (R(L(qt)), R(L(qt))), wr=[L(qt)], rd=[L(qt)]) for qt in range(2)]
    lop2 += lane_id(TMP0) + [wait(vm=0), vop("v_lshlrev_b32", vST, "4", TMP0),
             salu("s_add_u32 %s, %s, %s" % (S(sT0), S(sXB), S(sPB))), vadd_s(vST, sT0),
             salu("s_lshl_b32 %s, %s, 7" % (S(sT0), S(sWID))), salu("s_lshl_b32 %s, %s, 11" % (S(sT1), S(sH))), salu("s_add_u32 %s, %s, %s" % (S(sT0), S(sT0), S(sT1))),
             vop("v_and_b32", TMP1, "32", TMP0), vop("v_lshlrev_b32", TMP1, "12", TMP1), vop("v_lshl_add_u32", vFO, TMP0, "2", TMP1), vadd_s(vFO, sT0)]
    fill, nx = pack(lop2, nx, fill)
    fill, carry = split(fill, 32)
    st.run(HV15, HO[0], fill)
    def epi(aset, flag):
        ops = []
        for qt in range(2):
            for hf in range(2):
                dst = SR(qt, hf)
                for e in range(2):
                    a = OACC(aset, qt, 2 * hf + e)
                    for r in range(4): ops.append(v_mul(a + r, a + r, L(qt)))
                    for h in range(2): ops.append(v_cvtpk(dst + 2 * e + h, a + 2 * h, a + 2 * h + 1))
                ops.append(vmem("buffer_store_dwordx4 %s, %s, %s, %s offen offset:%d%s" % (R(dst, 4), R(vST), S(sP, 4), S(sOFF), 2048 * qt + 1024 * hf, flag),
                                rd=list(rr(dst, 4)) + [vST], store=True))
        return ops
    a1, vld, vout, vpa, vpd, lane = 208, 216, 217, 218, 219, 220
    tailc = lane_id(lane) + red_consts(lane, a1, None, vld, vout, 221, 222)
    tailc += [salu("s_mul_i32 %s, %s, 7" % (S(sT2), S(sH))), salu("s_add_u32 %s, %s, %s" % (S(sT2), S(sT2), S(sWID))),
              salu("s_lshr_b32 %s, %s, 4" % (S(sT0), S(sT2))), salu("s_lshl_b32 %s, %s, 7" % (S(sT0), S(sT0))),
              vop("v_and_b32", vpa, "15", lane), vop("v_lshlrev_b32", vpa, "11", vpa), vadd_s(vpa, sT0)]
    tailc += out_base(sT3, sT2, sT0) + [salu("s_lshl_b32 %s, %s, 8" % (S(sT2), S(sT2))),
              salu("s_add_u32 %s, %s, 7" % (S(sT1), S(sTAG))), vop("v_mov_b32", vFV, S(sT1))]
    A(barrier())
    st.run(HO[0], HO[1], carry, {24: [vop("v_mov_b32", 223, str(MODEADDR))]}, None,
           {26: [(I("ds_read_b32 v223, v223", "dsr", wr=[223], rd=[223]), ("mode", 0))]})
    init = [salu("s_mov_b32 %s, %d" % (S(sVpos), slot_addr(48))), salu("s_mov_b32 %s, %d" % (S(sPOS), SLOT)), salu("s_mov_b32 %s, %d" % (S(sNEG), -8 * SLOT)),
            salu("s_mov_b32 %s, 0" % S(sOFF)), salu("s_mov_b32 %s, 3" % S(sCNT)),
            valu("v_readfirstlane_b32 %s, v223" % S(sMODE), rd=[223], swr=[sMODE])]
    fillt, _ = pack(tailc, 0) if TCW else ({}, 0)
    post = {14 + 2 * i: [x] for i, x in enumerate(init)}
    post[30] = [salu("s_cmp_eq_u32 %s, 1" % S(sMODE))]
    st.slow = SOFT2 >= 2
    st.run(HO[1], HO[2], fillt, None, post, None, {8: [("mode", 0)]})
    A(salu("s_cbranch_scc0 L_oloopR"))
    o2a = st.o
    q1 = (list(st.q), list(st.pend))
    tsn = [0]
    if ST0: tsn[0] = 8
    def tstamp():
        if not PROF or ST0: return []
        r = 6 + 2 * tsn[0]; tsn[0] += 1
        return [salu("s_memrealtime s[%d:%d]" % (r, r + 1))]
    def oloop(tagc, flag):
        st.o = []; olb = st.o; st.q = list(q1[0]); st.pend = list(q1[1])
        dyn = lambda: [vadd_s(vT, sDV)]
        LH = [half_O(0, 1, []), half_O(1, 1, dyn()), half_O(0, 0, dyn()), half_O(1, 0, dyn()), half_O(0, 1, dyn())]
        st.rekey(HO[2], LH[0])
        for i in range(4):
            if not (i & 1): olb.extend([wait(vm=0), barrier()])
            post = {0: [salu("s_cmp_eq_u32 %s, %d" % (S(sVpos), 8 * SLOT))], 2: [salu("s_cselect_b32 %s, %s, %s" % (S(sDV), S(sNEG), S(sPOS)))],
                    4: [salu("s_add_u32 %s, %s, %s" % (S(sVpos), S(sVpos), S(sDV)))]}
            fill = {}
            if not (i & 1): fill, _ = pack(epi(i >> 1, flag), 1)
            else:
                post[6] = [salu("s_add_u32 %s, %s, %d" % (S(sOFF), S(sOFF), STG))]; post[8] = [salu("s_cmp_eq_u32 %s, %d" % (S(sOFF), RING * STG))]
                post[10] = [salu("s_cselect_b32 %s, 0, %s" % (S(sOFF), S(sOFF)))]
            if i == 3:
                post[12] = [salu("s_sub_u32 %s, %s, 1" % (S(sCNT), S(sCNT)))]; post[14] = [salu("s_cmp_lg_u32 %s, 0" % S(sCNT))]
            st.run(LH[i], LH[i + 1], fill, None, post)
        olb.append(salu("s_cbranch_scc1 L_oloop" + tagc))
        st.rekey(LH[4], HO[2])
        assert (st.q, [k for _, k in st.pend]) == (q1[0], [k for _, k in q1[1]])
        n0 = tsn[0]
        fin = tstamp() + [wait(vm=0), barrier()] + tstamp() + epi(0, flag) + ([] if TCW else tailc) + [wait(vm=0)] + tstamp()
        fin += [vmem("buffer_store_dword %s, %s, %s, 0 offen%s" % (R(vFV), R(vFO), S(sF, 4), flag), rd=[vFV, vFO], store=True)]
        if tagc == "R": fin.append(salu("s_branch L_fin"))
        else: tsn[0] = n0
        return olb, fin
    olbL, finL = oloop("L", "")
    olbR, finR = oloop("R", " sc1")
    st.o = []; o2 = st.o; A = o2.append
    A(label("L_fin"))
    o2 += poll(vpa, vpd, 7) + tstamp()
    for i in range(4):
        A(salu("s_add_u32 %s, %s, %d" % (S(sOFF), S(sT2), (6 % RING) * STG + 4 * i * PART)))
        A(vmem("buffer_load_dwordx4 %s, %s, %s, %s offen sc1" % (R(4 * i, 4), R(vld), S(sP, 4), S(sOFF)), wr=rr(4 * i, 4), rd=[vld]))
    A(vop("v_mov_b32", 221, S(sTAG))); A(salu("s_lshl_b32 %s, %s, 7" % (S(sT0), S(sT2))))
    A(vmem("buffer_store_dword v221, off, %s, %s offset:896" % (S(sF, 4), S(sT0)), rd=[221], store=True))
    acc = 144
    for i in range(4):
        A(wait(vm=4 - i)); A(mfma16(acc, a1, 4 * i, acc if i else None))
    A(v_cvtpk(acc + 4, acc, acc + 1)); A(v_cvtpk(acc + 5, acc + 2, acc + 3))
    A(salu("s_mov_b32 exec_hi, 0"))
    A(vmem("buffer_store_dwordx2 %s, %s, %s, %s offen offset:768" % (R(acc + 4, 2), R(vout), S(sOUT, 4), S(sT3)), rd=[acc + 4, acc + 5, vout], store=True))
    if PROF:
        o2 += tstamp(); A(wait(vm=0)); o2 += tstamp(); A(wait(lgkm=0))
        A(salu("s_mov_b64 exec, -1")); A(v_mov(0, "0"))
        for i in range(tsn[0]): A(valu("v_writelane_b32 v0, s%d, %d" % (6 + 2 * i, i), wr=[0]))
        A(vop("v_lshlrev_b32", 1, "2", 220)); A(salu("s_lshl_b32 s80, s2, 3")); A(salu("s_add_u32 s80, s80, %s" % S(sWID))); A(salu("s_lshl_b32 s80, s80, 5"))
        A(salu("s_add_u32 s80, s80, 65536")); A(salu("s_mov_b32 s78, 0x30000")); A(salu("s_mov_b64 exec, 0xff"))
        A(vmem("buffer_store_dword v0, v1, s[76:79], s80 offen", rd=[0, 1], store=True))
        A(wait(vm=0)); A(barrier())
    A(salu("s_endpgm"))
    rp = [label("L_rare"), nop(15)]
    rp += lane_id(TMP0) + [vop("v_lshrrev_b32", TMP1, "4", TMP0), vop("v_lshlrev_b32", TMP1, "1", TMP1), v_mov(T(0), "0x9c"),
           vop("v_lshrrev_b32", TMP1, TMP1, T(0)), vop("v_and_b32", TMP1, "3", TMP1), vop("v_lshlrev_b32", TMP1, "4", TMP1),
           vop("v_and_b32", TMP0, "15", TMP0), vop("v_lshl_add_u32", TMP0, TMP0, "9", TMP1),
           salu("s_add_u32 %s, %s, 8192" % (S(sT0), S(sKT)))]
    for u in range(8):
        for z in range(2):
            rp.append(vmem("buffer_load_dwordx4 %s, %s, %s, %s offen offset:%d" % (R(PR(z), 4), R(TMP0), S(sKd, 4), S(sT0 if z else sKT), 64 * u), wr=rr(PR(z), 4), rd=[TMP0]))
        rp.append(wait(vm=0))
        for z in range(2):
            for qt in range(2): rp.append(mfma16(SR(qt, z), PR(z), QF(qt, u), NM(qt) if u == 0 else SR(qt, z)))
        rp.append(nop(7))
    rp.append(nop(15))
    for qt in range(2):
        s0 = SR(qt, 0); d = T(qt)
        rp += [v_max3(d, s0, s0 + 1, s0 + 2), v_max3(d, d, s0 + 3, s0 + 4), v_max3(d, d, s0 + 5, s0 + 6), v_max(d, d, s0 + 7)]
        rp += rowreduce(d, TMP0, v_max)
        rp.append(vop("v_max_f32", d, "0", d))
        for j in range(8): rp.append(v_sub(s0 + j, s0 + j, d))
        for j in range(4): rp.append(v_sub(NM(qt) + j, NM(qt) + j, d))
        rp.append(trans("v_exp_f32 %s, -%s" % (R(TMP1), R(d)), wr=[TMP1], rd=[d]))
        rp.append(v_mul(L(qt), L(qt), TMP1))
        for t in range(16):
            for r in range(4): rp.append(v_mul(ACC(qt, t) + r, ACC(qt, t) + r, TMP1))
    rp += sm_ops()
    rp += [nop(7), salu("s_cmp_eq_u32 %s, 0" % S(sRET)), salu("s_cbranch_scc1 L_loop"),
           salu("s_cmp_eq_u32 %s, 1" % S(sRET)), salu("s_cbranch_scc1 L_ret1"), salu("s_branch L_ret2")]
    pre_loop = pad_hazards(pre_loop)
    fb = pad_hazards(fb, prefix=pre_loop)
    lb = pad_hazards(lb, prefix=fb)
    lb = pad_hazards(lb, prefix=lb)
    assert not check_hazards(pre_loop + fb + lb + lb)
    o2a = pad_hazards(o2a, prefix=lb)
    def fix(olb, fin):
        olb = pad_hazards(olb, prefix=o2a); olb = pad_hazards(olb, prefix=olb)
        assert not check_hazards(o2a + olb + olb)
        return olb, pad_hazards(fin, prefix=olb)
    olbL, finL = fix(olbL, finL); olbR, finR = fix(olbR, finR)
    o2 = pad_hazards(o2, prefix=finL)
    assert not check_hazards(finR + o2)
    o2 = o2a + [directive(".p2align 6"), label("L_oloopL")] + olbL + finL + o2 + [label("L_oloopR")] + olbR + finR
    rp = pad_hazards(rp)
    return pre_loop + fb + [directive(".p2align 6"), label("L_loop")] + lb + [label("L_post")] + o2 + [label("L_postend")] + rp

def loader_wave(late):
    o = []; A = o.append
    lane, vKV, vW, vO, vSTAMP, vG, vD = 240, 241, 242, 243, 244, 245, 246
    A(label("L_loader"))
    o += w1share()
    if LPRIO0: A(salu("s_setprio %d" % LPRIO0))
    A(vop("v_mov_b32", lane, 1))
    issued = [0, 0, 1, 1]
    nstamp = [0]
    fine = [False]
    def fstamp():
        if FINE and fine[0]: stamp()
    def stamp():
        if not PROF or (FINE and not fine[0]): return
        A(salu("s_memtime s[80:81]")); A(wait(lgkm=0))
        A(valu("v_writelane_b32 %s, s80, %d" % (R(vSTAMP), nstamp[0]), wr=[vSTAMP])); nstamp[0] += 1
    def room(n):
        nonlocal issued
        if len(issued) > 63 - n:
            A(wait(vm=63 - n)); issued = issued[-(63 - n):]
    cont = [None]
    def off_of(typ, idx, i):
        if typ == "W": return (idx * 32 + 8 * (i >> 2) + (i & 3)) * 8192
        if typ in "KV": return idx * 16384 + 512 * i
        return ((idx & 1) * 128 + i) * 896 + (idx >> 1) * 128
    def issue1(n, i, ahead):
        if len(issued) >= 63: room(min(8, ahead))
        typ, idx = halves[n]
        srd_, vo = {"W": (sW, vW), "K": (sKd, vKV), "V": (sVd, vKV), "O": (sO, vO)}[typ]
        if cont[0] == (n, i):
            A(salu("s_addk_i32 m0, %d" % ISTR))
            step = off_of(typ, idx, i) - off_of(typ, idx, i - 1)
            if step < 32768: A(salu("s_addk_i32 %s, %d" % (S(sOFF), step)))
            else: A(salu("s_add_u32 %s, %s, %d" % (S(sOFF), S(sOFF), step)))
        else:
            A(salu("s_mov_b32 m0, %d" % (slot_addr(n) + ISTR * i)))
            A(salu("s_mov_b32 %s, %d" % (S(sOFF), off_of(typ, idx, i))))
        cont[0] = (n, i + 1)
        A(vmem("buffer_load_dwordx4 %s, %s, %s offen%s lds" % (R(vo), S(srd_, 4), S(sOFF), KVFLAG if typ in "KV" else (WFLAG if typ == "W" else OFLAG)), rd=[vo]))
        issued.append(n)
    def landed(n):
        nonlocal issued
        idx = [i for i, k in enumerate(issued) if k <= n]
        if idx:
            cnt = len(issued) - 1 - max(idx)
            A(wait(vm=cnt)); issued = issued[max(idx) + 1:]
    def extra(ins):
        room(1); A(ins); issued.append(1000)
    def codepf(lo, neg, n):
        A(salu("s_getpc_b64 s[82:83]" if not PROF else "s_getpc_b64 s[4:5]"))
        p = 82 if not PROF else 4
        lbl = "L_pc%d" % len(o); A(label(lbl))
        A(salu("s_sub_u32 s%d, s%d, %s-L_compute" % (p, p, lbl))); A(salu("s_subb_u32 s%d, s%d, 0" % (p + 1, p + 1)))
        A(salu("s_add_u32 s%d, s%d, %s-L_compute" % (p, p, lo))); A(salu("s_addc_u32 s%d, s%d, 0" % (p + 1, p + 1)))
        for i in range(n):
            extra(vmem("global_load_dword %s, %s, s[%d:%d]" % (R(vD), R(vG), p, p + 1), wr=[vD], rd=[vG]))
            if i + 1 < n:
                A(salu("s_add_u32 s%d, s%d, 8192" % (p, p))); A(salu("s_addc_u32 s%d, s%d, 0" % (p + 1, p + 1)))
    if PROF: A(v_mov(vSTAMP, "0"))
    stamp()
    bars = [(0, 0), (0, 1), (0, 2)]
    bars += [(k, 13 if k == 5 else min(2 * k + 2, 59)) for k in range(1, 31)]
    a1, a2, vld, vo4, vpa, vpd, vf2o, vf2v, vid = 136, 140, 144, 145, 149, 150, 151, 152, 153
    sLB = 9
    npl = [0]; nwo = [0]; npw = [0]; npr = [0]; nwm = [0]
    def red_setup():
        oo = red_consts(lane, a1, a2, vld, 154, 155, 156)
        oo += [vop("v_and_b32", 155, "32", lane), vop("v_lshlrev_b32", 155, "2", 155), vop("v_sub_u32", 154, 154, 155),
               salu("s_mul_i32 %s, %s, 7" % (S(sT2), S(sH))), valu("v_cmp_le_u32 vcc, 32, %s" % R(lane), rd=[lane], swr=["vcc"])]
        for p in range(4):
            oo += [salu("s_add_u32 %s, %s, %d" % (S(sT3), S(sT2), 2 * p))] + out_base(13, sT3, sT0)
            if p < 3: oo += [salu("s_add_u32 %s, %s, %d" % (S(sT3), S(sT2), 2 * p + 1))] + out_base(14, sT3, sT0)
            else: oo += [salu("s_mov_b32 s14, 0x10000000")]
            oo += [vop("v_mov_b32", 155, "s13"), vop("v_mov_b32", 156, "s14"),
                   valu("v_cndmask_b32 v155, v155, v156, vcc", wr=[155], rd=[155, 156], srd=["vcc"]), vop("v_add_u32", vo4 + p, 154, 155)]
        for i in range(4): oo += [salu("s_mul_i32 %s, %s, 1792" % (S(sLB + i), S(sH))), salu("s_add_u32 %s, %s, %d" % (S(sLB + i), S(sLB + i), 4 * i * PART))]
        oo += [vop("v_add_u32", vpa, "128", vid),
               vop("v_and_b32", 155, "32", lane), vop("v_lshlrev_b32", 155, "12", 155), vop("v_lshl_add_u32", vf2o, lane, "2", 155),
               salu("s_lshl_b32 %s, %s, 11" % (S(sT0), S(sH))), salu("s_add_u32 %s, %s, 1152" % (S(sT0), S(sT0))), vadd_s(vf2o, sT0)]
        return oo
    def reduce_stage(j, progressive, nl=0):
        A(salu("s_mov_b32 %s, %d" % (S(sT3), 128 * j)))
        for p in range(4):
            acc = 112 + 4 * p; pk = 128 + 2 * p; n = 0
            for c in (2 * p, 2 * p + 1):
                if c > 6: continue
                if progressive: A(wait(vm=4 * (6 - c) + p + nl))
                for i in range(4):
                    A(mfma16(acc, a2 if c & 1 else a1, 16 * c + 4 * i, acc if n else None)); n += 1
            if progressive or p >= 1:
                q = p if progressive else p - 1
                A(v_cvtpk(128 + 2 * q, 112 + 4 * q, 113 + 4 * q)); A(v_cvtpk(129 + 2 * q, 114 + 4 * q, 115 + 4 * q))
                A(vmem("buffer_store_dwordx2 %s, %s, %s, %s offen" % (R(128 + 2 * q, 2), R(vo4 + q), S(sOUT, 4), S(sT3)), rd=[128 + 2 * q, 129 + 2 * q, vo4 + q], store=True))
        if not progressive:
            A(v_cvtpk(134, 124, 125)); A(v_cvtpk(135, 126, 127))
            A(vmem("buffer_store_dwordx2 v[134:135], %s, %s, %s offen" % (R(vo4 + 3), S(sOUT, 4), S(sT3)), rd=[134, 135, vo4 + 3], store=True))
    late_st = []
    def prefill(k):
        if PFL.get(k, 0) and npl[0] == 0: A(vop("v_mul_u32_u24", 160, str(PFSTR), lane))
        for _ in range(PFL.get(k, 0) * (128 // PFSTR)):
            if npl[0] * 64 * PFSTR >= RING * STG: break
            A(salu("s_add_u32 %s, %s, %d" % (S(sT0), S(sPB), 64 * PFSTR * npl[0]))); npl[0] += 1
            if PFSTR == 16: extra(vmem("buffer_load_dwordx4 v[164:167], v160, %s, %s offen%s" % (S(sP, 4), S(sT0), PFLAG), wr=rr(164, 4), rd=[160]))
            else: extra(vmem("buffer_load_dword %s, v160, %s, %s offen%s" % (R(vD), S(sP, 4), S(sT0), PFLAG), wr=[vD], rd=[160]))
    def handoff(t, mid=None):
        nonlocal issued
        idx = [i for i, k_ in enumerate(issued) if k_ == 3000]
        if idx:
            A(wait(vm=len(issued) - 1 - max(idx))); issued = issued[max(idx) + 1:]
        room(6); fstamp()
        A(salu("s_add_u32 %s, %s, %d" % (S(sT1), S(sTAG), t))); A(vop("v_mov_b32", vf2v, S(sT1)))
        A(salu("s_cmp_eq_u32 %s, 1" % S(sMODE))); A(salu("s_cbranch_scc1 L_f2l%d" % t))
        A(vmem("buffer_store_dword %s, %s, %s, 0 offen sc1" % (R(vf2v), R(vf2o), S(sF, 4)), rd=[vf2v, vf2o], store=True))
        A(salu("s_branch L_f2d%d" % t)); A(label("L_f2l%d" % t))
        A(vmem("buffer_store_dword %s, %s, %s, 0 offen" % (R(vf2v), R(vf2o), S(sF, 4)), rd=[vf2v, vf2o], store=True))
        A(label("L_f2d%d" % t))
        if mid: mid()
        if t >= 3 and POLLE:
            A(salu("s_mov_b32 %s, %d" % (S(sT3), 128 * (t - 3))))
            nm = 0
            for c in range(7):
                for i in range(4):
                    acc = 112 + 4 * (c >> 1)
                    A(mfma16(acc, a2 if c & 1 else a1, 16 * c + 4 * i, acc if (i or c & 1) else None)); nm += 1
                    if nm == POLLE: room(6); A(pollload(vpa, vpd))
            for q in range(4):
                A(v_cvtpk(128 + 2 * q, 112 + 4 * q, 113 + 4 * q)); A(v_cvtpk(129 + 2 * q, 114 + 4 * q, 115 + 4 * q))
            if STLATE: sts = []
            else: sts = o
            for q in range(4):
                sts.append(vmem("buffer_store_dwordx2 %s, %s, %s, %s offen" % (R(128 + 2 * q, 2), R(vo4 + q), S(sOUT, 4), S(sT3)), rd=[128 + 2 * q, 129 + 2 * q, vo4 + q], store=True))
            fstamp()
            o.extend(poll(vpa, vpd, t, pre=True, prevm=0 if STLATE else 4)); issued = [] if STLATE else [1000] * 4
        else:
            sts = []
            if t >= 3: reduce_stage(t - 3, False)
            fstamp()
            o.extend(poll(vpa, vpd, t)); issued = []
        fstamp()
        for i in range(4): A(salu("s_add_u32 %s, %s, %d" % (S(13 + i), S(sLB + i), ((t - 2) % RING) * STG)))
        for c in range(7):
            for i in range(4):
                A(vmem("buffer_load_dwordx4 %s, %s, %s, %s offen offset:%d sc1" % (R(16 * c + 4 * i, 4), R(vld), S(sP, 4), S(13 + i), 256 * c), wr=rr(16 * c + 4 * i, 4), rd=[vld]))
                issued.append(3000)
        if STLATE and t < 7:
            for x in sts: A(x); issued.append(1000)
        elif STLATE: late_st.extend(sts)
        cont[0] = None
        fstamp()
    pos = 32
    pfq = [(n, p) for n in L2PF for p in range(2)]
    vXG = 247
    log = []
    for bi, (k, needn) in enumerate(bars):
        consumed = 2 * max(k - 1, 0)
        def free(n):
            if n < 6: return True
            if n < 8: return bi >= 3
            if n < 24: return n - 8 < consumed
            if n == 24: return k >= 7
            return n - 9 < consumed
        nextneed = bars[bi + 1][1] if bi + 1 < len(bars) else 59
        bud = BUDO.get(k, BUD)
        npf = min(len(pfq), PFW.get(k, 0)) if bi >= 1 else 0
        bud -= 8 * npf
        wcap = WCAPS[bi] if bi < len(WCAPS) else 16 * RAMP
        if k in WOCAP: wcap = WOCAP[k]
        if k >= 26 and not DMA1: handoff(k - 24)
        if k == 3 and LPRIO != LPRIO0: A(salu("s_setprio %d" % LPRIO))
        todo = []
        p = pos
        while p < 960:
            n = p // 16
            if not free(n): break
            if E24 and n == 24:
                p += 1; continue
            ma = MUSTE if k < MUSTK else (99 if k < 9 else MUSTA)
            must = n <= needn or (n <= min(nextneed, needn + ma) and bi > 0)
            kv = halves[n][0] in "KV" and n not in L2PF
            if not must:
                if len(todo) >= wcap: break
                if kv and bud <= 0: break
            if kv: bud -= 1
            todo.append(p); p += 1
        if E24 and k == E24: todo += [24 * 16 + i for i in range(16)]
        todo = [q for q in todo if q // 16 < SKIPWO]
        def dmas():
            for t, q in enumerate(todo): issue1(q // 16, q % 16, len(todo) - t)
            prefill(k)
        if k >= 26 and DMA1: handoff(k - 24, dmas)
        else:
            for t, q in enumerate(todo): issue1(q // 16, q % 16, len(todo) - t)
        log.append("%d:%d/%d" % (k, sum(1 for q in todo if halves[q // 16][0] in "KV" and q // 16 not in L2PF) + 8 * npf, p // 16))
        pos = p
        assert pos >= 16 * (needn + 1), (k, pos, needn)
        if bi == XBI:
            A(vop("v_and_b32", 5, "7", lane)); A(vop("v_lshlrev_b32", 5, "4", 5)); A(vop("v_lshrrev_b32", 6, "3", lane))
            A(vop("v_mul_u32_u24", 6, "14336", 6)); A(vop("v_add_u32", vO, 5, 6))
            A(vop("v_lshlrev_b32", vG, "7", lane))
            A(vop("v_mul_u32_u24", vXG, "896", lane))
            A(salu("s_lshr_b32 %s, s2, 6" % S(sT2))); A(salu("s_mul_i32 %s, %s, %d" % (S(sT2), S(sT2), 56 * 896)))
            o += late
            if CODEPF and not CPF2: codepf("L_compute", True, 2)
            if CODEPF and CPF2:
                A(salu("s_getpc_b64 s[4:5]")); A(label("L_pcl"))
                A(salu("s_sub_u32 s4, s4, L_pcl-L_compute")); A(salu("s_subb_u32 s5, s5, 0"))
                A(salu("s_mov_b32 s6, L_exit1-L_compute")); A(salu("s_mov_b32 s7, 0x20000"))
                A(salu("s_lshr_b32 s8, s2, 3")); A(salu("s_lshl_b32 s8, s8, 7"))
                A(vop("v_lshlrev_b32", 248, "12", lane))
                extra(vmem("buffer_load_dword %s, v248, s[4:7], s8 offen" % R(vD), wr=[vD], rd=[248]))
            A(salu("s_buffer_load_dword %s, %s, 0x380" % (S(sTAG), S(sF, 4))))
        if k == 4:
            A(wait(lgkm=0)); o += mktag()
            A(salu("s_getreg_b32 %s, hwreg(HW_REG_XCC_ID)" % S(sMODE))); A(salu("s_and_b32 %s, %s, 15" % (S(sMODE), S(sMODE))))
            A(salu("s_add_u32 %s, %s, %s" % (S(sMODE), S(sMODE), S(sTAG)))); A(salu("s_add_u32 %s, %s, 16" % (S(sMODE), S(sMODE))))
            A(vop("v_mov_b32", 157, S(sMODE))); A(salu("s_lshl_b32 %s, %s, 11" % (S(sT0), S(sH))))
            A(vop("v_and_b32", 155, "32", lane)); A(vop("v_lshlrev_b32", 155, "12", 155)); A(vop("v_lshl_add_u32", 158, lane, "2", 155))
            extra(vmem("buffer_store_dword v157, v158, %s, %s offen offset:1024 sc1" % (S(sF, 4), S(sT0)), rd=[157, 158], store=True))
            A(vop("v_and_b32", vid, "15", lane)); A(vop("v_lshlrev_b32", vid, "11", vid)); A(vop("v_add_u32", vid, "1024", vid))
        if k == 12: o += red_setup()
        if k == 16:
            room(1); A(vmem("buffer_load_dword v159, %s, %s, 0 offen sc1" % (R(vid), S(sF, 4)), wr=[159], rd=[vid])); issued.append(4000)
        if k == 20:
            assert 4000 not in issued
            A(valu("v_cmp_eq_u32 vcc, %s, v159" % S(sMODE), rd=[159], swr=["vcc"])); A(nop(1))
            A(salu("s_cmp_eq_u64 vcc, -1")); A(salu("s_cselect_b32 %s, 1, 0" % S(sMODE)))
            if FORCE: A(salu("s_mov_b32 %s, %d" % (S(sMODE), 1 if FORCE == "local" else 0)))
            A(vop("v_mov_b32", 155, S(sMODE))); A(vop("v_mov_b32", 156, str(MODEADDR)))
            A(I("ds_write_b32 v156, v155", "dsw", rd=[155, 156])); A(wait(lgkm=0))
        if k == 21:
            A(salu("s_lshl_b32 %s, %s, 11" % (S(sT0), S(sH)))); A(vop("v_lshlrev_b32", 155, "5", lane))
            extra(vmem("buffer_load_dword %s, v155, %s, %s offen" % (R(vD), S(sF, 4), S(sT0)), wr=[vD], rd=[155]))
        if PREW.get(k, 0) and bi >= 3:
            if npw[0] == 0:
                A(vop("v_lshlrev_b32", 161, "4", lane))
                for r in range(4): A(vop("v_mov_b32", 164 + r, "0"))
            for _ in range(PREW[k]):
                if npw[0] % 4 == 0 or _ == 0: A(salu("s_add_u32 %s, %s, %d" % (S(sT0), S(sPB), PREW0 * 1024 + (npw[0] // 4) * 4096)))
                extra(vmem("buffer_store_dwordx4 v[164:167], v161, %s, %s offen offset:%d%s" % (S(sP, 4), S(sT0), 1024 * (npw[0] % 4), PWFLAG), rd=[161, 164, 165, 166, 167], store=True))
                npw[0] += 1
        for _ in range(PRER.get(k, 0)):
            A(salu("s_add_u32 %s, %s, %d" % (S(sT0), S(sPB), 8192 * (10 - npr[0])))); npr[0] += 1
            extra(vmem("buffer_load_dword %s, %s, %s, %s offen" % (R(vD), R(vG), S(sP, 4), S(sT0)), wr=[vD], rd=[vG]))
        for _ in range(WOM.get(k, 0)):
            jb = 5 - 2 * nwm[0]; nwm[0] += 1
            A(vop("v_lshrrev_b32", 162, "1", lane)); A(vop("v_mul_u32_u24", 162, "896", 162)); A(vop("v_and_b32", 163, "1", lane)); A(vop("v_lshl_add_u32", 162, 163, "7", 162))
            A(salu("s_mul_i32 %s, %s, %d" % (S(sT0), S(sB), 32 * 896))); A(salu("s_add_u32 %s, %s, %d" % (S(sT0), S(sT0), 128 * jb)))
            extra(vmem("buffer_load_dword %s, v162, %s, %s offen" % (R(vD), S(sO, 4), S(sT0)), wr=[vD], rd=[162]))
        for _ in range(WOL2.get(k, 0)):
            i = 9 + nwo[0]; nwo[0] += 1
            A(salu("s_and_b32 %s, %s, 1" % (S(sT0), S(sB)))); A(salu("s_mul_i32 %s, %s, %d" % (S(sT0), S(sT0), 64 * 896)))
            A(salu("s_add_u32 %s, %s, %d" % (S(sT0), S(sT0), (i & 1) * 128 * 896 + (i >> 1) * 128)))
            extra(vmem("buffer_load_dword %s, %s, %s, %s offen" % (R(vD), R(vXG), S(sO, 4), S(sT0)), wr=[vD], rd=[vXG]))
        if not (k >= 26 and DMA1): prefill(k)
        if TLBW and k == 19:
            A(vop("v_lshlrev_b32", 155, "16", lane))
            extra(vmem("buffer_load_dword %s, v155, %s, 0 offen" % (R(vD), S(sP, 4)), wr=[vD], rd=[155]))
            A(salu("s_mov_b64 exec, 0x7f"))
            extra(vmem("buffer_load_dword %s, v155, %s, 0 offen" % (R(vD), S(sOUT, 4)), wr=[vD], rd=[155]))
            A(salu("s_mov_b64 exec, -1"))
        if CODEPF and CPF2 and k in (6, 20):
            extra(vmem("buffer_load_dword %s, v248, s[4:7], s8 offen" % R(vD), wr=[vD], rd=[248]))
        if XPF:
            for r in XPFW.get(bi, []):
                extra(vmem("buffer_load_dword %s, %s, %s, %s offen offset:%d" % (R(vD), R(vXG), S(sX, 4), S(sT2), 128 * r), wr=[vD], rd=[vXG]))
        for _ in range(npf):
            n, part = pfq.pop(0); typ, idx = halves[n]
            A(salu("s_mov_b32 %s, %d" % (S(sT0), idx * 16384 + 8192 * part)))
            extra(vmem("buffer_load_dword %s, %s, %s, %s offen" % (R(vD), R(vG), S(sKd if typ == "K" else sVd, 4), S(sT0)), wr=[vD], rd=[vG]))
        fstamp()
        landed(needn)
        fstamp()
        A(barrier())
        if k == 22: fine[0] = True
        stamp()
    handoff(7); stamp()
    nl = len(late_st)
    for x in late_st: A(x)
    reduce_stage(5, True, nl); stamp()
    assert pos == 960 and not pfq
    print("loader windows k:kvunits/nexthalf", " ".join(log))
    return o, stamp, nstamp

def loader_full(late):
    o, stamp, nstamp = loader_wave(late)
    A = o.append
    lane, vSTAMP = 240, 244
    if PROF:
        A(barrier()); stamp()
        A(salu("s_memrealtime s[80:81]")); A(wait(lgkm=0))
        A(salu("s_sub_u32 s80, s80, s82"))
        A(valu("v_writelane_b32 %s, s80, 62" % R(vSTAMP), wr=[vSTAMP]))
        A(valu("v_writelane_b32 %s, s84, 63" % R(vSTAMP), wr=[vSTAMP]))
        A(valu("v_writelane_b32 %s, s82, 60" % R(vSTAMP), wr=[vSTAMP]))
        A(vop("v_lshlrev_b32", 4, "2", lane))
        A(salu("s_lshl_b32 s80, s2, 8"))
        A(vmem("buffer_store_dword %s, v4, s[76:79], s80 offen" % R(vSTAMP), rd=[vSTAMP, 4], store=True))
        A(wait(vm=0))
    A(salu("s_endpgm"))
    return pad_hazards(o)

def srd(d, lo, hi, off_s, size):
    o = [salu("s_add_u32 %s, %s, %s" % (S(d), S(lo), S(off_s))), salu("s_addc_u32 %s, %s, 0" % (S(d + 1), S(hi)))]
    if size is None: return o
    o.append(salu("s_mov_b32 %s, %s" % (S(d + 2), size if isinstance(size, str) else "0x%x" % size)))
    o.append(salu("s_mov_b32 %s, 0x20000" % S(d + 3)))
    return o

def k1():
    o = []; A = o.append
    A(salu("s_load_dwordx16 s[4:19], s[0:1], 0"))
    A(salu("s_load_dwordx8 s[60:67], s[0:1], 64"))
    A(salu("s_load_dwordx2 s[24:25], s[0:1], 96"))
    A(salu("s_cmp_ge_u32 s2, 256")); A(salu("s_cbranch_scc1 L_exit1"))
    if PROF:
        A(salu("s_memrealtime s[82:83]")); A(salu("s_memtime s[84:85]"))
    A(vop("v_lshrrev_b32", 2, "6", 0)); A(vop("v_and_b32", 1, "63", 0))
    if NH == 4:
        A(salu("s_and_b32 s26, s2, 3")); A(salu("s_lshl_b32 s26, s26, 2")); A(salu("s_lshr_b32 s27, s2, 6")); A(salu("s_add_u32 s26, s26, s27"))
        A(valu("v_readfirstlane_b32 %s, v2" % S(sWID), rd=[2], swr=[sWID]))
        A(salu("s_lshr_b32 s27, s2, 3")); A(salu("s_and_b32 s27, s27, 7"))
    else:
        A(salu("s_lshr_b32 s26, s2, 4")); A(salu("s_and_b32 s27, s2, 3")); A(salu("s_lshl_b32 s27, s27, 1"))
        A(valu("v_readfirstlane_b32 %s, v2" % S(sWID), rd=[2], swr=[sWID]))
        A(salu("s_lshr_b32 s28, s2, 3")); A(salu("s_and_b32 s28, s28, 1")); A(salu("s_add_u32 s27, s27, s28"))
    A(salu("s_lshr_b32 s28, s2, 2")); A(salu("s_and_b32 s28, s28, 1"))
    A(salu("s_mul_i32 s30, s27, 200704"))
    A(salu("s_lshl_b32 s32, s26, 9"))
    A(salu("s_sub_u32 %s, %d, s32" % (S(sW + 2), 448 * 8192))); A(salu("s_mov_b32 %s, 0x20000" % S(sW + 3)))
    A(salu("s_mov_b32 %s, 200704" % S(sX + 2))); A(salu("s_mov_b32 %s, 0x20000" % S(sX + 3)))
    A(vop("v_and_b32", 3, "31", 1)); A(vop("v_lshlrev_b32", 3, "4", 3)); A(vop("v_lshrrev_b32", 4, "5", 1))
    A(vop("v_lshl_add_u32", 242, 4, "15", 3)); A(vop("v_lshl_add_u32", 241, 4, "13", 3))
    A(vop("v_lshrrev_b32", 5, "2", 1)); A(vop("v_and_b32", 6, "3", 1))
    A(salu("s_lshl_b32 %s, %s, 5" % (S(sT0), S(sWID))))
    if X128:
        A(vop("v_lshrrev_b32", 8, "3", 1)); A(vop("v_add_u32", 4, S(sT0), 8)); A(vop("v_mul_u32_u24", 4, "896", 4))
        A(vop("v_lshrrev_b32", 7, "4", 1)); A(vop("v_xor_b32", 7, 7, 1)); A(vop("v_and_b32", 7, "7", 7))
        A(vop("v_lshl_add_u32", vXO, 7, "4", 4))
        A(vop("v_xor_b32", 251, "64", vXO)); A(vop("v_add_u32", 251, "7168", 251))
    else:
        A(vop("v_add_u32", 4, S(sT0), 5)); A(vop("v_mul_u32_u24", 4, "896", 4))
        A(vop("v_lshrrev_b32", 7, "4", 1)); A(vop("v_sub_u32", 7, "0", 7)); A(vop("v_xor_b32", 7, 7, 6)); A(vop("v_and_b32", 7, "3", 7))
        A(vop("v_lshl_add_u32", vXO, 7, "4", 4))
    A(salu("s_movk_i32 %s, 14336" % S(sT1)))
    A(salu("s_lshl_b32 %s, %s, 12" % (S(sXB), S(sWID))))
    A(salu("s_lshr_b32 %s, %s, 1" % (S(sOFF), S(sWID)))); A(salu("s_lshl_b32 %s, %s, 16" % (S(sOFF), S(sOFF))))
    A(salu("s_and_b32 s23, %s, 1" % S(sWID))); A(salu("s_lshl_b32 s23, s23, 14")); A(salu("s_add_u32 %s, %s, s23" % (S(sOFF), S(sOFF))))
    A(salu("s_mul_i32 s23, %s, %d" % (S(sWID), 2 * ISTR))); A(salu("s_mov_b32 m0, s23"))
    A(salu("s_lshl_b32 s29, s27, 4")); A(salu("s_add_u32 s29, s29, s26"))
    A(salu("s_lshl_b32 s31, s29, 18"))
    A(salu("s_mul_i32 s33, s26, 229376"))
    A(salu("s_lshl_b32 s34, s28, 3")); A(salu("s_add_u32 s34, s34, s27"))
    A(salu("s_lshl_b32 s20, s34, 15")); A(salu("s_add_u32 s20, s20, 0x%x" % FLAG_OFF))
    A(salu("s_mul_i32 s34, s34, %d" % (16 * PART)))
    A(salu("s_mul_i32 %s, s26, %d" % (S(sPB), PART)))
    A(salu("s_mul_i32 s21, s27, %d" % (224 * 1792))); A(salu("s_mul_i32 s22, s28, 896")); A(salu("s_add_u32 s21, s21, s22"))
    A(salu("s_sub_u32 s22, %d, s21" % (8 * 224 * 1792)))
    A(salu("s_cmp_eq_u32 s28, 0"))
    A(wait(lgkm=0))
    for d, b in ((10, 60), (4, 14), (6, 16), (8, 18), (12, 62)): A(salu("s_cselect_b64 %s, %s, %s" % (S(d, 2), S(d, 2), S(b, 2))))
    o += srd(sW, 10, 11, 32, None)
    o += srd(sX, 4, 5, 30, None)
    for i in range(2):
        if i: A(salu("s_addk_i32 m0, %d" % ISTR)); A(salu("s_addk_i32 %s, 8192" % S(sOFF)))
        A(vmem("buffer_load_dwordx4 v242, %s, %s offen lds" % (S(sW, 4), S(sOFF)), rd=[242]))
    late = srd(sKd, 6, 7, 31, 262144) + srd(sVd, 8, 9, 31, 262144) + srd(sO, 12, 13, 33, 229376)
    late += srd(sP, 24, 25, 34, 16 * PART) + srd(sF, 24, 25, 20, 32768) + srd(sOUT, 64, 65, 21, "s22")
    if PROF: late += [salu("s_mov_b32 s80, 0x%x" % PROF_OFF)] + srd(76, 24, 25, 80, 65536)
    A(salu("s_cmp_eq_u32 %s, 7" % S(sWID))); A(salu("s_cbranch_scc1 L_loader"))
    o = pad_hazards(o)
    o += compute_wave(late) + loader_full(late)
    o += [label("L_exit1"), salu("s_endpgm")]
    return o

def kd(name, vg, sg):
    return """.amdhsa_kernel %s
  .amdhsa_next_free_vgpr %d
  .amdhsa_next_free_sgpr %d
  .amdhsa_accum_offset %d
  .amdhsa_group_segment_fixed_size 0
  .amdhsa_kernarg_size 104
  .amdhsa_user_sgpr_count 2
  .amdhsa_user_sgpr_kernarg_segment_ptr 1
  .amdhsa_system_sgpr_workgroup_id_x 1
.end_amdhsa_kernel""" % (name, vg, sg, (vg + 3) // 4 * 4)

K1 = NAME + "_kernel"
src = []
src.append("; @launch grid=(256,1,1) block=(512,1,1) lds=%d" % LDS_BYTES)
src.append('.amdgcn_target "amdgcn-amd-amdhsa--gfx950"\n.text')
src.append(".globl %s\n.p2align 8\n.type %s,@function\n%s:" % (K1, K1, K1))
src.append(text(k1()))
src.append('.section .rodata,"a"\n.p2align 6')
src.append(kd(K1, 256, 100))
open(OUT, "w").write("\n".join(src) + "\n")
print("wrote", OUT)
```
